```python
import torch

def _softmax(x, axis=-1):
    return torch.softmax(x, dim=axis)
def _gelu(x):
    return torch.nn.functional.gelu(x, approximate="tanh")
def _silu(x):
    return torch.nn.functional.silu(x)
def _sigmoid(x):
    return torch.sigmoid(x)
def _layernorm(x, axis=-1, eps=1e-5):
    m = x.mean(dim=axis, keepdim=True)
    v = x.var(dim=axis, keepdim=True, unbiased=False)
    return (x - m) / torch.sqrt(v + eps)
def _scatter_add(tgt, idx, src, axis=0):
    return tgt.clone().index_add_(axis, idx, src)
def _segment_sum(src, seg, n):
    out = torch.zeros((n,) + src.shape[1:], dtype=src.dtype)
    return out.index_add_(0, seg, src)
def _pad(x, pw):
    flat = tuple(v for pair in reversed(pw) for v in pair)
    return torch.nn.functional.pad(x, flat)

kernel_name = 'sequential_preLN__softmax_full_mha__dense_activation_gelu__prompt'

def setup_inputs():

    _w = (lambda a: (lambda t: t.to(torch.bfloat16) if t.is_floating_point() else t)(torch.as_tensor(a)))
    def _A_setup():
        B, S, D = 1, 2048, 1024
        return {
            "x": _w((lambda *s: torch.randn(*s, dtype=torch.bfloat16) * 0.05)(B, S, D)),
            "wqkv": _w((lambda *s: torch.randn(*s, dtype=torch.bfloat16) * 0.05)(D, 3 * D)),
            "wo": _w((lambda *s: torch.randn(*s, dtype=torch.bfloat16) * 0.05)(D, D)),
        }
    _A_in = _A_setup()

    def _B_setup():
        B, S, D, F = 1, 2048, 1024, 3584
        return {
            "x": _w((lambda *s: torch.randn(*s, dtype=torch.bfloat16) * 0.05)(B, S, D)),
            "w1": _w((lambda *s: torch.randn(*s, dtype=torch.bfloat16) * 3.2)(D, F) * (D ** -0.5)),
            "b1": _w((lambda *s: torch.randn(*s, dtype=torch.bfloat16) * 3.2)(F) * 0.01),
            "w2": _w((lambda *s: torch.randn(*s, dtype=torch.bfloat16) * 0.4)(F, D) * (F ** -0.5)),
            "b2": _w((lambda *s: torch.randn(*s, dtype=torch.bfloat16) * 0.4)(D) * 0.01),
        }
    _B_in = _B_setup()

    return {
        "A_x": _A_in["x"],
        "A_wqkv": _A_in["wqkv"],
        "A_wo": _A_in["wo"],
        "B_x": _B_in["x"],
        "B_w1": _B_in["w1"],
        "B_b1": _B_in["b1"],
        "B_w2": _B_in["w2"],
        "B_b2": _B_in["b2"],
    }

def reference(A_x, A_wqkv, A_wo, B_x, B_w1, B_b1, B_w2, B_b2):
    def _A_ref(x, wqkv, wo):
        B, S, D = x.shape
        H = 32; Dh = D // H
        qkv = (lambda x, *d: x.permute(*d))((x @ wqkv).reshape(B, S, 3, H, Dh), 2, 0, 3, 1, 4)
        q, k, v = qkv[0], qkv[1], qkv[2]
        scale = Dh ** -0.5
        scores = torch.einsum("bhqd,bhkd->bhqk", q, k) * scale
        p = _softmax(scores, axis=-1)
        o = torch.einsum("bhqk,bhkd->bhqd", p, v)
        return (lambda x, *d: x.permute(*d))(o, 0, 2, 1, 3).reshape(B, S, D) @ wo

    def _B_ref(x, w1, b1, w2, b2):
        h = torch.einsum("bsd,df->bsf", x, w1) + b1
        h = _gelu(h)
        return torch.einsum("bsf,fd->bsd", h, w2) + b2

    x = A_x
    h = x + _A_ref(_layernorm(x, axis=-1), A_wqkv, A_wo)
    h2 = h + _B_ref(_layernorm(h, axis=-1), B_w1, B_b1, B_w2, B_b2)
    return h2
```

```python
from lib import *
from gemm import *
import gemm as G
def k_attn():
    k=K("attn_kernel",256,512,3*32768)
    Q=8; NM=24; SB_=56; O=120; L=152; KF=160; VF=176; SEL=192; IDX=196; VC,VN,VL=2,3,4
    S_HEAD,S_QT,S_KH,S_QG,S_NMAX,S_GO,S_M0,S_CUR,S_NXT=31,32,33,35,36,39,40,41,42
    k("s_cmp_ge_u32 s2, 256",f"s_cbranch_scc1 {k.lab('end')}",f"s_load_dwordx2 s[4:5], s[0:1], {A_WS}",
      "v_lshrrev_b32 v1, 6, v0","v_and_b32 v0, 63, v0","s_and_b32 s3, s2, 7",f"v_readfirstlane_b32 s{S_WAVE}, v1","s_lshr_b32 s37, s2, 3",
      f"s_lshl_b32 s{S_HEAD}, s3, 2","s_lshr_b32 s3, s37, 3",f"s_add_u32 s{S_HEAD}, s{S_HEAD}, s3",
      f"s_and_b32 s{S_QG}, s{S_WAVE}, 3",f"s_lshr_b32 s{S_KH}, s{S_WAVE}, 2",
      f"s_and_b32 s{S_QT}, s37, 7",f"s_lshl_b32 s{S_QT}, s{S_QT}, 2",f"s_add_u32 s{S_QT}, s{S_QT}, s{S_QG}",f"s_lshl_b32 s{S_QT}, s{S_QT}, 1",
      f"v_lshlrev_b32 v{VL}, 4, v0",f"s_mov_b32 s{S_NMAX}, 1","s_waitcnt lgkmcnt(0)",
      srd(8,4,WS_QF,0x400000),srd(12,4,WS_KV,0x800000),srd(16,4,WS_OF,0x400000))
    stamp(k,0)
    k(f"s_lshl_b32 s37, s{S_HEAD}, 6",f"s_add_u32 s37, s37, s{S_QT}","s_lshl_b32 s37, s37, 11")
    for j in range(4): k(f"buffer_load_dwordx4 {vr(Q+4*j,4)}, v{VL}, s[8:11], s37 offen offset:{1024*j}")
    k.label("retry")
    k(f"s_lshl_b32 s38, s{S_HEAD}, 18")
    for j in range(2): k(f"buffer_load_dwordx4 {vr(KF+4*j,4)}, v{VL}, s[12:15], s38 offen offset:{1024*j}")
    k(f"s_lshl_b32 s{S_GO}, s{S_KH}, 5",f"s_add_u32 s{S_GO}, s{S_GO}, s{S_QG}",f"s_lshl_b32 s{S_GO}, s{S_GO}, 12",f"s_add_u32 s{S_GO}, s{S_GO}, s38",
      f"s_lshl_b32 s{S_M0}, s{S_WAVE}, 12")
    def dma():
        return [f"buffer_load_dwordx4 v{VL}, s[12:15], s{S_GO} offen offset:{1024*j} lds" for j in range(4)]+[f"s_add_u32 s{S_GO}, s{S_GO}, 16384"]
    k(f"s_mov_b32 m0, s{S_M0}","s_nop 0",dma(),f"s_add_u32 m0, s{S_M0}, 32768","s_nop 0",dma())
    k(f"v_mov_b32 v{IDX}, 0xdddddddd","v_bfe_u32 v5, v0, 2, 1","v_cmp_eq_u32 vcc, 0, v5","v_mov_b32 v6, 0x3f803f80","s_nop 0",
      f"v_cndmask_b32 v{SEL}, 0, v6, vcc",f"v_cndmask_b32 v{SEL+1}, 0, v6, vcc",f"v_sub_u32 v{SEL+2}, v6, v{SEL}",f"v_sub_u32 v{SEL+3}, v6, v{SEL}",
      f"s_lshl_b32 s37, s{S_KH}, 14",f"v_add_u32 v5, s37, v{VL}",f"v_mov_b32 v{VC}, v5",f"v_add_u32 v{VN}, 32768, v5",f"s_mov_b32 s{S_CUR}, 0",
      "v_mov_b32 v6, 0xff800000","v_mov_b32 v7, 0xff800000")
    for i in range(40): k(f"v_mov_b32 v{O+i}, 0")
    for i in range(16): k(f"v_mov_b32 v{SB_+48+i}, 0")
    for i in range(16): k(f"v_mov_b32 v{VF+i}, 0")
    k(f"s_mov_b32 s{S_CNT}, s{S_NMAX}","s_waitcnt vmcnt(8)")
    k.label("mx")
    for u in range(2):
        k(f"v_mfma_f32_32x32x16_bf16 {vr(SB_+16*u,16)}, {vr(KF,4)}, {vr(Q+8*u,4)}, 0",f"v_mfma_f32_32x32x16_bf16 {vr(SB_+16*u,16)}, {vr(KF+4,4)}, {vr(Q+8*u+4,4)}, {vr(SB_+16*u,16)}")
    k("s_nop 15")
    for u in range(2):
        for i in range(8): k(f"v_max3_f32 v{6+u}, v{SB_+16*u+2*i}, v{SB_+16*u+2*i+1}, v{6+u}")
    k(f"s_sub_u32 s{S_CNT}, s{S_CNT}, 1",f"s_cmp_eq_u32 s{S_CNT}, 0",f"s_cbranch_scc1 {k.lab('mxd')}","s_add_u32 s38, s38, 4096")
    for j in range(2): k(f"buffer_load_dwordx4 {vr(KF+4*j,4)}, v{VL}, s[12:15], s38 offen offset:{1024*j}")
    k("s_waitcnt vmcnt(0)",f"s_branch {k.lab('mx')}")
    k.label("mxd")
    k(f"v_mov_b32 v{NM}, v6",f"v_mov_b32 v{NM+16}, v7","s_nop 1",f"v_permlane32_swap_b32 v6, v{NM}",f"v_permlane32_swap_b32 v7, v{NM+16}","s_nop 1",
      f"v_max_f32 v6, v6, v{NM}",f"v_max_f32 v7, v7, v{NM+16}")
    for u in range(2):
        for i in range(16): k(f"v_sub_f32 v{NM+16*u+i}, 0, v{6+u}")
    k("s_waitcnt vmcnt(4)","s_barrier"); stamp(k,1)
    def rdK(t):
        a,o=(VC,t*4096) if t<4 else (VN,(t-4)*4096)
        return [f"ds_read_b128 {vr(KF+8*(t%2)+4*j,4)}, v{a} offset:{o+1024*j}" for j in range(2)]
    def rdV(t): return [f"ds_read_b128 {vr(VF+8*(t%2)+4*j,4)}, v{VC} offset:{t*4096+2048+1024*j}" for j in range(2)]
    def qk(n):
        t,u=n//2,n%2; b=SB_+16*(n%4); kf=KF+8*(t%2)
        return [f"v_mfma_f32_32x32x16_bf16 {vr(b,16)}, {vr(kf,4)}, {vr(Q+8*u,4)}, {vr(NM+16*u,16)}",
                f"v_mfma_f32_32x32x16_bf16 {vr(b,16)}, {vr(kf+4,4)}, {vr(Q+8*u+4,4)}, {vr(b,16)}"]
    def pv(n):
        t,u=n//2,n%2; b=SB_+16*(n%4); vf=VF+8*(t%2)
        return [f"v_smfmac_f32_32x32x32_bf16 {vr(O+16*u,16)}, {vr(vf+4*j,4)}, {vr(b+8*j,8)}, v{IDX}" for j in range(2)]
    def sm(n):
        u=n%2; b=SB_+16*(n%4)
        return [f"v_smfmac_f32_16x16x64_bf16 {vr(L+4*u,4)}, {vr(SEL,4)}, {vr(b+8*j,8)}, v{IDX}" for j in range(2)]
    k(rdK(0),rdK(1),"s_waitcnt lgkmcnt(2)",qk(0),qk(1),f"s_mov_b32 s{S_CNT}, 0","s_nop 7","s_nop 1")
    k(".p2align 3"); k.label("loop")
    for n in range(8):
        b=SB_+16*(n%4); e=[f"v_exp_f32 v{b+i}, v{b+i}" for i in range(16)]
        a,p,s=qk(n+2),pv(n-1),sm(n-1)
        rd=rdV(n//2) if n%2==0 else rdK(n//2+2)
        if n==4:
            k("s_waitcnt vmcnt(0)","s_barrier",f"s_cmp_ge_u32 s{S_CNT}, 6",f"s_cbranch_scc1 {k.lab('nodma')}",
              f"s_add_u32 s37, s{S_CUR}, 65536","s_sub_u32 s38, s37, 98304","s_cmp_ge_u32 s37, 98304","s_cselect_b32 s37, s38, s37",f"s_add_u32 m0, s37, s{S_M0}","s_nop 0",dma())
            k.label("nodma")
        k(e[0:2],"s_waitcnt lgkmcnt(0)",a[0],rd,e[2:5],p[0],e[5:7],s[0],e[7:10],a[1],e[10:12],p[1],e[12:15],s[1],e[15])
    k(f"s_add_u32 s{S_CUR}, s{S_CUR}, 32768",f"s_cmp_ge_u32 s{S_CUR}, 98304",f"s_cselect_b32 s{S_CUR}, 0, s{S_CUR}",
      f"s_add_u32 s37, s{S_CUR}, 32768","s_cmp_ge_u32 s37, 98304","s_cselect_b32 s37, 0, s37",
      f"v_mov_b32 v{VC}, v{VN}",f"v_add_u32 v{VN}, s37, v5",
      f"s_add_u32 s{S_CNT}, s{S_CNT}, 1",f"s_cmp_lt_u32 s{S_CNT}, 8",f"s_cbranch_scc1 {k.lab('loop')}")
    k(pv(7),sm(7),"s_waitcnt lgkmcnt(0)","s_barrier"); stamp(k,2)
    k(f"s_mul_i32 s37, s{S_WAVE}, 5120",f"s_xor_b32 s38, s{S_WAVE}, 4","s_mul_i32 s38, s38, 5120",f"v_add_u32 v6, s37, v{VL}",f"v_add_u32 v7, s38, v{VL}","s_nop 7",
      f"s_cmp_eq_u32 s{S_KH}, 0",f"s_cbranch_scc1 {k.lab('kh0')}")
    for j in range(4): k(f"ds_write_b128 v6, {vr(O+4*j,4)} offset:{1024*j}")
    k(f"ds_write_b128 v6, {vr(L,4)} offset:4096")
    k("s_nop 1")
    for i in range(16): k(f"v_mov_b32 v{O+i}, v{O+16+i}")
    k(f"v_mov_b32 v{L}, v{L+4}",f"s_branch {k.lab('khd')}")
    k.label("kh0")
    for j in range(4): k(f"ds_write_b128 v6, {vr(O+16+4*j,4)} offset:{1024*j}")
    k(f"ds_write_b128 v6, {vr(L+4,4)} offset:4096")
    k.label("khd")
    k("v_mov_b32 v1, 0","v_mov_b32 v197, 49152","ds_write_b32 v197, v1","s_waitcnt lgkmcnt(0)","s_barrier")
    for j in range(4): k(f"ds_read_b128 {vr(SB_+4*j,4)}, v7 offset:{1024*j}")
    k(f"ds_read_b128 {vr(SB_+16,4)}, v7 offset:4096","s_waitcnt lgkmcnt(0)",f"v_add_f32 v{L}, v{L}, v{SB_+16}",f"v_rcp_f32 v{L+2}, v{L}")
    for i in range(8): k(f"v_pk_add_f32 {vr(O+2*i,2)}, {vr(O+2*i,2)}, {vr(SB_+2*i,2)}")
    k(f"v_mov_b32 v{L+3}, v{L+2}")
    for i in range(8): k(f"v_pk_mul_f32 {vr(O+2*i,2)}, {vr(O+2*i,2)}, {vr(L+2,2)}")
    k(f"s_cmp_lg_u32 s{S_NMAX}, 1",f"s_cbranch_scc1 {k.lab('store')}")
    for i in range(16): k(f"v_fma_f32 v{L}, v{O+i}, 0, v{L}")
    k(f"v_mov_b32 v6, {f2u(2.0**60)}",f"v_cmp_nlt_f32 vcc, v{L}, v6","s_nop 4","s_cmp_eq_u64 vcc, 0",f"s_cbranch_scc1 {k.lab('ok')}",
      "v_mov_b32 v1, 1","ds_write_b32 v197, v1")
    k.label("ok")
    k("s_waitcnt lgkmcnt(0)","s_barrier","ds_read_b32 v1, v197","s_waitcnt lgkmcnt(0)","v_readfirstlane_b32 s37, v1","s_nop 3","s_cmp_eq_u32 s37, 0",f"s_cbranch_scc1 {k.lab('store')}",
      f"s_mov_b32 s{S_NMAX}, 64","s_barrier",f"s_branch {k.lab('retry')}")
    k.label("store")
    pack(k,SB_,O)
    k(f"s_add_u32 s37, s{S_QT}, s{S_KH}","s_lshl_b32 s37, s37, 16",f"s_lshl_b32 s38, s{S_HEAD}, 11","s_add_u32 s37, s37, s38")
    for j in range(2): k(f"buffer_store_dwordx4 {vr(SB_+4*j,4)}, v{VL}, s[16:19], s37 offen offset:{1024*j}")
    if G.STAMP: k("s_waitcnt vmcnt(0)")
    stamp(k,3)
    k.label("end"); k("s_endpgm")
    return k
```

```python
from lib import *
WS_XN=0x0; WS_QF=0x400000; WS_KV=0x800000; WS_OF=0x1000000; WS_HF=0x1400000; WS_GF=0x1800000; WS_ST=0x2600000; WS_CS=0x2700000
A_X,A_WQKV,A_WO,A_W1,A_B1,A_W2,A_B2,A_OUT,A_DBG,A_WS=0,8,16,32,40,48,56,64,72,80
S_WAVE,S_MI,S_NI,S_SLOT,S_CNT,S_XO,S_WO,S_T,S_T2,S_WM,S_WN=30,31,32,33,34,35,36,37,38,39,40
SX,SW,SO,SA,SB,SC=8,12,16,20,24,44
P_WS,P_W,P_A,P_B=4,6,48,50
STAMP=False
def stamp(k,idx):
    if not STAMP: return
    k(f"s_memtime s[60:61]","s_load_dwordx2 s[62:63], s[0:1], 72","s_waitcnt lgkmcnt(0)",
      "s_cmp_lg_u32 s2, 9",f"s_cbranch_scc1 {k.lab('st%d'%idx)}","v_mov_b32 v254, s60",f"v_mov_b32 v255, {4*idx}","global_store_dword v255, v254, s[62:63]")
    k.label('st%d'%idx)

class Cfg: pass
def gemm(name, c):
    TM,TN,WM,WN,G,NS,KD=c.TM,c.TN,c.WM,c.WN,c.G,c.NS,c.K
    NT=TN*WN; U=4; STG=16384+U*NT*1024; S=KD//64; LW=U+NT
    XTRA=NS*STG
    k=K(name,256,512,NS*STG+c.lds_extra)
    k("s_cmp_ge_u32 s2, 256",f"s_cbranch_scc1 {k.lab('end')}",
      f"s_load_dwordx2 s[{P_WS}:{P_WS+1}], s[0:1], {A_WS}",f"s_load_dwordx2 s[{P_W}:{P_W+1}], s[0:1], {c.warg}")
    if c.aarg is not None: k(f"s_load_dwordx2 s[{P_A}:{P_A+1}], s[0:1], {c.aarg}")
    if c.barg is not None: k(f"s_load_dwordx2 s[{P_B}:{P_B+1}], s[0:1], {c.barg}")
    k("v_lshrrev_b32 v1, 6, v0","v_and_b32 v0, 63, v0",f"s_and_b32 s{S_T}, s2, 7",f"v_readfirstlane_b32 s{S_WAVE}, v1",f"s_lshr_b32 s{S_T2}, s2, 3")
    if c.map=="8x4":
        k(f"s_and_b32 s{S_MI}, s{S_T}, 1",f"s_lshl_b32 s{S_MI}, s{S_MI}, 3",f"s_and_b32 s3, s{S_T2}, 7",f"s_add_u32 s{S_MI}, s{S_MI}, s3",
          f"s_lshr_b32 s{S_NI}, s{S_T}, 1",f"s_lshl_b32 s{S_NI}, s{S_NI}, 2",f"s_lshr_b32 s3, s{S_T2}, 3",f"s_add_u32 s{S_NI}, s{S_NI}, s3")
    else:
        k(f"s_and_b32 s{S_MI}, s{S_T}, 3",f"s_lshl_b32 s{S_MI}, s{S_MI}, 2",f"s_and_b32 s3, s{S_T2}, 3",f"s_add_u32 s{S_MI}, s{S_MI}, s3",
          f"s_lshr_b32 s{S_NI}, s{S_T}, 2",f"s_lshl_b32 s{S_NI}, s{S_NI}, 3",f"s_lshr_b32 s3, s{S_T2}, 2",f"s_add_u32 s{S_NI}, s{S_NI}, s3")
    k(f"s_cmp_lt_u32 s{S_WAVE}, 4",f"s_cbranch_scc1 {k.lab('cons')}")
    k(f"s_sub_u32 s{S_WAVE}, s{S_WAVE}, 4","v_lshlrev_b32 v2, 4, v0",
      "v_lshrrev_b32 v3, 2, v0",f"v_mul_u32_u24 v3, {c.wstride}, v3","v_and_b32 v4, 3, v0","v_lshl_add_u32 v3, v4, 4, v3")
    for nt in range(NT): k(f"v_add_u32 v{8+nt}, {c.ncol(nt)}, v3")
    k(f"s_lshl_b32 s{S_XO}, s{S_MI}, 2",f"s_add_u32 s{S_XO}, s{S_XO}, s{S_WAVE}",f"s_mul_i32 s{S_XO}, s{S_XO}, {KD*64}",
      f"s_mul_i32 s{S_WO}, s{S_WAVE}, {16*c.wstride}",f"s_mul_i32 s{S_T}, s{S_NI}, {c.nstep}",f"s_add_u32 s{S_WO}, s{S_WO}, s{S_T}",
      f"s_lshl_b32 s41, s{S_WAVE}, 12",f"s_mul_i32 s42, s{S_WAVE}, {NT*1024}","s_add_u32 s42, s42, 16384",f"s_mov_b32 s{S_SLOT}, 0",
      "s_waitcnt lgkmcnt(0)",srd(SX,P_WS,c.xoff,2048*KD*2),srd(SW,P_W,0,KD*c.wstride))
    if c.loader_head: c.loader_head(k)
    def issue():
        o=[f"s_add_u32 m0, s{S_SLOT}, s42",f"s_add_u32 s{S_T}, s{S_SLOT}, s41"]
        for nt in range(NT):
            o+=[f"buffer_load_dwordx4 v{8+nt}, s[{SW}:{SW+3}], s{S_WO} offen lds"]
            o+=[f"s_add_u32 m0, m0, 1024" if nt<NT-1 else f"s_mov_b32 m0, s{S_T}", "s_nop 0"]
        for u in range(U): o+=[f"buffer_load_dwordx4 v2, s[{SX}:{SX+3}], s{S_XO} offen offset:{u*1024} lds"]
        o+=[f"s_add_u32 s{S_XO}, s{S_XO}, 4096",f"s_add_u32 s{S_WO}, s{S_WO}, {64*c.wstride}",
            f"s_add_u32 s{S_SLOT}, s{S_SLOT}, {STG}",f"s_cmp_ge_u32 s{S_SLOT}, {NS*STG}",f"s_cselect_b32 s{S_SLOT}, 0, s{S_SLOT}"]
        return o
    k(f"s_mov_b32 s{S_CNT}, {NS-1}"); k.label("lpro"); k(issue(),f"s_sub_u32 s{S_CNT}, s{S_CNT}, 1",f"s_cmp_lg_u32 s{S_CNT}, 0",f"s_cbranch_scc1 {k.lab('lpro')}")
    k(f"s_mov_b32 s{S_CNT}, {S-(NS-1)}"); k.label("lloop")
    k(f"s_waitcnt vmcnt({(NS-2)*LW})","s_barrier",issue(),f"s_sub_u32 s{S_CNT}, s{S_CNT}, 1",f"s_cmp_lg_u32 s{S_CNT}, 0",f"s_cbranch_scc1 {k.lab('lloop')}")
    for j in range(NS-1): k(f"s_waitcnt vmcnt({(NS-2-j)*LW})","s_barrier")
    if c.loader_tail: c.loader_tail(k,XTRA)
    k("s_barrier","s_endpgm")
    k.label("cons")
    ACC=c.acc0; FR=ACC+16*TM*TN; FSZ=4*G*(TM+TN)
    VX,VW,VX0,VW0=2,3,4,5
    assert FR+2*FSZ<=254
    if WN==2: k(f"s_lshr_b32 s{S_WM}, s{S_WAVE}, 1",f"s_and_b32 s{S_WN}, s{S_WAVE}, 1")
    else: k(f"s_mov_b32 s{S_WM}, s{S_WAVE}",f"s_mov_b32 s{S_WN}, 0")
    hs,second=(256,512) if c.kperm else (512,256)
    k(f"s_mul_i32 s{S_T}, s{S_WM}, {TM*4096}",f"v_lshlrev_b32 v{VX0}, 4, v0",f"v_add_u32 v{VX0}, s{S_T}, v{VX0}",
      "v_lshrrev_b32 v6, 5, v0",f"v_mul_u32_u24 v{VW0}, {hs}, v6","v_bfe_u32 v6, v0, 4, 1",f"v_lshl_add_u32 v{VW0}, v6, 5, v{VW0}",
      "v_bfe_u32 v6, v0, 2, 2",f"v_lshl_add_u32 v{VW0}, v6, 6, v{VW0}","v_and_b32 v6, 3, v0",f"v_lshl_add_u32 v{VW0}, v6, 3, v{VW0}",
      f"s_mul_i32 s{S_T}, s{S_WN}, {TN*1024}",f"s_add_u32 s{S_T}, s{S_T}, 16384",f"v_add_u32 v{VW0}, s{S_T}, v{VW0}",
      f"v_mov_b32 v{VX}, v{VX0}",f"v_mov_b32 v{VW}, v{VW0}",f"s_mov_b32 s{S_SLOT}, 0",f"s_mov_b32 s{S_CNT}, {S}","s_waitcnt lgkmcnt(0)")
    stamp(k,0)
    c.prologue(k,ACC,FR)
    def xf(b,g,tm): return FR+b*FSZ+g*4*(TM+TN)+4*tm
    def wf(b,g,tn): return FR+b*FSZ+g*4*(TM+TN)+4*TM+4*tn
    def reads(sub):
        b=sub%2; o=[]
        for g in range(G):
            u=sub*G+g
            for tm in range(TM): o.append((f"ds_read_b128 {vr(xf(b,g,tm),4)}, v{VX} offset:{tm*4096+u*1024}",xf(b,g,tm)))
            for tn in range(TN):
                off=u*NT*1024+tn*1024
                o.append((f"ds_read_b64_tr_b16 {vr(wf(b,g,tn),2)}, v{VW} offset:{off}",wf(b,g,tn)))
                o.append((f"ds_read_b64_tr_b16 {vr(wf(b,g,tn)+2,2)}, v{VW} offset:{off+second}",wf(b,g,tn)))
        return o
    def mfmas(sub):
        b=sub%2; o=[]
        for g in range(G):
            for tn in range(TN):
                for tm in range(TM):
                    a=ACC+16*(tm*TN+tn); x,w=xf(b,g,tm),wf(b,g,tn)
                    A,B=(x,w) if c.swap(tn) else (w,x)
                    o.append((f"v_mfma_f32_32x32x16_bf16 {vr(a,16)}, {vr(A,4)}, {vr(B,4)}, {vr(a,16)}",(x,w)))
        return o
    NSUB=U//G
    k("s_barrier"); stamp(k,1)
    q=[]
    for ins,d in reads(0): k(ins); q.append(d)
    k(".p2align 3"); k.label("cloop")
    done=[0]
    def need(regs):
        idx=max([i for i,d in enumerate(q) if d in regs],default=-1)
        if idx>=done[0]:
            n=min(15,len(q)-1-idx); k(f"s_waitcnt lgkmcnt({n})"); done[0]=len(q)-n
    for sub in range(NSUB):
        M=mfmas(sub); last=sub==NSUB-1; R=reads((sub+1)%NSUB); ng=len(M)-(1 if len(M)>3 else 0); p=0
        for j,(ins,regs) in enumerate(M):
            need(regs); k(ins)
            if last and j==0:
                k(f"s_add_u32 s{S_SLOT}, s{S_SLOT}, {STG}",f"s_cmp_ge_u32 s{S_SLOT}, {NS*STG}",f"s_cselect_b32 s{S_SLOT}, 0, s{S_SLOT}",
                  "s_waitcnt lgkmcnt(0)",f"v_add_u32 v{VX}, s{S_SLOT}, v{VX0}",f"v_add_u32 v{VW}, s{S_SLOT}, v{VW0}","s_barrier"); done[0]=len(q)
            e=min(len(R),-(-(j+1)*len(R)//ng))
            for ins2,d in R[p:e]: k(ins2); q.append(d)
            p=e
    k(f"s_sub_u32 s{S_CNT}, s{S_CNT}, 1",f"s_cmp_lg_u32 s{S_CNT}, 0",f"s_cbranch_scc1 {k.lab('cloop')}")
    k("s_waitcnt lgkmcnt(0)","s_nop 15"); stamp(k,2)
    c.epilogue(k,ACC,FR,XTRA)
    if STAMP: k("s_waitcnt vmcnt(0)")
    stamp(k,3)
    k.label("end"); k("s_endpgm")
    return k
def zero_acc(n):
    def f(k,ACC,FR):
        for i in range(n): k(f"v_mov_b32 v{ACC+i}, 0")
    return f
def pack(k,dst,src,n=16):
    for i in range(n//2): k(f"v_cvt_pk_bf16_f32 v{dst+i}, v{src+2*i}, v{src+2*i+1}")
```

```python
from lib import *
import gemm as G
from gemm import *
import math
def mkcfg(**kw):
    c=Cfg(); c.aarg=None; c.barg=None; c.loader_head=None; c.loader_tail=None; c.lds_extra=0; c.swap=lambda tn:False; c.acc0=8
    c.__dict__.update(kw); return c
def tile_of_wave(k,dst,TM):
    k(f"s_lshl_b32 s{dst}, s{S_MI}, 2",f"s_mul_i32 s3, s{S_WM}, {TM}",f"s_add_u32 s{dst}, s{dst}, s3")
def k_qkv():
    def epi(k,ACC,FR,X):
        k(srd(SO,P_WS,WS_QF,0x400000),srd(SA,P_WS,WS_KV,0x800000))
        tile_of_wave(k,S_T,2)
        k(f"s_lshl_b32 s{S_T2}, s{S_NI}, 1",f"s_add_u32 s{S_T2}, s{S_T2}, s{S_WN}",f"s_lshl_b32 s{S_T2}, s{S_T2}, 6",f"s_add_u32 s{S_T}, s{S_T}, s{S_T2}",
          f"s_lshl_b32 s41, s{S_T}, 11",f"s_lshl_b32 s42, s{S_T}, 12",f"s_mov_b32 s43, {f2u(math.log2(math.e)/math.sqrt(32))}",
          "v_lshlrev_b32 v2, 4, v0",
          "v_and_b32 v3, 0x33, v0","v_bfe_u32 v4, v0, 2, 1","v_lshl_or_b32 v3, v4, 3, v3","v_bfe_u32 v4, v0, 3, 1","v_lshl_or_b32 v3, v4, 2, v3","v_lshlrev_b32 v3, 4, v3")
        for tm in range(2):
            for tn in (1,2,0):
                a=ACC+16*(tm*3+tn); d=FR+8*(tm*3+tn)
                if tn==0:
                    for i in range(16): k(f"v_mul_f32 v{a+i}, s43, v{a+i}")
                pack(k,d,a)
                for hh in range(2):
                    if tn==0: k(f"buffer_store_dwordx4 {vr(d+4*hh,4)}, v2, s[{SO}:{SO+3}], s41 offen offset:{2048*tm+1024*hh}")
                    elif tn==1: k(f"buffer_store_dwordx4 {vr(d+4*hh,4)}, v3, s[{SA}:{SA+3}], s42 offen offset:{1024*hh}")
                    else: k(f"buffer_store_dwordx4 {vr(d+4*hh,4)}, v2, s[{SA}:{SA+3}], s42 offen offset:{2048+1024*hh}")
            k("s_add_u32 s42, s42, 4096")
    c=mkcfg(TM=2,TN=3,WM=2,WN=2,G=1,NS=4,K=1024,warg=A_WQKV,wstride=6144,nstep=128,ncol=lambda nt:(nt%3)*2048+(nt//3)*64,
            xoff=WS_XN,kperm=False,map="8x4",swap=lambda tn:tn==2,prologue=zero_acc(96),epilogue=epi)
    return gemm("qkv_kernel",c)
def unpack_add(k,dst,src,n,add=None):
    for i in range(n):
        k(f"v_lshlrev_b32 v{dst+2*i}, 16, v{src+i}",f"v_and_b32 v{dst+2*i+1}, 0xffff0000, v{src+i}")
def k_oproj():
    def pro(k,ACC,FR):
        k(srd(SA,P_A,0,0x400000)); tile_of_wave(k,S_T,1)
        k(f"s_lshl_b32 s{S_T}, s{S_T}, 16",f"s_lshl_b32 s{S_T2}, s{S_NI}, 7",f"s_add_u32 s{S_T}, s{S_T}, s{S_T2}",
          "v_and_b32 v6, 31, v0","v_lshlrev_b32 v6, 11, v6","v_lshrrev_b32 v7, 5, v0","v_lshl_add_u32 v6, v7, 3, v6")
        for j in range(8): k(f"buffer_load_dwordx2 {vr(200+2*j,2)}, v6, s[{SA}:{SA+3}], s{S_T} offen offset:{16*j}")
        k("s_waitcnt vmcnt(0)"); unpack_add(k,ACC,200,16)
    def epi(k,ACC,FR,X):
        k(srd(SO,P_WS,WS_HF,0x400000),srd(SB,P_WS,WS_ST,16*2048*8)); tile_of_wave(k,S_T,1)
        k(f"s_lshl_b32 s41, s{S_T}, 16",f"s_lshl_b32 s{S_T2}, s{S_NI}, 12",f"s_add_u32 s41, s41, s{S_T2}","v_lshlrev_b32 v2, 4, v0",
          f"s_lshl_b32 s42, s{S_T}, 8",f"s_lshl_b32 s{S_T2}, s{S_NI}, 14",f"s_add_u32 s42, s42, s{S_T2}")
        pack(k,FR,ACC,32)
        for j in range(4): k(f"buffer_store_dwordx4 {vr(FR+4*j,4)}, v2, s[{SO}:{SO+3}], s41 offen offset:{1024*j}")
        k(f"v_pk_add_f32 v[200:201], {vr(ACC,2)}, {vr(ACC+2,2)}",f"v_pk_mul_f32 v[202:203], {vr(ACC,2)}, {vr(ACC,2)}",f"v_pk_fma_f32 v[202:203], {vr(ACC+2,2)}, {vr(ACC+2,2)}, v[202:203]")
        for i in range(2,16): k(f"v_pk_add_f32 v[200:201], v[200:201], {vr(ACC+2*i,2)}",f"v_pk_fma_f32 v[202:203], {vr(ACC+2*i,2)}, {vr(ACC+2*i,2)}, v[202:203]")
        k("v_add_f32 v200, v200, v201","v_add_f32 v201, v202, v203","v_and_b32 v3, 31, v0","v_lshlrev_b32 v3, 3, v3","v_lshrrev_b32 v4, 5, v0","v_lshl_add_u32 v3, v4, 2, v3",
          "v_permlane32_swap_b32 v200, v201","s_nop 1","v_add_f32 v200, v200, v201",
          f"buffer_store_dword v200, v3, s[{SB}:{SB+3}], s42 offen")
    c=mkcfg(TM=1,TN=2,WM=4,WN=1,G=2,NS=6,K=1024,warg=A_WO,aarg=A_X,wstride=2048,nstep=128,ncol=lambda nt:nt*64,
            xoff=WS_OF,kperm=True,map="4x8",prologue=pro,epilogue=epi)
    return gemm("oproj_kernel",c)
def k_ffn1():
    def lhead(k):
        k(srd(SA,P_WS,WS_CS,16*3584*4),srd(SB,P_A,0,3584*2),f"s_lshl_b32 s{S_T}, s{S_WAVE}, 6",f"v_add_u32 v20, s{S_T}, v0",
          f"s_mul_i32 s{S_T}, s{S_NI}, 224",f"v_add_u32 v21, s{S_T}, v20","v_lshlrev_b32 v22, 2, v21","v_lshlrev_b32 v21, 1, v21",
          f"buffer_load_ushort v40, v21, s[{SB}:{SB+3}], 0 offen")
        for p in range(16): k(f"s_mov_b32 s{S_T}, {p*3584*4}",f"buffer_load_dword v{24+p}, v22, s[{SA}:{SA+3}], s{S_T} offen")
    def ltail(k,X):
        for p in range(1,16): k(f"v_add_f32 v24, v24, v{24+p}")
        k("v_lshlrev_b32 v40, 16, v40","v_lshlrev_b32 v20, 2, v20",f"v_add_u32 v20, {X}, v20","ds_write_b32 v20, v24","ds_write_b32 v20, v40 offset:1024","s_waitcnt lgkmcnt(0)")
    def pro(k,ACC,FR):
        k(srd(SB,P_WS,WS_ST,16*2048*8)); tile_of_wave(k,S_T,1)
        k(f"s_lshl_b32 s{S_T}, s{S_T}, 8","v_and_b32 v6, 31, v0","v_lshlrev_b32 v6, 3, v6","v_lshrrev_b32 v7, 5, v0","v_lshl_add_u32 v6, v7, 17, v6")
        for p in range(8): k(f"buffer_load_dwordx2 {vr(200+2*p,2)}, v6, s[{SB}:{SB+3}], s{S_T} offen",f"s_add_u32 s{S_T}, s{S_T}, 16384")
        zero_acc(112)(k,ACC,FR)
    def epi(k,ACC,FR,X):
        k(srd(SO,P_WS,WS_GF,2048*3584*2)); tile_of_wave(k,S_T,1)
        k(f"s_mul_i32 s41, s{S_T}, {224*1024}",f"s_mul_i32 s{S_T2}, s{S_NI}, {14*1024}",f"s_add_u32 s41, s41, s{S_T2}","v_lshlrev_b32 v2, 4, v0",
          "v_lshrrev_b32 v3, 5, v0","v_lshlrev_b32 v3, 4, v3",f"v_add_u32 v3, {X}, v3","s_waitcnt vmcnt(0)")
        def rd(tn):
            b=FR+32*(tn%2)
            return [f"ds_read_b128 {vr(b+4*q,4)}, v3 offset:{tn*128+q*32}" for q in range(4)]+[f"ds_read_b128 {vr(b+16+4*q,4)}, v3 offset:{1024+tn*128+q*32}" for q in range(4)]
        k(rd(0))
        for p in range(1,8): k(f"v_pk_add_f32 v[200:201], v[200:201], {vr(200+2*p,2)}")
        k("v_mov_b32 v202, v200","v_mov_b32 v203, v201","s_nop 1","v_permlane32_swap_b32 v200, v202","v_permlane32_swap_b32 v201, v203","s_nop 1",
          "v_add_f32 v200, v200, v202","v_add_f32 v201, v201, v203",
          f"v_mul_f32 v200, {f2u(-1/1024)}, v200",f"v_mul_f32 v201, {f2u(1/1024)}, v201","v_fma_f32 v201, -v200, v200, v201","v_max_f32 v201, 0, v201",
          f"v_add_f32 v201, {f2u(1e-5)}, v201","v_rsq_f32 v202, v201","v_mov_b32 v201, v200","v_mov_b32 v203, v202")
        a_=-2*0.7978845608028654*math.log2(math.e); b_=a_*0.044715
        k(f"s_mov_b32 s52, {f2u(b_)}",f"s_mov_b32 s53, {f2u(b_)}",f"v_mov_b32 v204, {f2u(a_)}",f"v_mov_b32 v205, {f2u(a_)}")
        T=208
        for tn in range(7):
            if tn<6: k(rd(tn+1),"s_waitcnt lgkmcnt(8)")
            else: k("s_waitcnt lgkmcnt(0)")
            a=ACC+16*tn; b=FR+32*(tn%2); P=lambda r,i:vr(r+2*i,2)
            for i in range(8): k(f"v_pk_fma_f32 {P(a,i)}, {P(b,i)}, v[200:201], {P(a,i)}")
            for i in range(8): k(f"v_pk_fma_f32 {P(a,i)}, {P(a,i)}, v[202:203], {P(b+16,i)}")
            for i in range(8): k(f"v_pk_mul_f32 {P(T,i)}, {P(a,i)}, {P(a,i)}")
            for i in range(8): k(f"v_pk_fma_f32 {P(T,i)}, {P(T,i)}, s[52:53], v[204:205]")
            for i in range(8): k(f"v_pk_mul_f32 {P(T,i)}, {P(T,i)}, {P(a,i)}")
            for i in range(16): k(f"v_exp_f32 v{T+i}, v{T+i}")
            for i in range(8): k(f"v_pk_add_f32 {P(T,i)}, {P(T,i)}, 1.0 op_sel_hi:[1,0]")
            for i in range(16): k(f"v_rcp_f32 v{T+i}, v{T+i}")
            for i in range(8): k(f"v_pk_mul_f32 {P(T,i)}, {P(T,i)}, {P(a,i)}")
            pack(k,a,T)
            for hh in range(2): k(f"buffer_store_dwordx4 {vr(a+4*hh,4)}, v2, s[{SO}:{SO+3}], s41 offen offset:{1024*hh}")
            k("s_add_u32 s41, s41, 2048")
    c=mkcfg(TM=1,TN=7,WM=4,WN=1,G=1,NS=3,K=1024,warg=A_W1,aarg=A_B1,wstride=7168,nstep=448,ncol=lambda nt:nt*64,
            xoff=WS_HF,kperm=True,map="8x4",prologue=pro,epilogue=epi,loader_head=lhead,loader_tail=ltail,lds_extra=2048)
    return gemm("ffn1_kernel",c)
def k_ffn2():
    def pro(k,ACC,FR):
        k(srd(SA,P_WS,WS_HF,0x400000),srd(SB,P_A,0,2048)); tile_of_wave(k,S_T,1)
        k(f"s_lshl_b32 s41, s{S_T}, 16",f"s_lshl_b32 s{S_T2}, s{S_NI}, 12",f"s_add_u32 s41, s41, s{S_T2}","v_lshlrev_b32 v6, 4, v0",
          f"s_lshl_b32 s42, s{S_NI}, 7","v_lshrrev_b32 v7, 5, v0","v_lshlrev_b32 v7, 3, v7")
        for j in range(4): k(f"buffer_load_dwordx4 {vr(200+4*j,4)}, v6, s[{SA}:{SA+3}], s41 offen offset:{1024*j}")
        for j in range(8): k(f"buffer_load_dwordx2 {vr(216+2*j,2)}, v7, s[{SB}:{SB+3}], s42 offen offset:{16*j}")
        k("s_waitcnt vmcnt(0)"); unpack_add(k,ACC,200,16); unpack_add(k,100,216,16)
        for i in range(16): k(f"v_pk_add_f32 {vr(ACC+2*i,2)}, {vr(ACC+2*i,2)}, {vr(100+2*i,2)}")
    def epi(k,ACC,FR,X):
        k(srd(SO,P_B,0,0x400000)); tile_of_wave(k,S_T,1)
        k(f"s_lshl_b32 s{S_T}, s{S_T}, 16",f"s_lshl_b32 s{S_T2}, s{S_NI}, 7",f"s_add_u32 s{S_T}, s{S_T}, s{S_T2}",
          "v_and_b32 v6, 31, v0","v_lshlrev_b32 v6, 11, v6","v_lshrrev_b32 v7, 5, v0","v_lshl_add_u32 v6, v7, 4, v6")
        pack(k,FR,ACC,32); k("s_nop 1")
        for j in range(4):
            d=FR+4*j
            k(f"v_permlane32_swap_b32 v{d}, v{d+2}",f"v_permlane32_swap_b32 v{d+1}, v{d+3}")
        for j in range(4): k(f"buffer_store_dwordx4 {vr(FR+4*j,4)}, v6, s[{SO}:{SO+3}], s{S_T} offen offset:{32*j}")
    c=mkcfg(TM=1,TN=2,WM=4,WN=1,G=2,NS=6,K=3584,warg=A_W2,aarg=A_B2,barg=A_OUT,wstride=2048,nstep=128,ncol=lambda nt:nt*64,
            xoff=WS_GF,kperm=True,map="4x8",prologue=pro,epilogue=epi)
    return gemm("ffn2_kernel",c)
def k_prep():
    k=K("prep_kernel",256,512,8192,nv=96)
    k("s_cmp_ge_u32 s2, 256",f"s_cbranch_scc1 {k.lab('end')}",f"s_load_dwordx2 s[4:5], s[0:1], {A_WS}",f"s_load_dwordx2 s[6:7], s[0:1], {A_X}",f"s_load_dwordx2 s[48:49], s[0:1], {A_W1}",
      "v_lshrrev_b32 v1, 6, v0","v_and_b32 v0, 63, v0","s_nop 0",f"v_readfirstlane_b32 s30, v1","s_waitcnt lgkmcnt(0)","s_cmp_ge_u32 s30, 4",f"s_cbranch_scc1 {k.lab('cs')}")
    k(srd(8,6,0,0x400000),srd(12,4,WS_XN,0x400000),
      "v_and_b32 v2, 7, v0","v_lshrrev_b32 v3, 3, v0","v_lshlrev_b32 v4, 11, v2","v_lshl_add_u32 v4, v3, 4, v4","s_lshl_b32 s31, s2, 14","s_lshl_b32 s32, s30, 9","s_add_u32 s31, s31, s32")
    for i in range(4): k(f"buffer_load_dwordx4 {vr(8+4*i,4)}, v4, s[8:11], s31 offen offset:{128*i}")
    k("s_lshr_b32 s33, s2, 2","s_lshl_b32 s33, s33, 16","s_and_b32 s34, s2, 3","s_lshl_b32 s34, s34, 7","s_add_u32 s33, s33, s34","s_lshl_b32 s34, s30, 14","s_add_u32 s33, s33, s34",
      "v_lshlrev_b32 v5, 9, v3","v_lshl_add_u32 v5, v2, 4, v5","s_waitcnt vmcnt(0)")
    unpack_add(k,32,8,16)
    k("v_pk_add_f32 v[24:25], v[32:33], v[34:35]","v_pk_mul_f32 v[26:27], v[32:33], v[32:33]","v_pk_fma_f32 v[26:27], v[34:35], v[34:35], v[26:27]")
    for i in range(2,16): k(f"v_pk_add_f32 v[24:25], v[24:25], {vr(32+2*i,2)}",f"v_pk_fma_f32 v[26:27], {vr(32+2*i,2)}, {vr(32+2*i,2)}, v[26:27]")
    k("v_add_f32 v24, v24, v25","v_add_f32 v25, v26, v27","s_nop 1","v_add_f32_dpp v24, v24, v24 row_ror:8 row_mask:0xf bank_mask:0xf","v_add_f32_dpp v25, v25, v25 row_ror:8 row_mask:0xf bank_mask:0xf")
    for op in ("v_permlane16_swap_b32","v_permlane32_swap_b32"):
        k("v_mov_b32 v26, v24","v_mov_b32 v27, v25","s_nop 1",f"{op} v24, v26",f"{op} v25, v27","s_nop 1","v_add_f32 v24, v24, v26","v_add_f32 v25, v25, v27")
    k("s_lshl_b32 s34, s30, 6","v_lshlrev_b32 v6, 3, v2","v_add_u32 v7, s34, v6","ds_write_b64 v7, v[24:25]","s_waitcnt lgkmcnt(0)","s_barrier")
    for w in range(4): k(f"ds_read_b64 {vr(8+2*w,2)}, v6 offset:{64*w}")
    k("s_waitcnt lgkmcnt(0)","v_pk_add_f32 v[8:9], v[8:9], v[10:11]","v_pk_add_f32 v[12:13], v[12:13], v[14:15]","v_pk_add_f32 v[24:25], v[8:9], v[12:13]",
      f"v_mul_f32 v24, {f2u(-1/1024)}, v24",f"v_mul_f32 v25, {f2u(1/1024)}, v25","v_fma_f32 v25, -v24, v24, v25","v_max_f32 v25, 0, v25",f"v_add_f32 v25, {f2u(1e-5)}, v25",
      "v_rsq_f32 v26, v25","v_mov_b32 v25, v24","v_mov_b32 v27, v26")
    for i in range(16): k(f"v_pk_add_f32 {vr(32+2*i,2)}, {vr(32+2*i,2)}, v[24:25]")
    for i in range(16): k(f"v_pk_mul_f32 {vr(32+2*i,2)}, {vr(32+2*i,2)}, v[26:27]")
    pack(k,8,32,32)
    for i in range(4): k(f"buffer_store_dwordx4 {vr(8+4*i,4)}, v5, s[12:15], s33 offen","s_add_u32 s33, s33, 4096")
    k("s_endpgm")
    k.label("cs")
    k("s_sub_u32 s30, s30, 4",srd(8,48,0,1024*7168),srd(12,4,WS_CS,16*3584*4),
      "s_lshr_b32 s31, s2, 4","s_and_b32 s32, s2, 15","s_lshl_b32 s33, s31, 2","s_add_u32 s33, s33, s30",f"s_mul_i32 s33, s33, {16*7168}","s_mul_i32 s34, s32, 448","s_add_u32 s33, s33, s34",
      "v_and_b32 v2, 31, v0","v_min_u32 v2, 27, v2","v_lshrrev_b32 v3, 5, v0",f"v_mul_u32_u24 v3, {8*7168}, v3","v_lshl_add_u32 v4, v2, 4, v3")
    for i in range(8): k(f"buffer_load_dwordx4 {vr(8+4*i,4)}, v4, s[8:11], s33 offen","s_add_u32 s33, s33, 7168")
    for i in range(8):
        k(f"s_waitcnt vmcnt({7-i})"); unpack_add(k,48 if i==0 else 56,8+4*i,4)
        if i:
            for j in range(4): k(f"v_pk_add_f32 {vr(48+2*j,2)}, {vr(48+2*j,2)}, {vr(56+2*j,2)}")
    k("s_lshl_b32 s34, s30, 11","v_lshlrev_b32 v5, 5, v0","v_add_u32 v5, s34, v5","ds_write_b128 v5, v[48:51] offset:256","ds_write_b128 v5, v[52:55] offset:272","s_waitcnt lgkmcnt(0)","s_barrier",
      "s_lshl_b32 s34, s30, 6","v_add_u32 v6, s34, v0","v_min_u32 v6, 223, v6","v_lshlrev_b32 v6, 2, v6")
    for j in range(8): k(f"ds_read_b32 v{8+j}, v6 offset:{256+1024*j}")
    k("s_waitcnt lgkmcnt(0)")
    for j in range(1,8): k(f"v_add_f32 v8, v8, v{8+j}")
    k(f"s_mul_i32 s33, s31, {3584*4}","s_mul_i32 s34, s32, 896","s_add_u32 s33, s33, s34","buffer_store_dword v8, v6, s[12:15], s33 offen")
    k.label("end"); k("s_endpgm")
    k.lds=8192+256
    return k
```

```python
class K:
    def __init__(s, name, grid, block, lds, nv=256, ns=102):
        s.name=name; s.grid=grid; s.block=block; s.lds=lds; s.nv=nv; s.ns=ns; s.L=[]; s.pre=name[:-7]; s.ool=[]
    def __call__(s, *lines):
        for l in lines:
            if isinstance(l,(list,tuple)): s(*l)
            else: s.L.append(l)
    def lab(s, n): return f"{s.pre}_{n}"
    def label(s, n): s.L.append(s.lab(n)+":")
    def text(s):
        o=[f".globl {s.name}",".p2align 8",f".type {s.name},@function",f"{s.name}:"]
        return o+[(l if l.endswith(":") or l.startswith(".") else "    "+l) for l in s.L]
    def kd(s):
        return [".p2align 6",f".amdhsa_kernel {s.name}",f"  .amdhsa_next_free_vgpr {s.nv}",f"  .amdhsa_next_free_sgpr {s.ns}",
          f"  .amdhsa_accum_offset {(s.nv+3)//4*4}","  .amdhsa_group_segment_fixed_size 0","  .amdhsa_kernarg_size 88","  .amdhsa_user_sgpr_count 2",
          "  .amdhsa_user_sgpr_kernarg_segment_ptr 1","  .amdhsa_system_sgpr_workgroup_id_x 1","  .amdhsa_float_denorm_mode_32 3",".end_amdhsa_kernel"]
    def hdr(s): return f"; @launch kernel={s.name} grid=({s.grid},1,1) block=({s.block},1,1) lds={s.lds}"
def vr(a,n): return f"v{a}" if n==1 else f"v[{a}:{a+n-1}]"
def sr(a,n): return f"s{a}" if n==1 else f"s[{a}:{a+n-1}]"
def srd(d, base, off, size):
    o=[]
    if off: o+=[f"s_add_u32 s{d}, s{base}, {hex(off)}", f"s_addc_u32 s{d+1}, s{base+1}, 0"]
    else: o+=[f"s_mov_b32 s{d}, s{base}", f"s_mov_b32 s{d+1}, s{base+1}"]
    o+=[f"s_mov_b32 s{d+2}, {hex(size)}", f"s_mov_b32 s{d+3}, 0x20000"]
    return o
def f2u(x):
    import struct
    return hex(struct.unpack("<I",struct.pack("<f",x))[0])
def interleave(main, fill, start=0, per=None):
    out=[]; n=len(main)-start; m=len(fill); k=0
    for j,x in enumerate(main):
        out.append(x)
        if j>=start:
            e = min(m,(j-start+1)*per) if per else (j-start+1)*m//n
            out+=fill[k:e]; k=e
    out+=fill[k:]
    return out
def emit(path, header, kernels):
    o=list(header)+[k.hdr() for k in kernels]+['.amdgcn_target "amdgcn-amd-amdhsa--gfx950"',".text"]
    seen=set()
    for k in kernels:
        if k.name in seen: continue
        seen.add(k.name); o+=k.text()
    o+=['.section .rodata,"a"']
    seen=set()
    for k in kernels:
        if k.name in seen: continue
        seen.add(k.name); o+=k.kd()
    open(path,"w").write("\n".join(o)+"\n")
```

```python
import sys
import gemm as G
if len(sys.argv)>2 and sys.argv[2]=="stamp": G.STAMP=True
from lib import *
from kern import *
from attn import *
NAME="sequential_preLN__softmax_full_mha__dense_activation_gelu__prompt"
hdr=[l.rstrip("\n") for l in open(f"cdna_kernels/{NAME}.s.ref") if l.startswith(";") and "@launch" not in l and "Override" not in l and "grid=ceil" not in l]
ks=[k_prep(),k_qkv(),k_attn(),k_oproj(),k_ffn1(),k_ffn2()]
emit(sys.argv[1] if len(sys.argv)>1 else f"cdna_kernels/{NAME}.s",hdr,ks)
```

```python
from lib import *
from gemm import *
import gemm as G
def k_attn():
    k=K("attn_kernel",256,512,3*32768+16384)
    Q=8; NM=24; SB_=56; O=120; L=152; KF=160; VF=176; SEL=192; IDX=196; VC,VN,VL=2,3,4
    S_HEAD,S_QT,S_KH,S_QG,S_NMAX,S_GO,S_M0,S_CUR,S_NXT=31,32,33,35,36,39,40,41,42
    stamp0(k)
    k("s_cmp_ge_u32 s2, 256",f"s_cbranch_scc1 {k.lab('end')}",f"s_load_dwordx2 s[4:5], s[0:1], {A_WS}",
      f"s_load_dwordx2 s[6:7], s[0:1], {A_WO}",f"s_load_dwordx2 s[48:49], s[0:1], {A_W1}",f"s_load_dwordx2 s[50:51], s[0:1], {A_W2}",
      "v_lshrrev_b32 v1, 6, v0","v_and_b32 v0, 63, v0","s_and_b32 s3, s2, 7",f"v_readfirstlane_b32 s{S_WAVE}, v1","s_lshr_b32 s37, s2, 3",
      f"s_lshl_b32 s{S_HEAD}, s3, 2","s_lshr_b32 s3, s37, 3",f"s_add_u32 s{S_HEAD}, s{S_HEAD}, s3",
      f"s_and_b32 s{S_QG}, s{S_WAVE}, 3",f"s_lshr_b32 s{S_KH}, s{S_WAVE}, 2",
      f"s_and_b32 s{S_QT}, s37, 7",f"s_lshl_b32 s{S_QT}, s{S_QT}, 2",f"s_add_u32 s{S_QT}, s{S_QT}, s{S_QG}",f"s_lshl_b32 s{S_QT}, s{S_QT}, 1",
      f"v_lshlrev_b32 v{VL}, 4, v0",f"s_mov_b32 s{S_NMAX}, 1","s_waitcnt lgkmcnt(0)",
      srd(8,4,WS_QF,0x400000),srd(12,4,WS_KV,0x800000),srd(16,4,WS_OF,0x400000))
    stamp(k,1,True)
    k(f"s_lshl_b32 s37, s{S_HEAD}, 6",f"s_add_u32 s37, s37, s{S_QT}","s_lshl_b32 s37, s37, 11")
    for j in range(4): k(f"buffer_load_dwordx4 {vr(Q+4*j,4)}, v{VL}, s[8:11], s37 offen offset:{1024*j}")
    k.label("retry")
    k(f"s_lshl_b32 s38, s{S_HEAD}, 18")
    for j in range(2): k(f"buffer_load_dwordx4 {vr(KF+4*j,4)}, v{VL}, s[12:15], s38 offen offset:{1024*j}")
    k(f"s_lshl_b32 s{S_GO}, s{S_KH}, 5",f"s_add_u32 s{S_GO}, s{S_GO}, s{S_QG}",f"s_lshl_b32 s{S_GO}, s{S_GO}, 12",f"s_add_u32 s{S_GO}, s{S_GO}, s38",
      f"s_lshl_b32 s{S_M0}, s{S_WAVE}, 12")
    def dma():
        return [f"buffer_load_dwordx4 v{VL}, s[12:15], s{S_GO} offen offset:{1024*j} lds" for j in range(4)]+[f"s_add_u32 s{S_GO}, s{S_GO}, 16384"]
    k(f"s_mov_b32 m0, s{S_M0}","s_nop 0",dma(),f"s_add_u32 m0, s{S_M0}, 32768","s_nop 0",dma())
    SJ_SRC,SJ_STEP,SJ_DST,SJ_DA,SJ_DB,SJ_DT,SJ_RS,SJ_LDS=70,71,72,73,74,75,76,77
    VS,VT1,VT2,WF,CSA,ONE=198,199,200,204,212,220
    k("s_cmp_lt_u32 s2, 112",f"s_cbranch_scc0 {k.lab('sj2')}",
      srd(20,48,0,1024*7168),srd(24,4,WS_W1,1024*7168),
      f"s_mul_i32 s37, s2, 4682","s_lshr_b32 s37, s37, 16","s_mul_i32 s43, s37, 14","s_sub_u32 s43, s2, s43","s_lshl_b32 s43, s43, 3",f"s_add_u32 s43, s43, s{S_WAVE}",
      f"s_mul_i32 s{SJ_SRC}, s37, {128*7168}","s_lshl_b32 s44, s43, 6",f"s_add_u32 s{SJ_SRC}, s{SJ_SRC}, s44",f"s_mov_b32 s{SJ_STEP}, {32*7168}",f"s_mov_b32 s{SJ_RS}, 7168",
      f"s_mul_i32 s78, s37, {3584*4}","s_lshl_b32 s44, s43, 7","s_add_u32 s78, s78, s44",
      "s_mul_i32 s44, s43, 9363","s_lshr_b32 s44, s44, 16","s_mul_i32 s45, s44, 7","s_sub_u32 s45, s43, s45",
      f"s_mul_i32 s{SJ_DST}, s44, {16*28672}",f"s_mul_i32 s44, s37, {2*28672}",f"s_add_u32 s{SJ_DST}, s{SJ_DST}, s44",
      "s_lshl_b32 s44, s45, 1","s_cmp_gt_u32 s45, 3","s_cselect_b32 s46, 1, 0","s_sub_u32 s44, s44, s46","s_lshl_b32 s44, s44, 11",f"s_add_u32 s{SJ_DST}, s{SJ_DST}, s44",
      "s_cmp_eq_u32 s45, 3",f"s_cselect_b32 s{SJ_DT}, 7, 1",f"s_lshl_b32 s{SJ_DT}, s{SJ_DT}, 11",f"s_mov_b32 s{SJ_DA}, 1024",f"s_mov_b32 s{SJ_DB}, {28672-1024}","s_mov_b32 s44, 0",f"s_branch {k.lab('sjd')}")
    k.label("sj2")
    k("s_cmp_lt_u32 s2, 224",f"s_cbranch_scc0 {k.lab('sj3')}",srd(20,50,0,3584*2048),srd(24,4,WS_W2,3584*2048),"s_sub_u32 s37, s2, 112",f"s_mov_b32 s45, {56*8192}","s_mov_b32 s44, 0",f"s_branch {k.lab('sj4')}")
    k.label("sj3")
    k(srd(20,6,0,1024*2048),srd(24,4,WS_WO,1024*2048),"s_sub_u32 s37, s2, 224",f"s_mov_b32 s45, {16*8192}","s_mov_b32 s44, 1")
    k.label("sj4")
    k(f"s_lshl_b32 s{SJ_SRC}, s37, 16",f"s_lshl_b32 s43, s{S_WAVE}, 8",f"s_add_u32 s{SJ_SRC}, s{SJ_SRC}, s43",f"s_mov_b32 s{SJ_STEP}, 64",f"s_mov_b32 s{SJ_RS}, 2048",
      f"s_lshl_b32 s43, s{S_WAVE}, 1",f"s_mul_i32 s{SJ_DST}, s43, s45","s_lshr_b32 s43, s37, 1","s_lshl_b32 s43, s43, 13",f"s_add_u32 s{SJ_DST}, s{SJ_DST}, s43",
      "s_and_b32 s43, s37, 1","s_lshl_b32 s43, s43, 10",f"s_add_u32 s{SJ_DST}, s{SJ_DST}, s43",f"s_mov_b32 s{SJ_DT}, 2048",f"s_mov_b32 s{SJ_DA}, 4096",f"s_sub_u32 s{SJ_DB}, s45, 4096","s_mov_b32 s78, 0")
    k.label("sjd")
    relayout_addr(k,VS,VT1,SJ_RS,None,None)
    k(f"s_lshl_b32 s{SJ_LDS}, s{S_WAVE}, 11",f"s_add_u32 s{SJ_LDS}, s{SJ_LDS}, 98304","s_lshr_b32 s45, 512, s44","s_lshl_b32 s46, 256, s44",
      "v_lshrrev_b32 v7, 5, v0",f"v_lshl_add_u32 v{VT1}, v7, 10, v{VT1}","v_bfe_u32 v7, v0, 4, 1","v_mul_lo_u32 v7, s45, v7",f"v_add3_u32 v{VT1}, v{VT1}, v7, s{SJ_LDS}",f"v_add_u32 v{VT2}, s46, v{VT1}",
      f"s_lshl_b32 s{SJ_RS}, s{SJ_RS}, 4",srd(80,4,WS_CS,8*3584*4))
    for i in range(8): k(f"v_mov_b32 v{CSA+i}, 0")
    for i in range(4): k(f"v_mov_b32 v{ONE+i}, 0x3f803f80")
    def sj_proc():
        o=[]
        for t in range(2): o+=[f"ds_read_b64_tr_b16 {vr(WF+4*t,2)}, v{VT1} offset:{8*t}",f"ds_read_b64_tr_b16 {vr(WF+4*t+2,2)}, v{VT2} offset:{8*t}"]
        o+=[f"s_add_u32 s37, s{SJ_DST}, s{SJ_DT}","s_waitcnt lgkmcnt(0)",f"buffer_store_dwordx4 {vr(WF,4)}, v{VL}, s[24:27], s{SJ_DST} offen{G.STW}",f"buffer_store_dwordx4 {vr(WF+4,4)}, v{VL}, s[24:27], s37 offen{G.STW}"]
        for t in range(2): o+=[f"v_mfma_f32_16x16x32_bf16 {vr(CSA+4*t,4)}, {vr(WF+4*t,4)}, {vr(ONE,4)}, {vr(CSA+4*t,4)}"]
        o+=[f"s_add_u32 s{SJ_DST}, s{SJ_DST}, s{SJ_DA}",f"s_mov_b32 s37, s{SJ_DA}",f"s_mov_b32 s{SJ_DA}, s{SJ_DB}",f"s_mov_b32 s{SJ_DB}, s37"]
        return o
    def sj_load():
        return [f"s_mov_b32 m0, s{SJ_LDS}",f"s_add_u32 s37, s{SJ_SRC}, s{SJ_RS}",f"buffer_load_dwordx4 v{VS}, s[20:23], s{SJ_SRC} offen lds",f"s_add_u32 m0, s{SJ_LDS}, 1024",
                f"s_add_u32 s{SJ_SRC}, s{SJ_SRC}, s{SJ_STEP}",f"buffer_load_dwordx4 v{VS}, s[20:23], s37 offen lds"]
    k(f"v_mov_b32 v{IDX}, 0xdddddddd","v_bfe_u32 v5, v0, 2, 1","v_cmp_eq_u32 vcc, 0, v5","v_mov_b32 v6, 0x3f803f80","s_nop 0",
      f"v_cndmask_b32 v{SEL}, 0, v6, vcc",f"v_cndmask_b32 v{SEL+1}, 0, v6, vcc",f"v_sub_u32 v{SEL+2}, v6, v{SEL}",f"v_sub_u32 v{SEL+3}, v6, v{SEL}",
      f"s_lshl_b32 s37, s{S_KH}, 14",f"v_add_u32 v5, s37, v{VL}",f"v_mov_b32 v{VC}, v5",f"v_add_u32 v{VN}, 32768, v5",f"s_mov_b32 s{S_CUR}, 0",
      "v_mov_b32 v6, 0xff800000","v_mov_b32 v7, 0xff800000")
    for i in range(40): k(f"v_mov_b32 v{O+i}, 0")
    for i in range(16): k(f"v_mov_b32 v{SB_+48+i}, 0")
    for i in range(16): k(f"v_mov_b32 v{VF+i}, 0")
    k(f"s_mov_b32 s{S_CNT}, s{S_NMAX}","s_waitcnt vmcnt(8)")
    k.label("mx")
    for u in range(2):
        k(f"v_mfma_f32_32x32x16_bf16 {vr(SB_+16*u,16)}, {vr(KF,4)}, {vr(Q+8*u,4)}, 0",f"v_mfma_f32_32x32x16_bf16 {vr(SB_+16*u,16)}, {vr(KF+4,4)}, {vr(Q+8*u+4,4)}, {vr(SB_+16*u,16)}")
    k("s_nop 15")
    for u in range(2):
        for i in range(8): k(f"v_max3_f32 v{6+u}, v{SB_+16*u+2*i}, v{SB_+16*u+2*i+1}, v{6+u}")
    k(f"s_sub_u32 s{S_CNT}, s{S_CNT}, 1",f"s_cmp_eq_u32 s{S_CNT}, 0",f"s_cbranch_scc1 {k.lab('mxd')}","s_add_u32 s38, s38, 4096")
    for j in range(2): k(f"buffer_load_dwordx4 {vr(KF+4*j,4)}, v{VL}, s[12:15], s38 offen offset:{1024*j}")
    k("s_waitcnt vmcnt(0)",f"s_branch {k.lab('mx')}")
    k.label("mxd")
    k(f"v_mov_b32 v{NM}, v6",f"v_mov_b32 v{NM+16}, v7","s_nop 1",f"v_permlane32_swap_b32 v6, v{NM}",f"v_permlane32_swap_b32 v7, v{NM+16}","s_nop 1",
      f"v_max_f32 v6, v6, v{NM}",f"v_max_f32 v7, v7, v{NM+16}")
    for u in range(2):
        for i in range(16): k(f"v_sub_f32 v{NM+16*u+i}, 0, v{6+u}")
    k("s_waitcnt vmcnt(4)","s_barrier"); stamp(k,2)
    def rdK(t):
        a,o=(VC,t*4096) if t<4 else (VN,(t-4)*4096)
        return [f"ds_read_b128 {vr(KF+8*(t%2)+4*j,4)}, v{a} offset:{o+1024*j}" for j in range(2)]
    def rdV(t): return [f"ds_read_b128 {vr(VF+8*(t%2)+4*j,4)}, v{VC} offset:{t*4096+2048+1024*j}" for j in range(2)]
    def qk(n):
        t,u=n//2,n%2; b=SB_+16*(n%4); kf=KF+8*(t%2)
        return [f"v_mfma_f32_32x32x16_bf16 {vr(b,16)}, {vr(kf,4)}, {vr(Q+8*u,4)}, {vr(NM+16*u,16)}",
                f"v_mfma_f32_32x32x16_bf16 {vr(b,16)}, {vr(kf+4,4)}, {vr(Q+8*u+4,4)}, {vr(b,16)}"]
    def pv(n):
        t,u=n//2,n%2; b=SB_+16*(n%4); vf=VF+8*(t%2)
        return [f"v_smfmac_f32_32x32x32_bf16 {vr(O+16*u,16)}, {vr(vf+4*j,4)}, {vr(b+8*j,8)}, v{IDX}" for j in range(2)]
    def sm(n):
        u=n%2; b=SB_+16*(n%4)
        return [f"v_smfmac_f32_16x16x64_bf16 {vr(L+4*u,4)}, {vr(SEL,4)}, {vr(b+8*j,8)}, v{IDX}" for j in range(2)]
    k(rdK(0),rdK(1),"s_waitcnt lgkmcnt(2)",qk(0),qk(1),f"s_mov_b32 s{S_CNT}, 0","s_nop 7","s_nop 1")
    k(".p2align 3"); k.label("loop")
    for n in range(8):
        b=SB_+16*(n%4); e=[f"v_exp_f32 v{b+i}, v{b+i}" for i in range(16)]
        a,p,s=qk(n+2),pv(n-1),sm(n-1)
        rd=rdV(n//2) if n%2==0 else rdK(n//2+2)
        if n==4:
            k("s_waitcnt vmcnt(0)","s_barrier",f"s_cmp_ge_u32 s{S_CNT}, 6",f"s_cbranch_scc1 {k.lab('nodma')}",
              f"s_add_u32 s37, s{S_CUR}, 65536","s_sub_u32 s38, s37, 98304","s_cmp_ge_u32 s37, 98304","s_cselect_b32 s37, s38, s37",f"s_add_u32 m0, s37, s{S_M0}","s_nop 0",dma())
            k(f"s_sub_u32 s37, s{S_CNT}, 1","s_cmp_lt_u32 s37, 4",f"s_cbranch_scc0 {k.lab('nosp')}",sj_proc()); k.label("nosp")
            k(f"s_cmp_lt_u32 s{S_CNT}, 4",f"s_cbranch_scc0 {k.lab('nodma')}",sj_load())
            k.label("nodma")
        k(e[0:2],"s_waitcnt lgkmcnt(0)",a[0],rd,e[2:5],p[0],e[5:7],s[0],e[7:10],a[1],e[10:12],p[1],e[12:15],s[1],e[15])
    k(f"s_add_u32 s{S_CUR}, s{S_CUR}, 32768",f"s_cmp_ge_u32 s{S_CUR}, 98304",f"s_cselect_b32 s{S_CUR}, 0, s{S_CUR}",
      f"s_add_u32 s37, s{S_CUR}, 32768","s_cmp_ge_u32 s37, 98304","s_cselect_b32 s37, 0, s37",
      f"v_mov_b32 v{VC}, v{VN}",f"v_add_u32 v{VN}, s37, v5",
      f"s_add_u32 s{S_CNT}, s{S_CNT}, 1",f"s_cmp_lt_u32 s{S_CNT}, 8",f"s_cbranch_scc1 {k.lab('loop')}")
    k(pv(7),sm(7),"s_waitcnt lgkmcnt(0)","s_barrier"); stamp(k,3)
    k(f"s_mul_i32 s37, s{S_WAVE}, 5120",f"s_xor_b32 s38, s{S_WAVE}, 4","s_mul_i32 s38, s38, 5120",f"v_add_u32 v6, s37, v{VL}",f"v_add_u32 v7, s38, v{VL}","s_nop 7",
      f"s_cmp_eq_u32 s{S_KH}, 0",f"s_cbranch_scc1 {k.lab('kh0')}")
    for j in range(4): k(f"ds_write_b128 v6, {vr(O+4*j,4)} offset:{1024*j}")
    k(f"ds_write_b128 v6, {vr(L,4)} offset:4096")
    k("s_nop 1")
    for i in range(16): k(f"v_mov_b32 v{O+i}, v{O+16+i}")
    k(f"v_mov_b32 v{L}, v{L+4}",f"s_branch {k.lab('khd')}")
    k.label("kh0")
    for j in range(4): k(f"ds_write_b128 v6, {vr(O+16+4*j,4)} offset:{1024*j}")
    k(f"ds_write_b128 v6, {vr(L+4,4)} offset:4096")
    k.label("khd")
    k("v_mov_b32 v1, 0","v_mov_b32 v197, 49152","ds_write_b32 v197, v1","s_waitcnt lgkmcnt(0)","s_barrier")
    for j in range(4): k(f"ds_read_b128 {vr(SB_+4*j,4)}, v7 offset:{1024*j}")
    k(f"ds_read_b128 {vr(SB_+16,4)}, v7 offset:4096","s_waitcnt lgkmcnt(0)",f"v_add_f32 v{L}, v{L}, v{SB_+16}",f"v_rcp_f32 v{L+2}, v{L}")
    for i in range(8): k(f"v_pk_add_f32 {vr(O+2*i,2)}, {vr(O+2*i,2)}, {vr(SB_+2*i,2)}")
    k(f"v_mov_b32 v{L+3}, v{L+2}")
    for i in range(8): k(f"v_pk_mul_f32 {vr(O+2*i,2)}, {vr(O+2*i,2)}, {vr(L+2,2)}")
    k(f"s_cmp_lg_u32 s{S_NMAX}, 1",f"s_cbranch_scc1 {k.lab('store')}")
    for i in range(16): k(f"v_fma_f32 v{L}, v{O+i}, 0, v{L}")
    k(f"v_mov_b32 v6, {f2u(2.0**60)}",f"v_cmp_nlt_f32 vcc, v{L}, v6","s_nop 4","s_cmp_eq_u64 vcc, 0",f"s_cbranch_scc1 {k.lab('ok')}",
      "v_mov_b32 v1, 1","ds_write_b32 v197, v1")
    k.label("ok")
    k("s_waitcnt lgkmcnt(0)","s_barrier","ds_read_b32 v1, v197","s_waitcnt lgkmcnt(0)","v_readfirstlane_b32 s37, v1","s_nop 3","s_cmp_eq_u32 s37, 0",f"s_cbranch_scc1 {k.lab('store')}",
      f"s_mov_b32 s{S_NMAX}, 64","s_barrier",f"s_branch {k.lab('retry')}")
    k.label("store")
    pack(k,SB_,O)
    k(f"s_add_u32 s37, s{S_QT}, s{S_KH}","s_lshr_b32 s38, s37, 2","s_lshl_b32 s38, s38, 18","s_and_b32 s37, s37, 3","s_lshl_b32 s37, s37, 12","s_add_u32 s37, s37, s38",
      f"s_lshr_b32 s38, s{S_HEAD}, 1","s_lshl_b32 s38, s38, 14","s_add_u32 s37, s37, s38",f"s_and_b32 s38, s{S_HEAD}, 1","s_lshl_b32 s38, s38, 10","s_add_u32 s37, s37, s38",
      "v_and_b32 v6, 15, v0","v_lshlrev_b32 v6, 4, v6","v_bfe_u32 v7, v0, 4, 1","v_lshl_add_u32 v6, v7, 11, v6","v_lshrrev_b32 v7, 5, v0","v_lshl_add_u32 v6, v7, 8, v6")
    for j in range(2): k(f"buffer_store_dwordx4 {vr(SB_+4*j,4)}, v6, s[16:19], s37 offen offset:{512*j}{G.STF}")
    k("s_cmp_lt_u32 s2, 112",f"s_cbranch_scc0 {k.lab('nocs')}","v_lshrrev_b32 v7, 4, v0","v_lshlrev_b32 v7, 5, v7","s_mov_b32 exec_lo, 0x10001","s_mov_b32 exec_hi, 0x10001",
      f"buffer_store_dwordx4 {vr(CSA,4)}, v7, s[80:83], s78 offen",f"buffer_store_dwordx4 {vr(CSA+4,4)}, v7, s[80:83], s78 offen offset:16")
    k.label("nocs")
    if G.STAMP: k("s_waitcnt vmcnt(0)")
    stamp(k,4)
    k.label("end"); k("s_endpgm")
    return k
```

```python
from lib import *
WS_XN=0x0; WS_QF=0x400000; WS_KV=0x800000; WS_OF=0x1000000; WS_HF=0x1400000; WS_GF=0x1800000; WS_ST=0x2600000; WS_CS=0x2700000
WS_WQ=0x2800000; WS_WO=0x3200000; WS_W1=0x3400000; WS_W2=0x3c00000
STW=''
STF=''
A_X,A_WQKV,A_WO,A_W1,A_B1,A_W2,A_B2,A_OUT,A_DBG,A_WS=0,8,16,32,40,48,56,64,72,80
S_WAVE,S_MI,S_NI,S_SLOT,S_CNT,S_XO,S_WO,S_T,S_T2,S_WM,S_WN=30,31,32,33,34,35,36,37,38,39,40
SX,SW,SO,SA,SB,SC=8,12,16,20,24,44
P_WS,P_W,P_A,P_B=4,6,48,50
STAMP=False
KID={"prep":0,"qkv":1,"attn":2,"oproj":3,"ffn1":4,"ffn2":5}
def stamp0(k):
    if STAMP: k("s_memrealtime s[66:67]","s_memtime s[68:69]")
def stamp(k,idx,pre=False):
    if not STAMP: return
    base=0x2f00000+KID[k.name[:-7]]*65536
    k("s_memtime s[60:61]","s_memrealtime s[64:65]","s_lshl_b32 s62, s2, 7",f"s_add_u32 s62, s62, {base+4*idx}","s_waitcnt lgkmcnt(0)",
      "v_mov_b32 v255, s62","v_mov_b32 v254, s60","v_mov_b32 v253, s64","global_store_dword v255, v254, s[4:5] offset:64","global_store_dword v255, v253, s[4:5]")
    if pre: k("v_mov_b32 v254, s68","v_mov_b32 v253, s66","global_store_dword v255, v254, s[4:5] offset:60","global_store_dword v255, v253, s[4:5] offset:-4")

class Cfg: pass
def wgmap(k,kind):
    if kind=="8x4":
        k(f"s_and_b32 s{S_MI}, s{S_T}, 1",f"s_lshl_b32 s{S_MI}, s{S_MI}, 3",f"s_and_b32 s3, s{S_T2}, 7",f"s_add_u32 s{S_MI}, s{S_MI}, s3",
          f"s_lshr_b32 s{S_NI}, s{S_T}, 1",f"s_lshl_b32 s{S_NI}, s{S_NI}, 2",f"s_lshr_b32 s3, s{S_T2}, 3",f"s_add_u32 s{S_NI}, s{S_NI}, s3")
    else:
        k(f"s_and_b32 s{S_MI}, s{S_T}, 3",f"s_lshl_b32 s{S_MI}, s{S_MI}, 2",f"s_and_b32 s3, s{S_T2}, 3",f"s_add_u32 s{S_MI}, s{S_MI}, s3",
          f"s_lshr_b32 s{S_NI}, s{S_T}, 2",f"s_lshl_b32 s{S_NI}, s{S_NI}, 3",f"s_lshr_b32 s3, s{S_T2}, 2",f"s_add_u32 s{S_NI}, s{S_NI}, s3")
def gemm(name, c):
    TM,TN,WM,WN,NS,KD=c.TM,c.TN,c.WM,c.WN,c.NS,c.K
    NT=TN*WN; WB=NT*2048; STG=16384+WB; S=KD//64; NWL=NT//2; LW=4+NWL
    XTRA=NS*STG
    k=K(name,256,512,NS*STG+c.lds_extra)
    stamp0(k)
    k("s_cmp_ge_u32 s2, 256",f"s_cbranch_scc1 {k.lab('end')}",f"s_load_dwordx2 s[{P_WS}:{P_WS+1}], s[0:1], {A_WS}")
    if c.aarg is not None: k(f"s_load_dwordx2 s[{P_A}:{P_A+1}], s[0:1], {c.aarg}")
    if c.barg is not None: k(f"s_load_dwordx2 s[{P_B}:{P_B+1}], s[0:1], {c.barg}")
    k("v_lshrrev_b32 v1, 6, v0","v_and_b32 v0, 63, v0",f"s_and_b32 s{S_T}, s2, 7",f"v_readfirstlane_b32 s{S_WAVE}, v1",f"s_lshr_b32 s{S_T2}, s2, 3")
    wgmap(k,c.map)
    k("v_lshlrev_b32 v2, 4, v0",f"s_cmp_lt_u32 s{S_WAVE}, 4",f"s_cbranch_scc1 {k.lab('cons')}")
    k(f"s_sub_u32 s{S_WAVE}, s{S_WAVE}, 4",f"s_lshl_b32 s41, s{S_WAVE}, 12",f"s_mul_i32 s42, s{S_WAVE}, {NWL*1024}",
      f"s_mul_i32 s{S_XO}, s{S_MI}, {KD*256}",f"s_add_u32 s{S_XO}, s{S_XO}, s41",
      f"s_mul_i32 s{S_WO}, s{S_NI}, {S*WB}",f"s_add_u32 s{S_WO}, s{S_WO}, s42","s_add_u32 s42, s42, 16384",f"s_mov_b32 s{S_SLOT}, 0",
      "s_waitcnt lgkmcnt(0)",srd(SX,P_WS,c.xoff,2048*KD*2),srd(SW,P_WS,c.woff,16*S*WB))
    if c.loader_head: c.loader_head(k)
    def issue():
        o=[f"s_add_u32 m0, s{S_SLOT}, s42",f"s_add_u32 s{S_T2}, s{S_WO}, 4096"]
        for j in range(NWL):
            if j==4: o+=["s_add_u32 m0, m0, 4096","s_nop 0"]
            o+=[f"buffer_load_dwordx4 v2, s[{SW}:{SW+3}], s{S_WO if j<4 else S_T2} offen offset:{(j%4)*1024} lds"]
        o+=[f"s_add_u32 m0, s{S_SLOT}, s41",f"s_add_u32 s{S_WO}, s{S_WO}, {WB}"]
        for u in range(4): o+=[f"buffer_load_dwordx4 v2, s[{SX}:{SX+3}], s{S_XO} offen offset:{u*1024} lds"]
        o+=[f"s_add_u32 s{S_XO}, s{S_XO}, 16384",f"s_add_u32 s{S_SLOT}, s{S_SLOT}, {STG}",f"s_cmp_ge_u32 s{S_SLOT}, {NS*STG}",f"s_cselect_b32 s{S_SLOT}, 0, s{S_SLOT}"]
        return o
    k(f"s_mov_b32 s{S_CNT}, {NS-1}"); k.label("lpro"); k(issue(),f"s_sub_u32 s{S_CNT}, s{S_CNT}, 1",f"s_cmp_lg_u32 s{S_CNT}, 0",f"s_cbranch_scc1 {k.lab('lpro')}")
    k(f"s_mov_b32 s{S_CNT}, {S-(NS-1)}"); k.label("lloop")
    k(f"s_waitcnt vmcnt({(NS-2)*LW})","s_barrier",issue(),f"s_sub_u32 s{S_CNT}, s{S_CNT}, 1",f"s_cmp_lg_u32 s{S_CNT}, 0",f"s_cbranch_scc1 {k.lab('lloop')}")
    for j in range(NS-1): k(f"s_waitcnt vmcnt({(NS-2-j)*LW})","s_barrier")
    if c.loader_tail: c.loader_tail(k,XTRA)
    k("s_barrier","s_endpgm")
    k.label("cons")
    ACC=c.acc0; FR=ACC+4*TM*TN; FSZ=4*(TM+TN)
    VX,VW,VX0,VW0=6,3,4,5
    assert FR+2*FSZ<=c.vmax,(FR+2*FSZ)
    if WN==2: k(f"s_lshr_b32 s{S_WM}, s{S_WAVE}, 1",f"s_and_b32 s{S_WN}, s{S_WAVE}, 1")
    else: k(f"s_mov_b32 s{S_WM}, s{S_WAVE}",f"s_mov_b32 s{S_WN}, 0")
    k(f"s_mul_i32 s{S_T}, s{S_WM}, {TM*2048}",f"v_add_u32 v{VX0}, s{S_T}, v2",
      f"s_mul_i32 s{S_T}, s{S_WN}, {TN*2048}",f"s_add_u32 s{S_T}, s{S_T}, 16384",f"v_add_u32 v{VW0}, s{S_T}, v2",
      f"v_mov_b32 v{VX}, v{VX0}",f"v_mov_b32 v{VW}, v{VW0}",f"s_mov_b32 s{S_SLOT}, 0",f"s_mov_b32 s{S_CNT}, {S}","s_waitcnt lgkmcnt(0)")
    stamp(k,1,True)
    c.prologue(k,ACC,FR)
    def xf(b,tm): return FR+b*FSZ+4*tm
    def wf(b,tn): return FR+b*FSZ+4*TM+4*tn
    def reads(b):
        X=[(f"ds_read_b128 {vr(xf(b,tm),4)}, v{VX} offset:{tm*2048+b*1024}",xf(b,tm)) for tm in range(TM)]
        W=[(f"ds_read_b128 {vr(wf(b,tn),4)}, v{VW} offset:{tn*2048+b*1024}",wf(b,tn)) for tn in range(TN)]
        return W[:1]+X+W[1:]
    def mfmas(b):
        o=[]
        for tn in range(TN):
            for tm in range(TM):
                a=ACC+4*(tm*TN+tn); x,w=xf(b,tm),wf(b,tn)
                A,B=(x,w) if c.swap(tn) else (w,x)
                o.append((f"v_mfma_f32_16x16x32_bf16 {vr(a,4)}, {vr(A,4)}, {vr(B,4)}, {vr(a,4)}",(x,w)))
        return o
    k("s_barrier"); stamp(k,2)
    q=[]
    for ins,d in reads(0): k(ins); q.append(d)
    k(".p2align 3"); k.label("cloop")
    done=[0]
    def need(regs):
        idx=max([i for i,d in enumerate(q) if d in regs],default=-1)
        if idx>=done[0]:
            n=min(15,len(q)-1-idx); k(f"s_waitcnt lgkmcnt({n})"); done[0]=len(q)-n
    for b in range(2):
        M=mfmas(b); R=reads(1-b); p=0
        bar=c.barpos if b==1 else -1
        first=bar if b==1 else 0
        for j,(ins,regs) in enumerate(M):
            need(regs); k(ins)
            if b==1 and j==0 : k(f"s_add_u32 s{S_SLOT}, s{S_SLOT}, {STG}",f"s_cmp_ge_u32 s{S_SLOT}, {NS*STG}",f"s_cselect_b32 s{S_SLOT}, 0, s{S_SLOT}")
            if j==bar:
                k("s_waitcnt lgkmcnt(0)",f"v_add_u32 v{VX}, s{S_SLOT}, v{VX0}",f"v_add_u32 v{VW}, s{S_SLOT}, v{VW0}","s_barrier"); done[0]=len(q)
            if j>=first and (j-first)%c.rstep==0 and p<len(R):
                k(R[p][0]); q.append(R[p][1]); p+=1
        for ins2,d in R[p:]: k(ins2); q.append(d)
    k(f"s_sub_u32 s{S_CNT}, s{S_CNT}, 1",f"s_cmp_lg_u32 s{S_CNT}, 0",f"s_cbranch_scc1 {k.lab('cloop')}")
    k("s_waitcnt lgkmcnt(0)","s_nop 7"); stamp(k,3)
    c.epilogue(k,ACC,FR,XTRA)
    if STAMP: k("s_waitcnt vmcnt(0)")
    stamp(k,4)
    k.label("end"); k("s_endpgm")
    return k
def zero_acc(n):
    def f(k,ACC,FR):
        for i in range(n): k(f"v_mov_b32 v{ACC+i}, 0")
    return f
def pack(k,dst,src,n=16):
    for i in range(n//2): k(f"v_cvt_pk_bf16_f32 v{dst+i}, v{src+2*i}, v{src+2*i+1}")
def relayout_addr(k,vsrc,vtr,sstride,g1,g2,vt=7):
    k(f"v_lshrrev_b32 v{vsrc}, 2, v0",f"v_mul_lo_u32 v{vsrc}, s{sstride}, v{vsrc}",f"v_and_b32 v{vt}, 3, v0",f"v_lshl_add_u32 v{vsrc}, v{vt}, 4, v{vsrc}",
      f"v_lshlrev_b32 v{vtr}, 4, v{vt}",f"v_bfe_u32 v{vt}, v0, 2, 2",f"v_lshl_add_u32 v{vtr}, v{vt}, 6, v{vtr}")
```

```python
from lib import *
import gemm as G
from gemm import *
import math
def mkcfg(**kw):
    c=Cfg(); c.aarg=None; c.barg=None; c.loader_head=None; c.loader_tail=None; c.lds_extra=0; c.swap=lambda tn:False; c.acc0=8; c.vmax=252; c.barpos=2; c.rstep=2
    c.__dict__.update(kw); return c
def unpack(k,dst,src,n):
    for i in range(n): k(f"v_lshlrev_b32 v{dst+2*i}, 16, v{src+i}",f"v_and_b32 v{dst+2*i+1}, 0xffff0000, v{src+i}")
def rstd_from(k,s,q,out):
    k(f"v_mul_f32 v{s}, {f2u(-1/1024)}, v{s}",f"v_mul_f32 v{q}, {f2u(1/1024)}, v{q}",f"v_fma_f32 v{q}, -v{s}, v{s}, v{q}",f"v_max_f32 v{q}, 0, v{q}",
      f"v_add_f32 v{q}, {f2u(1e-5)}, v{q}",f"v_rsq_f32 v{out}, v{q}")
def k_qkv():
    def epi(k,ACC,FR,X):
        k(srd(SO,P_WS,WS_QF,0x400000),srd(SA,P_WS,WS_KV,0x800000))
        k(f"s_lshl_b32 s{S_T}, s{S_MI}, 2",f"s_lshl_b32 s3, s{S_WM}, 1",f"s_add_u32 s{S_T}, s{S_T}, s3",
          f"s_lshl_b32 s{S_T2}, s{S_NI}, 1",f"s_add_u32 s{S_T2}, s{S_T2}, s{S_WN}",f"s_lshl_b32 s{S_T2}, s{S_T2}, 6",f"s_add_u32 s{S_T}, s{S_T}, s{S_T2}",
          f"s_lshl_b32 s41, s{S_T}, 11",f"s_lshl_b32 s42, s{S_T}, 12","s_add_u32 s43, s42, 4096",
          f"s_mov_b32 s52, {f2u(math.log2(math.e)/math.sqrt(32))}",f"s_mov_b32 s53, s52",
          "v_lshrrev_b32 v4, 4, v0","v_lshlrev_b32 v4, 9, v4","v_and_b32 v5, 15, v0","v_lshl_add_u32 v2, v5, 4, v4",
          "v_bfe_u32 v5, v0, 2, 2","v_lshl_add_u32 v3, v5, 7, v4","v_and_b32 v5, 3, v0","v_lshl_add_u32 v3, v5, 4, v3")
        d=FR
        for tm in range(4):
            a=ACC+24*tm; sk=42+tm//2
            pack(k,d,a+8,8); k(f"buffer_store_dwordx4 {vr(d,4)}, v3, s[{SA}:{SA+3}], s{sk} offen offset:{64*(tm%2)}{G.STF}"); d+=4
            if tm%2:
                for t in range(2):
                    pack(k,d,a-24+16+4*t,4); pack(k,d+2,a+16+4*t,4)
                    k(f"buffer_store_dwordx4 {vr(d,4)}, v3, s[{SA}:{SA+3}], s{sk} offen offset:{2048+64*t}{G.STF}"); d+=4
            for i in range(4): k(f"v_pk_mul_f32 {vr(a+2*i,2)}, {vr(a+2*i,2)}, s[52:53]")
            pack(k,d,a,8); k(f"buffer_store_dwordx4 {vr(d,4)}, v2, s[{SO}:{SO+3}], s41 offen offset:{2048*(tm//2)+256*(tm%2)}{G.STF}"); d+=4
    c=mkcfg(TM=4,TN=6,WM=2,WN=2,NS=4,K=1024,woff=WS_WQ,xoff=WS_XN,map="8x4",swap=lambda tn:tn>=4,prologue=zero_acc(96),epilogue=epi)
    return gemm("qkv_kernel",c)
def rowmajor_addr(k,v,sdst):
    k(f"s_lshl_b32 s{sdst}, s{S_MI}, 2",f"s_add_u32 s{sdst}, s{sdst}, s{S_WM}",f"s_lshl_b32 s{sdst}, s{sdst}, 16",f"s_lshl_b32 s3, s{S_NI}, 7",f"s_add_u32 s{sdst}, s{sdst}, s3",
      f"s_add_u32 s{sdst+1}, s{sdst}, 32768",f"v_and_b32 v{v}, 15, v0",f"v_lshlrev_b32 v{v}, 11, v{v}","v_lshrrev_b32 v1, 4, v0",f"v_lshl_add_u32 v{v}, v1, 4, v{v}")
def hunit_addr(k,sdst):
    k(f"s_lshl_b32 s{sdst}, s{S_MI}, 18",f"s_lshl_b32 s3, s{S_NI}, 14",f"s_add_u32 s{sdst}, s{sdst}, s3",f"s_lshl_b32 s3, s{S_WM}, 12",f"s_add_u32 s{sdst}, s{sdst}, s3")
def k_oproj():
    def pro(k,ACC,FR):
        k(srd(SA,P_A,0,0x400000)); rowmajor_addr(k,7,41)
        for j in range(4): k(f"buffer_load_dwordx4 {vr(100+4*j,4)}, v7, s[{SA}:{SA+3}], s{41+j//2} offen offset:{64*(j%2)}")
        zero_acc(32)(k,ACC,FR)
    def epi(k,ACC,FR,X):
        k(srd(SO,P_WS,WS_HF,0x400000),srd(SB,P_WS,WS_ST,2048*128)); hunit_addr(k,41)
        k("s_waitcnt vmcnt(0)"); unpack(k,120,100,16)
        for i in range(16): k(f"v_pk_add_f32 {vr(ACC+2*i,2)}, {vr(ACC+2*i,2)}, {vr(120+2*i,2)}")
        pack(k,FR,ACC,32)
        for j in range(4): k(f"buffer_store_dwordx4 {vr(FR+4*j,4)}, v2, s[{SO}:{SO+3}], s41 offen offset:{1024*j}{G.STF}")
        for tm in range(2):
            a=ACC+16*tm; s_,q_=100+4*tm,102+4*tm
            k(f"v_pk_add_f32 {vr(s_,2)}, {vr(a,2)}, {vr(a+2,2)}",f"v_pk_mul_f32 {vr(q_,2)}, {vr(a,2)}, {vr(a,2)}",f"v_pk_fma_f32 {vr(q_,2)}, {vr(a+2,2)}, {vr(a+2,2)}, {vr(q_,2)}")
            for i in range(2,8): k(f"v_pk_add_f32 {vr(s_,2)}, {vr(s_,2)}, {vr(a+2*i,2)}",f"v_pk_fma_f32 {vr(q_,2)}, {vr(a+2*i,2)}, {vr(a+2*i,2)}, {vr(q_,2)}")
            k(f"v_add_f32 v{s_}, v{s_}, v{s_+1}",f"v_add_f32 v{q_}, v{q_}, v{q_+1}")
        k(f"s_lshl_b32 s42, s{S_MI}, 2",f"s_add_u32 s42, s42, s{S_WM}","s_lshl_b32 s42, s42, 12",f"s_lshl_b32 s3, s{S_NI}, 3","s_add_u32 s42, s42, s3",
          "v_permlane32_swap_b32 v100, v104","v_permlane32_swap_b32 v102, v106","v_and_b32 v3, 15, v0","v_lshlrev_b32 v3, 7, v3",
          "v_add_f32 v100, v100, v104","v_add_f32 v102, v102, v106","v_lshrrev_b32 v4, 5, v0","v_lshl_add_u32 v3, v4, 11, v3",
          "v_permlane16_swap_b32 v100, v102","v_bfe_u32 v4, v0, 4, 1","v_lshl_add_u32 v3, v4, 2, v3","v_add_f32 v100, v100, v102",
          f"buffer_store_dword v100, v3, s[{SB}:{SB+3}], s42 offen")
    c=mkcfg(TM=2,TN=4,WM=4,WN=1,NS=6,K=1024,aarg=A_X,woff=WS_WO,xoff=WS_OF,map="4x8",prologue=pro,epilogue=epi,barpos=1,rstep=1,vmax=100)
    return gemm("oproj_kernel",c)
def k_ffn1():
    def lhead(k):
        k(srd(SA,P_WS,WS_CS,8*3584*4),srd(SB,P_A,0,3584*2),f"s_lshl_b32 s{S_T}, s{S_WAVE}, 6",f"v_add_u32 v20, s{S_T}, v0",
          f"s_mul_i32 s{S_T}, s{S_NI}, 224",f"v_add_u32 v21, s{S_T}, v20","v_lshlrev_b32 v22, 2, v21","v_lshlrev_b32 v21, 1, v21",
          f"buffer_load_ushort v40, v21, s[{SB}:{SB+3}], 0 offen")
        for p in range(8): k(f"s_mov_b32 s{S_T}, {p*3584*4}",f"buffer_load_dword v{24+p}, v22, s[{SA}:{SA+3}], s{S_T} offen")
    def ltail(k,X):
        for p in range(1,8): k(f"v_add_f32 v24, v24, v{24+p}")
        k("v_lshlrev_b32 v40, 16, v40","v_lshrrev_b32 v21, 5, v20","v_bfe_u32 v22, v20, 2, 1","v_lshl_add_u32 v25, v21, 1, v22",
          "v_cmp_lt_u32 vcc, 3, v21","v_subrev_u32 v26, 1, v25","v_mul_u32_u24 v27, 7, v22","v_cndmask_b32 v25, v25, v26, vcc","v_cmp_eq_u32 vcc, 3, v21","v_add_u32 v27, 6, v27","s_nop 0","v_cndmask_b32 v25, v25, v27, vcc",
          "v_cmp_eq_u32 vcc, 7, v21","v_mov_b32 v27, 15","s_nop 0","v_cndmask_b32 v25, v25, v27, vcc",
          "v_lshlrev_b32 v25, 6, v25","v_bfe_u32 v26, v20, 3, 2","v_lshl_add_u32 v25, v26, 4, v25","v_and_b32 v26, 3, v20","v_lshl_add_u32 v25, v26, 2, v25",
          f"v_add_u32 v25, {X}, v25","ds_write_b32 v25, v24","ds_write_b32 v25, v40 offset:1024","s_waitcnt lgkmcnt(0)")
    ST=208
    def pro(k,ACC,FR):
        k(srd(SB,P_WS,WS_ST,2048*128),f"s_lshl_b32 s{S_T}, s{S_MI}, 1",f"s_add_u32 s{S_T}, s{S_T}, s{S_WM}",f"s_lshl_b32 s{S_T}, s{S_T}, 13",
          "v_and_b32 v7, 15, v0","v_lshlrev_b32 v7, 7, v7","v_lshrrev_b32 v1, 4, v0","v_lshl_add_u32 v7, v1, 5, v7")
        for tm in range(4):
            if tm==2: k(f"s_add_u32 s{S_T}, s{S_T}, 4096")
            for j in range(2): k(f"buffer_load_dwordx4 {vr(ST+8*tm+4*j,4)}, v7, s[{SB}:{SB+3}], s{S_T} offen offset:{2048*(tm%2)+16*j}")
        zero_acc(112)(k,ACC,FR)
    def epi(k,ACC,FR,X):
        k(srd(SO,P_WS,WS_GF,2048*3584*2))
        CSR=FR; BR=FR+28; T=FR+56
        k(f"s_mul_i32 s3, s{S_WN}, 448",f"s_add_u32 s3, s3, {X}","v_lshrrev_b32 v3, 4, v0","v_lshlrev_b32 v3, 4, v3","v_add_u32 v3, s3, v3")
        for tn in range(7): k(f"ds_read_b128 {vr(CSR+4*tn,4)}, v3 offset:{64*tn}",f"ds_read_b128 {vr(BR+4*tn,4)}, v3 offset:{1024+64*tn}")
        k(f"s_mul_i32 s41, s{S_MI}, {3584*256}",f"s_lshl_b32 s3, s{S_WM}, 13","s_add_u32 s41, s41, s3",f"s_mul_i32 s42, s{S_NI}, 7",f"s_lshl_b32 s43, s{S_WN}, 2")
        for p in range(4):
            if p<3: k(f"s_add_u32 s3, s42, s43",f"s_add_u32 s3, s3, {p}")
            else: k("s_add_u32 s3, s42, 3")
            k(f"s_lshr_b32 s{54+p}, s3, 1",f"s_lshl_b32 s{54+p}, s{54+p}, 14","s_and_b32 s3, s3, 1","s_lshl_b32 s3, s3, 10",f"s_add_u32 s{54+p}, s{54+p}, s3",f"s_add_u32 s{54+p}, s{54+p}, s41")
        k(f"s_lshl_b32 s3, s{S_WN}, 3","s_add_u32 s57, s57, s3","v_add_u32 v7, 4096, v2","s_waitcnt vmcnt(0)")
        for tm in range(4):
            r=ST+8*tm
            k(f"v_pk_add_f32 {vr(r,2)}, {vr(r,2)}, {vr(r+2,2)}",f"v_pk_add_f32 {vr(r+4,2)}, {vr(r+4,2)}, {vr(r+6,2)}",f"v_pk_add_f32 {vr(r,2)}, {vr(r,2)}, {vr(r+4,2)}")
        for op in ("v_permlane16_swap_b32","v_permlane32_swap_b32"):
            for tm in range(4): r=ST+8*tm; k(f"v_mov_b32 v{r+2}, v{r}",f"v_mov_b32 v{r+3}, v{r+1}")
            k("s_nop 1")
            for tm in range(4): r=ST+8*tm; k(f"{op} v{r}, v{r+2}",f"{op} v{r+1}, v{r+3}")
            k("s_nop 1")
            for tm in range(4): r=ST+8*tm; k(f"v_pk_add_f32 {vr(r,2)}, {vr(r,2)}, {vr(r+2,2)}")
        for tm in range(4): r=ST+8*tm; rstd_from(k,r,r+1,r+2); k(f"v_mov_b32 v{r+1}, v{r}",f"v_mov_b32 v{r+3}, v{r+2}")
        a_=-2*0.7978845608028654*math.log2(math.e); b_=a_*0.044715
        k(f"s_mov_b32 s52, {f2u(b_)}",f"s_mov_b32 s53, {f2u(b_)}",f"v_mov_b32 v4, {f2u(a_)}",f"v_mov_b32 v5, {f2u(a_)}","s_waitcnt lgkmcnt(0)")
        P=lambda r,i:vr(r+2*i,2)
        for tm in range(4):
            a=ACC+28*tm; r=ST+8*tm
            for i in range(14): k(f"v_pk_fma_f32 {P(a,i)}, {P(CSR,i)}, {vr(r,2)}, {P(a,i)}")
            for i in range(14): k(f"v_pk_fma_f32 {P(a,i)}, {P(a,i)}, {vr(r+2,2)}, {P(BR,i)}")
            for i in range(14): k(f"v_pk_mul_f32 {P(T,i)}, {P(a,i)}, {P(a,i)}")
            for i in range(14): k(f"v_pk_fma_f32 {P(T,i)}, {P(T,i)}, s[52:53], v[4:5]")
            for i in range(14): k(f"v_pk_mul_f32 {P(T,i)}, {P(T,i)}, {P(a,i)}")
            for i in range(28): k(f"v_exp_f32 v{T+i}, v{T+i}")
            for i in range(14): k(f"v_pk_add_f32 {P(T,i)}, {P(T,i)}, 1.0 op_sel_hi:[1,0]")
            for i in range(28): k(f"v_rcp_f32 v{T+i}, v{T+i}")
            for i in range(14): k(f"v_pk_mul_f32 {P(T,i)}, {P(T,i)}, {P(a,i)}")
            pack(k,a,T,28)
            va=2 if tm<2 else 7
            for p in range(3): k(f"buffer_store_dwordx4 {vr(a+4*p,4)}, v{va}, s[{SO}:{SO+3}], s{54+p} offen offset:{2048*(tm%2)}{G.STF}")
            k(f"buffer_store_dwordx2 {vr(a+12,2)}, v{va}, s[{SO}:{SO+3}], s57 offen offset:{2048*(tm%2)}{G.STF}")
    c=mkcfg(TM=4,TN=7,WM=2,WN=2,NS=3,K=1024,aarg=A_B1,woff=WS_W1,xoff=WS_HF,map="8x4",prologue=pro,epilogue=epi,loader_head=lhead,loader_tail=ltail,lds_extra=2048,vmax=208)
    return gemm("ffn1_kernel",c)
def k_ffn2():
    def pro(k,ACC,FR):
        k(srd(SA,P_WS,WS_HF,0x400000),srd(SB,P_A,0,2048)); hunit_addr(k,41)
        k(f"s_lshl_b32 s42, s{S_NI}, 7","v_lshrrev_b32 v7, 4, v0","v_lshlrev_b32 v7, 4, v7")
        for j in range(4): k(f"buffer_load_dwordx4 {vr(100+4*j,4)}, v2, s[{SA}:{SA+3}], s41 offen offset:{1024*j}")
        for j in range(2): k(f"buffer_load_dwordx4 {vr(116+4*j,4)}, v7, s[{SB}:{SB+3}], s42 offen offset:{64*j}")
        zero_acc(32)(k,ACC,FR)
    def epi(k,ACC,FR,X):
        k(srd(SO,P_B,0,0x400000)); rowmajor_addr(k,7,41)
        k("s_waitcnt vmcnt(0)"); unpack(k,130,100,24)
        for i in range(16): k(f"v_pk_add_f32 {vr(ACC+2*i,2)}, {vr(ACC+2*i,2)}, {vr(162+2*(i%8),2)}")
        for i in range(16): k(f"v_pk_add_f32 {vr(ACC+2*i,2)}, {vr(ACC+2*i,2)}, {vr(130+2*i,2)}")
        pack(k,FR,ACC,32)
        for j in range(4): k(f"buffer_store_dwordx4 {vr(FR+4*j,4)}, v7, s[{SO}:{SO+3}], s{41+j//2} offen offset:{64*(j%2)}")
    c=mkcfg(TM=2,TN=4,WM=4,WN=1,NS=6,K=3584,aarg=A_B2,barg=A_OUT,woff=WS_W2,xoff=WS_GF,map="4x8",prologue=pro,epilogue=epi,barpos=1,rstep=1,vmax=100)
    return gemm("ffn2_kernel",c)
def k_prep():
    k=K("prep_kernel",256,512,256+4*6144,nv=256 if G.STAMP else 64)
    stamp0(k)
    k("s_cmp_ge_u32 s2, 256",f"s_cbranch_scc1 {k.lab('end')}",f"s_load_dwordx2 s[4:5], s[0:1], {A_WS}",f"s_load_dwordx4 s[48:51], s[0:1], {A_X}",
      "v_lshrrev_b32 v1, 6, v0","v_and_b32 v0, 63, v0","s_nop 0",f"v_readfirstlane_b32 s30, v1","s_nop 1","s_cmp_ge_u32 s30, 4",f"s_cbranch_scc1 {k.lab('w')}")
    k("v_and_b32 v2, 7, v0","v_lshrrev_b32 v3, 3, v0","v_lshlrev_b32 v4, 11, v2","v_lshl_add_u32 v4, v3, 4, v4","s_lshl_b32 s31, s2, 14","s_lshl_b32 s32, s30, 9","s_add_u32 s31, s31, s32",
      "s_waitcnt lgkmcnt(0)",srd(8,48,0,0x400000))
    for i in range(4): k(f"buffer_load_dwordx4 {vr(8+4*i,4)}, v4, s[8:11], s31 offen offset:{128*i}")
    stamp(k,1,True)
    k(srd(12,4,WS_XN,0x400000),"s_lshr_b32 s33, s2, 4","s_lshl_b32 s33, s33, 18","s_bfe_u32 s34, s2, 0x30001","s_lshl_b32 s34, s34, 11","s_add_u32 s33, s33, s34",
      "s_and_b32 s34, s2, 1","s_lshl_b32 s34, s34, 7","s_add_u32 s33, s33, s34","s_lshl_b32 s34, s30, 16","s_add_u32 s33, s33, s34",
      "v_lshlrev_b32 v5, 8, v3","v_lshl_add_u32 v5, v2, 4, v5","s_waitcnt vmcnt(0)")
    stamp(k,2)
    unpack(k,32,8,16)
    k("v_pk_add_f32 v[24:25], v[32:33], v[34:35]","v_pk_mul_f32 v[26:27], v[32:33], v[32:33]","v_pk_fma_f32 v[26:27], v[34:35], v[34:35], v[26:27]")
    for i in range(2,16): k(f"v_pk_add_f32 v[24:25], v[24:25], {vr(32+2*i,2)}",f"v_pk_fma_f32 v[26:27], {vr(32+2*i,2)}, {vr(32+2*i,2)}, v[26:27]")
    k("v_add_f32 v24, v24, v25","v_add_f32 v25, v26, v27","s_nop 1","v_add_f32_dpp v24, v24, v24 row_ror:8 row_mask:0xf bank_mask:0xf","v_add_f32_dpp v25, v25, v25 row_ror:8 row_mask:0xf bank_mask:0xf")
    for op in ("v_permlane16_swap_b32","v_permlane32_swap_b32"):
        k("v_mov_b32 v26, v24","v_mov_b32 v27, v25","s_nop 1",f"{op} v24, v26",f"{op} v25, v27","s_nop 1","v_add_f32 v24, v24, v26","v_add_f32 v25, v25, v27")
    k("s_lshl_b32 s34, s30, 6","v_lshlrev_b32 v6, 3, v2","v_add_u32 v7, s34, v6","ds_write_b64 v7, v[24:25]","s_waitcnt lgkmcnt(0)","s_barrier")
    for w in range(4): k(f"ds_read_b64 {vr(8+2*w,2)}, v6 offset:{64*w}")
    k("s_waitcnt lgkmcnt(0)","v_pk_add_f32 v[8:9], v[8:9], v[10:11]","v_pk_add_f32 v[12:13], v[12:13], v[14:15]","v_pk_add_f32 v[24:25], v[8:9], v[12:13]")
    rstd_from(k,24,25,26); k("v_mov_b32 v25, v24","v_mov_b32 v27, v26")
    for i in range(16): k(f"v_pk_add_f32 {vr(32+2*i,2)}, {vr(32+2*i,2)}, v[24:25]")
    for i in range(16): k(f"v_pk_mul_f32 {vr(32+2*i,2)}, {vr(32+2*i,2)}, v[26:27]")
    pack(k,8,32,32)
    for i in range(4): k(f"buffer_store_dwordx4 {vr(8+4*i,4)}, v5, s[12:15], s33 offen{G.STF}","s_add_u32 s33, s33, 16384")
    stamp(k,3)
    if G.STAMP: k("s_waitcnt vmcnt(0)")
    stamp(k,4)
    k("s_endpgm")
    k.label("w")
    k("s_sub_u32 s30, s30, 4","s_mov_b32 s35, 6144"); relayout_addr(k,2,3,35,None,None)
    k("v_lshrrev_b32 v7, 4, v0","v_lshl_add_u32 v3, v7, 9, v3","s_mul_i32 s36, s30, 6144","s_add_u32 s36, s36, 256","v_add_u32 v3, s36, v3","v_lshlrev_b32 v4, 4, v0",
      "s_lshr_b32 s31, s2, 3","s_and_b32 s32, s2, 7","s_mul_i32 s32, s32, 12","s_mul_i32 s33, s30, 3","s_add_u32 s32, s32, s33",
      f"s_mul_i32 s33, s31, {32*6144}","s_lshl_b32 s34, s32, 6","s_add_u32 s33, s33, s34",f"s_add_u32 s34, s33, {16*6144}",
      "s_waitcnt lgkmcnt(0)",srd(8,50,0,1024*6144),srd(12,4,WS_WQ,1024*6144))
    for it in range(3):
        k(f"s_add_u32 m0, s36, {2048*it}","s_nop 0","buffer_load_dwordx4 v2, s[8:11], s33 offen lds",f"s_add_u32 m0, s36, {2048*it+1024}","s_add_u32 s33, s33, 64",
          "buffer_load_dwordx4 v2, s[8:11], s34 offen lds","s_add_u32 s34, s34, 64")
    k("s_barrier","s_lshr_b32 s37, s31, 1","s_mul_i32 s37, s37, 24576","s_and_b32 s31, s31, 1","s_lshl_b32 s31, s31, 10","s_add_u32 s37, s37, s31")
    for it in range(3):
        k(f"s_waitcnt vmcnt({4 if it else 4})" if it==0 else f"s_waitcnt vmcnt({4})")
        for t in range(2):
            k(f"ds_read_b64_tr_b16 {vr(8+8*it+4*t,2)}, v3 offset:{2048*it+8*t}",f"ds_read_b64_tr_b16 {vr(10+8*it+4*t,2)}, v3 offset:{2048*it+8*t+256}")
        k("s_lshr_b32 s39, s32, 5","s_bfe_u32 s40, s32, 0x40001",f"s_mul_i32 s40, s40, {16*24576}","s_and_b32 s41, s32, 1","s_mul_i32 s41, s41, 3","s_add_u32 s39, s39, s41","s_lshl_b32 s39, s39, 12",
          "s_add_u32 s39, s39, s40","s_add_u32 s39, s39, s37","s_add_u32 s32, s32, 1","s_waitcnt lgkmcnt(0)")
        for t in range(2): k(f"buffer_store_dwordx4 {vr(8+8*it+4*t,4)}, v4, s[12:15], s39 offen offset:{2048*t}{G.STF}")
    k.label("end"); k("s_endpgm")
    return k
```

```python
import sys
import gemm as G
for a in sys.argv[2:]:
    if a=="stamp": G.STAMP=True
    elif "=" in a:
        n,v=a.split("="); setattr(G,n,eval(v))
from lib import *
from kern import *
from attn import *
NAME="sequential_preLN__softmax_full_mha__dense_activation_gelu__prompt"
hdr=[l.rstrip("\n") for l in open(f"cdna_kernels/{NAME}.s.ref") if l.startswith(";") and "@launch" not in l and "Override" not in l and "grid=ceil" not in l]
ks=[k_prep(),k_qkv(),k_attn(),k_oproj(),k_ffn1(),k_ffn2()]
emit(sys.argv[1] if len(sys.argv)>1 else f"cdna_kernels/{NAME}.s",hdr,ks)
```

```python
from lib import *
from gemm import *
import gemm as G
def k_attn():
    k=K("attn_kernel",256,512,163840)
    Q=8; NM=24; SB_=56; O=120; L=152; KF=160; VF=176; SEL=192; IDX=196; VC,VN,VL,VP=2,3,4,201
    S_HEAD,S_QT,S_KH,S_QG,S_NMAX,S_GO,S_M0,S_CUR,S_NXT=31,32,33,35,36,39,40,41,42
    stamp0(k)
    k("s_cmp_ge_u32 s2, 256",f"s_cbranch_scc1 {k.lab('end')}",f"s_load_dwordx2 s[4:5], s[0:1], {A_WS}",
      f"s_load_dwordx2 s[6:7], s[0:1], {A_WO}",f"s_load_dwordx2 s[48:49], s[0:1], {A_W1}",f"s_load_dwordx2 s[50:51], s[0:1], {A_W2}",
      "v_lshrrev_b32 v1, 6, v0","v_and_b32 v0, 63, v0","s_and_b32 s3, s2, 7",f"v_readfirstlane_b32 s{S_WAVE}, v1","s_lshr_b32 s37, s2, 3",
      f"s_lshl_b32 s{S_HEAD}, s3, 2","s_lshr_b32 s3, s37, 3",f"s_add_u32 s{S_HEAD}, s{S_HEAD}, s3",
      f"s_and_b32 s{S_QG}, s{S_WAVE}, 3",f"s_lshr_b32 s{S_KH}, s{S_WAVE}, 2",
      f"s_and_b32 s{S_QT}, s37, 7",f"s_lshl_b32 s{S_QT}, s{S_QT}, 2",f"s_add_u32 s{S_QT}, s{S_QT}, s{S_QG}",f"s_lshl_b32 s{S_QT}, s{S_QT}, 1",
      f"v_lshlrev_b32 v{VL}, 4, v0",
      f"v_and_b32 v{VP}, 0x23, v0","v_bfe_u32 v5, v0, 2, 1",f"v_lshl_or_b32 v{VP}, v5, 4, v{VP}","v_bfe_u32 v5, v0, 3, 2",f"v_lshl_or_b32 v{VP}, v5, 2, v{VP}",f"v_lshlrev_b32 v{VP}, 4, v{VP}",f"s_mov_b32 s{S_NMAX}, 1","s_waitcnt lgkmcnt(0)",
      srd(8,4,WS_QF,0x400000),srd(12,4,WS_KV,0x800000),srd(16,4,WS_OF,0x400000))
    stamp(k,1,True)
    k(f"s_lshl_b32 s37, s{S_HEAD}, 6",f"s_add_u32 s37, s37, s{S_QT}","s_lshl_b32 s37, s37, 11")
    for j in range(4): k(f"buffer_load_dwordx4 {vr(Q+4*j,4)}, v{VL}, s[8:11], s37 offen offset:{1024*j}")
    k.label("retry")
    k(f"s_lshl_b32 s38, s{S_HEAD}, 18")
    for j in range(2): k(f"buffer_load_dwordx4 {vr(KF+4*j,4)}, v{VL}, s[12:15], s38 offen offset:{1024*j}")
    k(f"s_lshl_b32 s{S_GO}, s{S_KH}, 5",f"s_add_u32 s{S_GO}, s{S_GO}, s{S_QG}",f"s_lshl_b32 s{S_GO}, s{S_GO}, 12",f"s_add_u32 s{S_GO}, s{S_GO}, s38",
      f"s_lshl_b32 s{S_M0}, s{S_WAVE}, 12")
    def dma():
        return [f"buffer_load_dwordx4 v{VL}, s[12:15], s{S_GO} offen offset:{1024*j} lds" for j in range(4)]+[f"s_add_u32 s{S_GO}, s{S_GO}, 16384"]
    k(f"s_mov_b32 m0, s{S_M0}","s_nop 0",dma(),f"s_add_u32 m0, s{S_M0}, 32768","s_nop 0",dma())
    SJ_SRC,SJ_STEP,SJ_DST,SJ_DA,SJ_DB,SJ_DT,SJ_RS,SJ_LDS=70,71,72,73,74,75,76,77
    VS,VT1,VT2,WF,CSA,ONE=198,199,200,204,212,220
    k("s_cmp_lt_u32 s2, 112",f"s_cbranch_scc0 {k.lab('sj2')}",
      srd(20,48,0,1024*7168),srd(24,4,WS_W1,1024*7168),
      f"s_mul_i32 s37, s2, 2341","s_lshr_b32 s37, s37, 16","s_mul_i32 s43, s37, 28","s_sub_u32 s43, s2, s43","s_lshl_b32 s43, s43, 2",f"s_add_u32 s43, s43, s{S_QG}",
      f"s_mul_i32 s{SJ_SRC}, s37, {256*7168}","s_lshl_b32 s44, s43, 6",f"s_add_u32 s{SJ_SRC}, s{SJ_SRC}, s44",f"s_mov_b32 s{SJ_STEP}, {32*7168}",f"s_mov_b32 s{SJ_RS}, 7168",
      f"s_mul_i32 s78, s37, {3584*4}","s_lshl_b32 s44, s43, 7","s_add_u32 s78, s78, s44",
      "s_mul_i32 s44, s43, 9363","s_lshr_b32 s44, s44, 16","s_mul_i32 s45, s44, 7","s_sub_u32 s45, s43, s45",
      f"s_mul_i32 s{SJ_DST}, s44, {16*28672}",f"s_mul_i32 s44, s37, {4*28672}",f"s_add_u32 s{SJ_DST}, s{SJ_DST}, s44",
      "s_lshl_b32 s44, s45, 1","s_cmp_gt_u32 s45, 3","s_cselect_b32 s46, 1, 0","s_sub_u32 s44, s44, s46","s_lshl_b32 s44, s44, 11",f"s_add_u32 s{SJ_DST}, s{SJ_DST}, s44",
      "s_cmp_eq_u32 s45, 3",f"s_cselect_b32 s{SJ_DT}, 7, 1","s_cselect_b32 s47, 1, 0",f"s_lshl_b32 s{SJ_DT}, s{SJ_DT}, 11",f"s_mov_b32 s{SJ_DA}, 1024",f"s_mov_b32 s{SJ_DB}, {28672-1024}","s_mov_b32 s44, 0",f"s_branch {k.lab('sjd')}")
    k.label("sj2")
    k("s_cmp_lt_u32 s2, 224",f"s_cbranch_scc0 {k.lab('sj3')}",srd(20,50,0,3584*2048),srd(24,4,WS_W2,3584*2048),"s_sub_u32 s37, s2, 112",f"s_mov_b32 s45, {56*8192}","s_mov_b32 s44, 0",f"s_branch {k.lab('sj4')}")
    k.label("sj3")
    k(srd(20,6,0,1024*2048),srd(24,4,WS_WO,1024*2048),"s_sub_u32 s37, s2, 224",f"s_mov_b32 s45, {16*8192}","s_mov_b32 s44, 1")
    k.label("sj4")
    k(f"s_lshl_b32 s{SJ_SRC}, s37, 16",f"s_lshl_b32 s43, s{S_QG}, 9",f"s_add_u32 s{SJ_SRC}, s{SJ_SRC}, s43",f"s_mov_b32 s{SJ_STEP}, 64",f"s_mov_b32 s{SJ_RS}, 2048",
      f"s_lshl_b32 s43, s{S_QG}, 2",f"s_mul_i32 s{SJ_DST}, s43, s45","s_lshr_b32 s43, s37, 1","s_lshl_b32 s43, s43, 13",f"s_add_u32 s{SJ_DST}, s{SJ_DST}, s43",
      "s_and_b32 s43, s37, 1","s_lshl_b32 s43, s43, 10",f"s_add_u32 s{SJ_DST}, s{SJ_DST}, s43",f"s_mov_b32 s{SJ_DT}, 2048",f"s_mov_b32 s{SJ_DA}, 4096",f"s_sub_u32 s{SJ_DB}, s45, 4096","s_mov_b32 s78, 0","s_mov_b32 s47, 0")
    k.label("sjd")
    relayout_addr(k,VS,VT1,SJ_RS,None,None)
    k(f"s_lshl_b32 s{SJ_LDS}, s{S_QG}, 14",f"s_add_u32 s{SJ_LDS}, s{SJ_LDS}, 98304","s_lshr_b32 s45, 512, s44","s_lshl_b32 s46, 256, s44",
      "v_lshrrev_b32 v7, 5, v0",f"v_lshl_add_u32 v{VT1}, v7, 10, v{VT1}","v_bfe_u32 v7, v0, 4, 1","v_mul_lo_u32 v7, s45, v7",f"v_add3_u32 v{VT1}, v{VT1}, v7, s{SJ_LDS}","v_and_b32 v7, 3, v0","v_lshlrev_b32 v7, 3, v7","v_mul_lo_u32 v7, s47, v7",f"v_sub_u32 v{VT1}, v{VT1}, v7",f"v_add_u32 v{VT2}, s46, v{VT1}",
      "s_lshl_b32 s85, s47, 1","s_lshl_b32 s85, 8, s85",f"v_add_u32 v{VT1+3}, s85, v{VT1}",f"v_add_u32 v{VT2+3}, s85, v{VT2}",
      f"s_lshl_b32 s{SJ_RS}, s{SJ_RS}, 4",srd(80,4,WS_CS,4*3584*4))
    for i in range(8): k(f"v_mov_b32 v{CSA+i}, 0")
    for i in range(4): k(f"v_mov_b32 v{ONE+i}, 0x3f803f80")
    def sj_rd(off):
        o=[]
        for t in range(2): o+=[f"ds_read_b64_tr_b16 {vr(WF+4*t,2)}, v{VT1+3*t} offset:{off}",f"ds_read_b64_tr_b16 {vr(WF+4*t+2,2)}, v{VT2+3*t} offset:{off}"]
        return o
    def sj_st(adv):
        o=[f"s_add_u32 s37, s{SJ_DST}, s{SJ_DT}",f"buffer_store_dwordx4 {vr(WF,4)}, v{VL}, s[24:27], s{SJ_DST} offen{G.STW}",f"buffer_store_dwordx4 {vr(WF+4,4)}, v{VL}, s[24:27], s37 offen{G.STW}"]
        for t in range(2): o+=[f"v_mfma_f32_16x16x32_bf16 {vr(CSA+4*t,4)}, {vr(WF+4*t,4)}, {vr(ONE,4)}, {vr(CSA+4*t,4)}"]
        o+=[f"s_add_u32 s{SJ_DST}, s{SJ_DST}, s{SJ_DA}",f"s_mov_b32 s37, s{SJ_DA}",f"s_mov_b32 s{SJ_DA}, s{SJ_DB}",f"s_mov_b32 s{SJ_DB}, s37"]
        if adv: o+=[f"v_add_u32 v{r}, 4096, v{r}" for r in (VT1,VT2,VT1+3,VT2+3)]
        return o
    def sj_load():
        return [f"s_mov_b32 m0, s{SJ_LDS}",f"s_add_u32 s37, s{SJ_SRC}, s{SJ_RS}",f"buffer_load_dwordx4 v{VS}, s[20:23], s{SJ_SRC} offen{G.SJP} lds",f"s_add_u32 m0, s{SJ_LDS}, 1024",
                f"s_add_u32 s{SJ_SRC}, s{SJ_SRC}, s{SJ_STEP}",f"buffer_load_dwordx4 v{VS}, s[20:23], s37 offen{G.SJP} lds",f"s_add_u32 s{SJ_LDS}, s{SJ_LDS}, 2048"]
    S_MODE,S_MT=79,84
    def site(n,mode,code):
        l=k.lab(f"h{n}_{mode}")
        return [f"s_cmp_eq_u32 s{S_MODE}, {mode}",f"s_cbranch_scc0 {l}"]+code+[l+":"]
    k(f"v_mov_b32 v{IDX}, 0xdddddddd","v_bfe_u32 v5, v0, 2, 1","v_cmp_eq_u32 vcc, 0, v5","v_mov_b32 v6, 0x3f803f80","s_nop 0",
      f"v_cndmask_b32 v{SEL}, 0, v6, vcc",f"v_cndmask_b32 v{SEL+1}, 0, v6, vcc",f"v_sub_u32 v{SEL+2}, v6, v{SEL}",f"v_sub_u32 v{SEL+3}, v6, v{SEL}",
      f"s_lshl_b32 s37, s{S_KH}, 14",f"v_add_u32 v5, s37, v{VP}",f"v_mov_b32 v{VC}, v5",f"v_add_u32 v{VN}, 32768, v5",f"s_mov_b32 s{S_CUR}, 0",
      "v_mov_b32 v6, 0xff800000","v_mov_b32 v7, 0xff800000")
    for i in range(40): k(f"v_mov_b32 v{O+i}, 0")
    for i in range(16): k(f"v_mov_b32 v{SB_+48+i}, 0")
    for i in range(16): k(f"v_mov_b32 v{VF+i}, 0")
    k(f"s_mov_b32 s{S_CNT}, s{S_NMAX}","s_waitcnt vmcnt(8)")
    k.label("mx")
    for u in range(2):
        k(f"v_mfma_f32_32x32x16_bf16 {vr(SB_+16*u,16)}, {vr(KF,4)}, {vr(Q+8*u,4)}, 0",f"v_mfma_f32_32x32x16_bf16 {vr(SB_+16*u,16)}, {vr(KF+4,4)}, {vr(Q+8*u+4,4)}, {vr(SB_+16*u,16)}")
    k("s_nop 15")
    for u in range(2):
        for i in range(8): k(f"v_max3_f32 v{6+u}, v{SB_+16*u+2*i}, v{SB_+16*u+2*i+1}, v{6+u}")
    k(f"s_sub_u32 s{S_CNT}, s{S_CNT}, 1",f"s_cmp_eq_u32 s{S_CNT}, 0",f"s_cbranch_scc1 {k.lab('mxd')}","s_add_u32 s38, s38, 4096")
    for j in range(2): k(f"buffer_load_dwordx4 {vr(KF+4*j,4)}, v{VL}, s[12:15], s38 offen offset:{1024*j}")
    k("s_waitcnt vmcnt(0)",f"s_branch {k.lab('mx')}")
    k.label("mxd")
    k(f"v_mov_b32 v{NM}, v6",f"v_mov_b32 v{NM+16}, v7","s_nop 1",f"v_permlane32_swap_b32 v6, v{NM}",f"v_permlane32_swap_b32 v7, v{NM+16}","s_nop 1",
      f"v_max_f32 v6, v6, v{NM}",f"v_max_f32 v7, v7, v{NM+16}")
    for u in range(2):
        for i in range(16): k(f"v_sub_f32 v{NM+16*u+i}, 0, v{6+u}")
    k(f"s_cmp_eq_u32 s{S_KH}, 0",f"s_cbranch_scc1 {k.lab('w4')}","s_waitcnt vmcnt(0)"); k.label("w4")
    k("s_waitcnt vmcnt(4)","s_barrier"); stamp(k,2)
    def rdK(t):
        a,o=(VC,t*4096) if t<4 else (VN,(t-4)*4096)
        return [f"ds_read_b128 {vr(KF+8*(t%2)+4*j,4)}, v{a} offset:{o+1024*j}" for j in range(2)]
    def rdV(t): return [f"ds_read_b128 {vr(VF+8*(t%2)+4*j,4)}, v{VC} offset:{t*4096+2048+1024*j}" for j in range(2)]
    def qk(n):
        t,u=n//2,n%2; b=SB_+16*(n%4); kf=KF+8*(t%2)
        return [f"v_mfma_f32_32x32x16_bf16 {vr(b,16)}, {vr(kf,4)}, {vr(Q+8*u,4)}, {vr(NM+16*u,16)}",
                f"v_mfma_f32_32x32x16_bf16 {vr(b,16)}, {vr(kf+4,4)}, {vr(Q+8*u+4,4)}, {vr(b,16)}"]
    def pv(n):
        t,u=n//2,n%2; b=SB_+16*(n%4); vf=VF+8*(t%2)
        return [f"v_smfmac_f32_32x32x32_bf16 {vr(O+16*u,16)}, {vr(vf+4*j,4)}, {vr(b+8*j,8)}, v{IDX}" for j in range(2)]
    def sm(n):
        u=n%2; b=SB_+16*(n%4)
        return [f"v_smfmac_f32_16x16x64_bf16 {vr(L+4*u,4)}, {vr(SEL,4)}, {vr(b+8*j,8)}, v{IDX}" for j in range(2)]
    k(rdK(0),rdK(1),"s_waitcnt lgkmcnt(2)",qk(0),qk(1),f"s_mov_b32 s{S_CNT}, 0","s_nop 7","s_nop 1")
    k(f"s_mov_b32 s{S_MT}, 0x00111111",f"s_cmp_eq_u32 s{S_KH}, 0",f"s_cselect_b32 s{S_MT}, s{S_MT}, 0x33332222")
    if G.APRIO: k(f"s_cmp_eq_u32 s{S_KH}, {G.APRIO-1}",f"s_cbranch_scc0 {k.lab('np')}","s_setprio 1"); k.label("np")
    k(".p2align 3"); k.label("loop")
    for n in range(8):
        b=SB_+16*(n%4); e=[f"v_exp_f32 v{b+i}, v{b+i}" for i in range(16)]
        a,p,s=qk(n+2),pv(n-1),sm(n-1)
        rd=rdV(n//2) if n%2==0 else rdK(n//2+2)
        hk=[]
        if n==0: k(f"s_and_b32 s{S_MODE}, s{S_MT}, 15",f"s_lshr_b32 s{S_MT}, s{S_MT}, 4")
        if n==4 and not G.XNB:
            l=k.lab("nw")
            k(f"s_cmp_ge_u32 s{S_MODE}, 2",f"s_cbranch_scc1 {l}","s_waitcnt vmcnt(0)",l+":","s_barrier")
        if n in (4,5) and not G.XND:
            if n==4: pre=[f"s_add_u32 s37, s{S_CUR}, 65536","s_sub_u32 s38, s37, 98304","s_cmp_ge_u32 s37, 98304","s_cselect_b32 s37, s38, s37",f"s_add_u32 m0, s37, s{S_M0}","s_nop 0"]
            if n==5: pre=["s_add_u32 m0, m0, 16384",f"s_add_u32 s{S_GO}, s{S_GO}, 131072"]
            ld=[f"buffer_load_dwordx4 v{VL}, s[12:15], s{S_GO} offen offset:{1024*j} lds" for j in range(4)]
            rd[0]=[rd[0]]+site(n+10,1,pre+ld[:2])
            hk+=site(n,1,ld[2:]+([f"s_sub_u32 s{S_GO}, s{S_GO}, {131072-16384}"] if n==5 else []))
        if G.SJ:
            if n in G.SJL and G.SJ&1: hk+=site(n,2,sj_load())
            if n%4==0: hk+=site(n,3,(["s_waitcnt vmcnt(12)"] if n==0 else [])+sj_rd(2048*(n//4)))
            if n%4==2 and G.SJ&2: hk+=site(n,3,sj_st(n==6))
        rd=[rd[0],[rd[1]]+hk]
        if G.XNR: rd=[[],[]]
        W="s_waitcnt lgkmcnt(0)"
        if G.AORD==0: k(e[0:2],W,a[0],rd,e[2:5],p[0],e[5:7],s[0],e[7:10],a[1],e[10:12],p[1],e[12:15],s[1],e[15])
        if G.AORD==1: k(e[0:2],W,a[0],rd,e[2:5],p[0],e[5:8],s[0],e[8:9],a[1],e[9:12],p[1],e[12:15],s[1],e[15])
        if G.AORD==2: k(W,a[0],e[0:3],a[1],rd,e[3:6],p[0],e[6:9],s[0],e[9:11],p[1],e[11:14],s[1],e[14:16])
        if G.AORD==3: k(W,s[0],a[0],rd[0],e[0:4],p[0],e[4:8],s[1],a[1],rd[1],e[8:12],p[1],e[12:16])
        if G.AORD==4: k(W,a[0],e[0:4],p[0],rd[0],e[4:7],s[0],e[7:8],a[1],e[8:12],p[1],rd[1],e[12:15],s[1],e[15:16])
    k(f"s_add_u32 s{S_CUR}, s{S_CUR}, 32768",f"s_cmp_ge_u32 s{S_CUR}, 98304",f"s_cselect_b32 s{S_CUR}, 0, s{S_CUR}",
      f"s_add_u32 s37, s{S_CUR}, 32768","s_cmp_ge_u32 s37, 98304","s_cselect_b32 s37, 0, s37",
      f"v_mov_b32 v{VC}, v{VN}",f"v_add_u32 v{VN}, s37, v5",
      f"s_add_u32 s{S_CNT}, s{S_CNT}, 1",f"s_cmp_lt_u32 s{S_CNT}, 8",f"s_cbranch_scc1 {k.lab('loop')}")
    k(pv(7),sm(7),"s_waitcnt lgkmcnt(0)","s_barrier"); stamp(k,3)
    k(f"s_mul_i32 s37, s{S_WAVE}, 5120",f"s_xor_b32 s38, s{S_WAVE}, 4","s_mul_i32 s38, s38, 5120",f"v_add_u32 v6, s37, v{VL}",f"v_add_u32 v7, s38, v{VL}","s_nop 7",
      f"s_cmp_eq_u32 s{S_KH}, 0",f"s_cbranch_scc1 {k.lab('kh0')}")
    for j in range(4): k(f"ds_write_b128 v6, {vr(O+4*j,4)} offset:{1024*j}")
    k(f"ds_write_b128 v6, {vr(L,4)} offset:4096")
    k("s_nop 1")
    for i in range(16): k(f"v_mov_b32 v{O+i}, v{O+16+i}")
    k(f"v_mov_b32 v{L}, v{L+4}",f"s_branch {k.lab('khd')}")
    k.label("kh0")
    for j in range(4): k(f"ds_write_b128 v6, {vr(O+16+4*j,4)} offset:{1024*j}")
    k(f"ds_write_b128 v6, {vr(L+4,4)} offset:4096")
    k.label("khd")
    k("v_mov_b32 v1, 0","v_mov_b32 v197, 49152","ds_write_b32 v197, v1","s_waitcnt lgkmcnt(0)","s_barrier")
    for j in range(4): k(f"ds_read_b128 {vr(SB_+4*j,4)}, v7 offset:{1024*j}")
    k(f"ds_read_b128 {vr(SB_+16,4)}, v7 offset:4096","s_waitcnt lgkmcnt(0)",f"v_add_f32 v{L}, v{L}, v{SB_+16}",f"v_rcp_f32 v{L+2}, v{L}")
    for i in range(8): k(f"v_pk_add_f32 {vr(O+2*i,2)}, {vr(O+2*i,2)}, {vr(SB_+2*i,2)}")
    k(f"v_mov_b32 v{L+3}, v{L+2}")
    for i in range(8): k(f"v_pk_mul_f32 {vr(O+2*i,2)}, {vr(O+2*i,2)}, {vr(L+2,2)}")
    k(f"s_cmp_lg_u32 s{S_NMAX}, 1",f"s_cbranch_scc1 {k.lab('store')}")
    for i in range(16): k(f"v_fma_f32 v{L}, v{O+i}, 0, v{L}")
    k(f"v_mov_b32 v6, {f2u(2.0**60)}",f"v_cmp_nlt_f32 vcc, v{L}, v6","s_nop 4","s_cmp_eq_u64 vcc, 0",f"s_cbranch_scc1 {k.lab('ok')}",
      "v_mov_b32 v1, 1","ds_write_b32 v197, v1")
    k.label("ok")
    k("s_waitcnt lgkmcnt(0)","s_barrier","ds_read_b32 v1, v197","s_waitcnt lgkmcnt(0)","v_readfirstlane_b32 s37, v1","s_nop 3","s_cmp_eq_u32 s37, 0",f"s_cbranch_scc1 {k.lab('store')}",
      f"s_mov_b32 s{S_NMAX}, 64","s_barrier",f"s_branch {k.lab('retry')}")
    k.label("store")
    pack(k,SB_,O)
    k(f"s_add_u32 s37, s{S_QT}, s{S_KH}","s_lshr_b32 s38, s37, 2","s_lshl_b32 s38, s38, 18","s_and_b32 s37, s37, 3","s_lshl_b32 s37, s37, 12","s_add_u32 s37, s37, s38",
      f"s_lshr_b32 s38, s{S_HEAD}, 1","s_lshl_b32 s38, s38, 14","s_add_u32 s37, s37, s38",f"s_and_b32 s38, s{S_HEAD}, 1","s_lshl_b32 s38, s38, 10","s_add_u32 s37, s37, s38",
      "v_and_b32 v6, 15, v0","v_lshlrev_b32 v6, 4, v6","v_bfe_u32 v7, v0, 4, 1","v_lshl_add_u32 v6, v7, 11, v6","v_lshrrev_b32 v7, 5, v0","v_lshl_add_u32 v6, v7, 8, v6")
    for j in range(2): k(f"buffer_store_dwordx4 {vr(SB_+4*j,4)}, v6, s[16:19], s37 offen offset:{512*j}{G.STF}")
    k("s_cmp_lt_u32 s2, 112",f"s_cbranch_scc0 {k.lab('nocs')}",f"s_cmp_eq_u32 s{S_KH}, 1",f"s_cbranch_scc0 {k.lab('nocs')}","v_lshrrev_b32 v7, 4, v0","s_sub_u32 s37, 5, s47","v_lshlrev_b32 v7, s37, v7","s_lshl_b32 s85, s85, 1","s_add_u32 s85, s85, s78","s_mov_b32 exec_lo, 0x10001","s_mov_b32 exec_hi, 0x10001",
      f"buffer_store_dwordx4 {vr(CSA,4)}, v7, s[80:83], s78 offen",f"buffer_store_dwordx4 {vr(CSA+4,4)}, v7, s[80:83], s85 offen")
    k.label("nocs")
    if G.STAMP: k("s_waitcnt vmcnt(0)")
    stamp(k,4)
    k.label("end"); k("s_endpgm")
    return k
```

```python
from lib import *
WS_XN=0x0; WS_QF=0x400000; WS_KV=0x800000; WS_OF=0x1000000; WS_HF=0x1400000; WS_GF=0x1800000; WS_ST=0x2600000; WS_CS=0x2700000
WS_WQ=0x2800000; WS_WO=0x3200000; WS_W1=0x3400000; WS_W2=0x3c00000
import os
if os.environ.get('OVL','1')=='1': WS_OF=0; WS_GF=0; WS_HF=WS_WQ; WS_WO=WS_WQ+0x400000
P0=2; AUX6=8; AORD=4; APRIO=2; SJL=(6,7); SJP=' nt'; XNB=0; XND=0; XNR=0; SJ=3
STW=' sc1'
STF=' sc1'
A_X,A_WQKV,A_WO,A_W1,A_B1,A_W2,A_B2,A_OUT,A_DBG,A_WS=0,8,16,32,40,48,56,64,72,80
S_WAVE,S_MI,S_NI,S_SLOT,S_CNT,S_XO,S_WO,S_T,S_T2,S_WM,S_WN=30,31,32,33,34,35,36,37,38,39,40
SX,SW,SO,SA,SB,SC=8,12,16,20,24,44
P_WS,P_W,P_A,P_B=4,6,48,50
STAMP=False
KID={"prep":0,"qkv":1,"attn":2,"oproj":3,"ffn1":4,"ffn2":5}
def stamp0(k):
    if STAMP: k("s_memrealtime s[66:67]","s_memtime s[68:69]")
def stamp(k,idx,pre=False):
    if not STAMP: return
    base=0x2f00000+KID[k.name[:-7]]*65536
    k("s_memtime s[60:61]","s_memrealtime s[64:65]","s_lshl_b32 s62, s2, 7",f"s_add_u32 s62, s62, {base+4*idx}","s_waitcnt lgkmcnt(0)",
      "v_mov_b32 v255, s62","v_mov_b32 v254, s60","v_mov_b32 v253, s64","global_store_dword v255, v254, s[4:5] offset:64","global_store_dword v255, v253, s[4:5]")
    if pre: k("v_mov_b32 v254, s68","v_mov_b32 v253, s66","global_store_dword v255, v254, s[4:5] offset:60","global_store_dword v255, v253, s[4:5] offset:-4")

class Cfg: pass
def wgmap(k,kind):
    if kind=="8x4":
        k(f"s_and_b32 s{S_MI}, s{S_T}, 1",f"s_lshl_b32 s{S_MI}, s{S_MI}, 3",f"s_and_b32 s3, s{S_T2}, 7",f"s_add_u32 s{S_MI}, s{S_MI}, s3",
          f"s_lshr_b32 s{S_NI}, s{S_T}, 1",f"s_lshl_b32 s{S_NI}, s{S_NI}, 2",f"s_lshr_b32 s3, s{S_T2}, 3",f"s_add_u32 s{S_NI}, s{S_NI}, s3")
    else:
        k(f"s_and_b32 s{S_MI}, s{S_T}, 3",f"s_lshl_b32 s{S_MI}, s{S_MI}, 2",f"s_and_b32 s3, s{S_T2}, 3",f"s_add_u32 s{S_MI}, s{S_MI}, s3",
          f"s_lshr_b32 s{S_NI}, s{S_T}, 2",f"s_lshl_b32 s{S_NI}, s{S_NI}, 3",f"s_lshr_b32 s3, s{S_T2}, 2",f"s_add_u32 s{S_NI}, s{S_NI}, s3")
def gemm(name, c):
    TM,TN,WM,WN,NS,KD=c.TM,c.TN,c.WM,c.WN,c.NS,c.K
    NT=TN*WN; WB=NT*2048; STG=16384+WB; S=KD//64; NWL=NT//2; LW=4+NWL
    XTRA=NS*STG
    k=K(name,256,512,NS*STG+c.lds_extra)
    stamp0(k)
    k("s_cmp_ge_u32 s2, 256",f"s_cbranch_scc1 {k.lab('end')}",f"s_load_dwordx2 s[{P_WS}:{P_WS+1}], s[0:1], {A_WS}")
    if c.aarg is not None: k(f"s_load_dwordx2 s[{P_A}:{P_A+1}], s[0:1], {c.aarg}")
    if c.barg is not None: k(f"s_load_dwordx2 s[{P_B}:{P_B+1}], s[0:1], {c.barg}")
    k("v_lshrrev_b32 v1, 6, v0","v_and_b32 v0, 63, v0",f"s_and_b32 s{S_T}, s2, 7",f"v_readfirstlane_b32 s{S_WAVE}, v1",f"s_lshr_b32 s{S_T2}, s2, 3")
    wgmap(k,c.map)
    k("v_lshlrev_b32 v2, 4, v0",f"s_cmp_lt_u32 s{S_WAVE}, 4",f"s_cbranch_scc1 {k.lab('cons')}")
    k(f"s_sub_u32 s{S_WAVE}, s{S_WAVE}, 4",f"s_lshl_b32 s41, s{S_WAVE}, 12",f"s_mul_i32 s42, s{S_WAVE}, {NWL*1024}",
      f"s_mul_i32 s{S_XO}, s{S_MI}, {KD*256}",f"s_add_u32 s{S_XO}, s{S_XO}, s41",
      f"s_mul_i32 s{S_WO}, s{S_NI}, {S*WB}",f"s_add_u32 s{S_WO}, s{S_WO}, s42","s_add_u32 s42, s42, 16384",f"s_mov_b32 s{S_SLOT}, 0",
      "s_waitcnt lgkmcnt(0)",srd(SX,P_WS,c.xoff,2048*KD*2),srd(SW,P_WS,c.woff,16*S*WB))
    def issue():
        o=[f"s_add_u32 m0, s{S_SLOT}, s42",f"s_add_u32 s{S_T2}, s{S_WO}, 4096"]
        for j in range(NWL):
            if j==4: o+=["s_add_u32 m0, m0, 4096","s_nop 0"]
            o+=[f"buffer_load_dwordx4 v2, s[{SW}:{SW+3}], s{S_WO if j<4 else S_T2} offen offset:{(j%4)*1024} lds"]
        o+=[f"s_add_u32 m0, s{S_SLOT}, s41",f"s_add_u32 s{S_WO}, s{S_WO}, {WB}"]
        for u in range(4): o+=[f"buffer_load_dwordx4 v2, s[{SX}:{SX+3}], s{S_XO} offen offset:{u*1024} lds"]
        o+=[f"s_add_u32 s{S_XO}, s{S_XO}, 16384",f"s_add_u32 s{S_SLOT}, s{S_SLOT}, {STG}",f"s_cmp_ge_u32 s{S_SLOT}, {NS*STG}",f"s_cselect_b32 s{S_SLOT}, 0, s{S_SLOT}"]
        return o
    if STAMP: k("s_memtime s[70:71]")
    P0=min(c.P0,NS-1)
    k(f"s_mov_b32 s{S_CNT}, {P0}"); k.label("lpro"); k(issue(),f"s_sub_u32 s{S_CNT}, s{S_CNT}, 1",f"s_cmp_lg_u32 s{S_CNT}, 0",f"s_cbranch_scc1 {k.lab('lpro')}")
    if STAMP: k("s_memtime s[72:73]",f"s_waitcnt vmcnt({(P0-1)*LW})","s_memtime s[74:75]")
    for j in range(NS-1-P0): k(f"s_waitcnt vmcnt({(P0-1+j)*LW})","s_barrier",issue(),issue())
    k(f"s_mov_b32 s{S_CNT}, {S-(NS-1)-(NS-1-P0)}"); k.label("lloop")
    k(f"s_waitcnt vmcnt({(NS-2)*LW})","s_barrier",issue(),f"s_sub_u32 s{S_CNT}, s{S_CNT}, 1",f"s_cmp_lg_u32 s{S_CNT}, 0",f"s_cbranch_scc1 {k.lab('lloop')}")
    nh=c.loader_head(k) if c.loader_head else 0
    for j in range(NS-1): k(f"s_waitcnt vmcnt({(NS-2-j)*LW+nh})","s_barrier")
    if nh: k("s_waitcnt vmcnt(0)")
    if c.loader_tail: c.loader_tail(k,XTRA)
    if STAMP:
        k("s_lshl_b32 s62, s2, 7",f"s_add_u32 s62, s62, {0x2f00000+KID[k.name[:-7]]*65536+64+20}","s_waitcnt lgkmcnt(0)","v_mov_b32 v255, s62")
        for j,r in enumerate((68,70,72,74)): k(f"v_mov_b32 v254, s{r}",f"global_store_dword v255, v254, s[4:5] offset:{4*j}")
    k("s_barrier","s_endpgm")
    k.label("cons")
    ACC=c.acc0; FR=ACC+4*TM*TN; FSZ=4*(TM+TN)
    VX,VW,VX0,VW0=6,3,4,5
    assert FR+2*FSZ<=c.vmax,(FR+2*FSZ)
    if WN==2: k(f"s_lshr_b32 s{S_WM}, s{S_WAVE}, 1",f"s_and_b32 s{S_WN}, s{S_WAVE}, 1")
    else: k(f"s_mov_b32 s{S_WM}, s{S_WAVE}",f"s_mov_b32 s{S_WN}, 0")
    k(f"s_mul_i32 s{S_T}, s{S_WM}, {TM*2048}",f"v_add_u32 v{VX0}, s{S_T}, v2",
      f"s_mul_i32 s{S_T}, s{S_WN}, {TN*2048}",f"s_add_u32 s{S_T}, s{S_T}, 16384",f"v_add_u32 v{VW0}, s{S_T}, v2",
      f"v_mov_b32 v{VX}, v{VX0}",f"v_mov_b32 v{VW}, v{VW0}",f"s_mov_b32 s{S_SLOT}, 0",f"s_mov_b32 s{S_CNT}, {S}","s_waitcnt lgkmcnt(0)")
    stamp(k,1,True)
    c.prologue(k,ACC,FR)
    def xf(b,tm): return FR+b*FSZ+4*tm
    def wf(b,tn): return FR+b*FSZ+4*TM+4*tn
    def reads(b):
        X=[(f"ds_read_b128 {vr(xf(b,tm),4)}, v{VX} offset:{tm*2048+b*1024}",xf(b,tm)) for tm in range(TM)]
        W=[(f"ds_read_b128 {vr(wf(b,tn),4)}, v{VW} offset:{tn*2048+b*1024}",wf(b,tn)) for tn in range(TN)]
        return W[:1]+X+W[1:]
    def mfmas(b):
        o=[]
        for tn in range(TN):
            for tm in range(TM):
                a=ACC+4*(tm*TN+tn); x,w=xf(b,tm),wf(b,tn)
                A,B=(x,w) if c.swap(tn) else (w,x)
                o.append((f"v_mfma_f32_16x16x32_bf16 {vr(a,4)}, {vr(A,4)}, {vr(B,4)}, {vr(a,4)}",(x,w)))
        return o
    k("s_barrier"); stamp(k,2)
    q=[]
    for ins,d in reads(0): k(ins); q.append(d)
    k(".p2align 3"); k.label("cloop")
    if c.aux: k(f"s_cmp_eq_u32 s{S_CNT}, {c.auxat}",f"s_cbranch_scc1 {k.lab('aux')}"); k.label("auxd")
    done=[0]
    def need(regs):
        idx=max([i for i,d in enumerate(q) if d in regs],default=-1)
        if idx>=done[0]:
            n=min(15,len(q)-1-idx); k(f"s_waitcnt lgkmcnt({n})"); done[0]=len(q)-n
    for b in range(2):
        M=mfmas(b); R=reads(1-b); p=0
        bar=c.barpos if b==1 else -1
        first=bar if b==1 else 0
        for j,(ins,regs) in enumerate(M):
            need(regs); k(ins)
            if b==1 and j==0 : k(f"s_add_u32 s{S_SLOT}, s{S_SLOT}, {STG}",f"s_cmp_ge_u32 s{S_SLOT}, {NS*STG}",f"s_cselect_b32 s{S_SLOT}, 0, s{S_SLOT}")
            if j==bar:
                k("s_waitcnt lgkmcnt(0)",f"v_add_u32 v{VX}, s{S_SLOT}, v{VX0}",f"v_add_u32 v{VW}, s{S_SLOT}, v{VW0}","s_barrier"); done[0]=len(q)
            if j>=first and (j-first)%c.rstep==0 and p<len(R):
                k(R[p][0]); q.append(R[p][1]); p+=1
        for ins2,d in R[p:]: k(ins2); q.append(d)
    k(f"s_sub_u32 s{S_CNT}, s{S_CNT}, 1",f"s_cmp_lg_u32 s{S_CNT}, 0",f"s_cbranch_scc1 {k.lab('cloop')}")
    k("s_waitcnt lgkmcnt(0)","s_nop 7"); stamp(k,3)
    c.epilogue(k,ACC,FR,XTRA)
    if STAMP: k("s_waitcnt vmcnt(0)")
    stamp(k,4)
    k.label("end"); k("s_endpgm")
    if c.aux: k.label("aux"); c.aux(k); k(f"s_branch {k.lab('auxd')}")
    return k
def zero_acc(n):
    def f(k,ACC,FR):
        for i in range(n): k(f"v_mov_b32 v{ACC+i}, 0")
    return f
def pack(k,dst,src,n=16):
    for i in range(n//2): k(f"v_cvt_pk_bf16_f32 v{dst+i}, v{src+2*i}, v{src+2*i+1}")
def relayout_addr(k,vsrc,vtr,sstride,g1,g2,vt=7):
    k(f"v_lshrrev_b32 v{vsrc}, 2, v0",f"v_mul_lo_u32 v{vsrc}, s{sstride}, v{vsrc}",f"v_and_b32 v{vt}, 3, v0",f"v_lshl_add_u32 v{vsrc}, v{vt}, 4, v{vsrc}",
      f"v_lshlrev_b32 v{vtr}, 4, v{vt}",f"v_bfe_u32 v{vt}, v0, 2, 2",f"v_lshl_add_u32 v{vtr}, v{vt}, 6, v{vtr}")
```

```python
from lib import *
import gemm as G
from gemm import *
import math
def mkcfg(**kw):
    c=Cfg(); c.aarg=None; c.barg=None; c.loader_head=None; c.loader_tail=None; c.lds_extra=0; c.swap=lambda tn:False; c.acc0=8; c.vmax=252; c.barpos=2; c.rstep=2; c.aux=None; c.auxat=0; c.P0=G.P0
    c.__dict__.update(kw); return c
def unpack(k,dst,src,n):
    for i in range(n): k(f"v_lshlrev_b32 v{dst+2*i}, 16, v{src+i}",f"v_and_b32 v{dst+2*i+1}, 0xffff0000, v{src+i}")
def rstd_from(k,s,q,out):
    k(f"v_mul_f32 v{s}, {f2u(-1/1024)}, v{s}",f"v_mul_f32 v{q}, {f2u(1/1024)}, v{q}",f"v_fma_f32 v{q}, -v{s}, v{s}, v{q}",f"v_max_f32 v{q}, 0, v{q}",
      f"v_add_f32 v{q}, {f2u(1e-5)}, v{q}",f"v_rsq_f32 v{out}, v{q}")
def k_qkv():
    def epi(k,ACC,FR,X):
        k(srd(SO,P_WS,WS_QF,0x400000),srd(SA,P_WS,WS_KV,0x800000))
        k(f"s_lshl_b32 s{S_T}, s{S_MI}, 2",f"s_lshl_b32 s3, s{S_WM}, 1",f"s_add_u32 s{S_T}, s{S_T}, s3",
          f"s_lshl_b32 s{S_T2}, s{S_NI}, 1",f"s_add_u32 s{S_T2}, s{S_T2}, s{S_WN}",f"s_lshl_b32 s{S_T2}, s{S_T2}, 6",f"s_add_u32 s{S_T}, s{S_T}, s{S_T2}",
          f"s_lshl_b32 s41, s{S_T}, 11",f"s_lshl_b32 s42, s{S_T}, 12","s_add_u32 s43, s42, 4096",
          f"s_mov_b32 s52, {f2u(math.log2(math.e)/math.sqrt(32))}",f"s_mov_b32 s53, s52",
          "v_lshrrev_b32 v4, 4, v0","v_lshlrev_b32 v4, 9, v4","v_and_b32 v5, 15, v0","v_lshl_add_u32 v2, v5, 4, v4",
          )
        d=FR
        for tm in range(4):
            a=ACC+24*tm; sk=42+tm//2
            pack(k,d,a+8,8); k(f"buffer_store_dwordx4 {vr(d,4)}, v2, s[{SA}:{SA+3}], s{sk} offen offset:{256*(tm%2)}{G.STF}"); d+=4
            if tm%2:
                for t in range(2):
                    pack(k,d,a-24+16+4*t,4); pack(k,d+2,a+16+4*t,4)
                    k(f"buffer_store_dwordx4 {vr(d,4)}, v2, s[{SA}:{SA+3}], s{sk} offen offset:{2048+256*t}{G.STF}"); d+=4
            for i in range(4): k(f"v_pk_mul_f32 {vr(a+2*i,2)}, {vr(a+2*i,2)}, s[52:53]")
            pack(k,d,a,8); k(f"buffer_store_dwordx4 {vr(d,4)}, v2, s[{SO}:{SO+3}], s41 offen offset:{2048*(tm//2)+256*(tm%2)}{G.STF}"); d+=4
    c=mkcfg(TM=4,TN=6,WM=2,WN=2,NS=4,K=1024,woff=WS_WQ,xoff=WS_XN,map="8x4",swap=lambda tn:tn>=4,prologue=zero_acc(96),epilogue=epi)
    return gemm("qkv_kernel",c)
def rowmajor_addr(k,v,sdst):
    k(f"s_lshl_b32 s{sdst}, s{S_MI}, 2",f"s_add_u32 s{sdst}, s{sdst}, s{S_WM}",f"s_lshl_b32 s{sdst}, s{sdst}, 16",f"s_lshl_b32 s3, s{S_NI}, 7",f"s_add_u32 s{sdst}, s{sdst}, s3",
      f"s_add_u32 s{sdst+1}, s{sdst}, 32768",f"v_and_b32 v{v}, 15, v0",f"v_lshlrev_b32 v{v}, 11, v{v}","v_lshrrev_b32 v1, 4, v0",f"v_lshl_add_u32 v{v}, v1, 4, v{v}")
def hunit_addr(k,sdst):
    k(f"s_lshl_b32 s{sdst}, s{S_MI}, 18",f"s_lshl_b32 s3, s{S_NI}, 14",f"s_add_u32 s{sdst}, s{sdst}, s3",f"s_lshl_b32 s3, s{S_WM}, 12",f"s_add_u32 s{sdst}, s{sdst}, s3")
def k_oproj():
    def pro(k):
        k(srd(SA,P_A,0,0x400000)); rowmajor_addr(k,7,41)
        for j in range(4): k(f"buffer_load_dwordx4 {vr(100+4*j,4)}, v7, s[{SA}:{SA+3}], s{41+j//2} offen offset:{64*(j%2)}")
    def epi(k,ACC,FR,X):
        k(srd(SO,P_WS,WS_HF,0x400000),srd(SB,P_WS,WS_ST,2048*128)); hunit_addr(k,41)
        k("s_waitcnt vmcnt(0)"); unpack(k,120,100,16)
        for i in range(16): k(f"v_pk_add_f32 {vr(ACC+2*i,2)}, {vr(ACC+2*i,2)}, {vr(120+2*i,2)}")
        pack(k,FR,ACC,32)
        for j in range(4): k(f"buffer_store_dwordx4 {vr(FR+4*j,4)}, v2, s[{SO}:{SO+3}], s41 offen offset:{1024*j}{G.STF}")
        for tm in range(2):
            a=ACC+16*tm; s_,q_=100+4*tm,102+4*tm
            k(f"v_pk_add_f32 {vr(s_,2)}, {vr(a,2)}, {vr(a+2,2)}",f"v_pk_mul_f32 {vr(q_,2)}, {vr(a,2)}, {vr(a,2)}",f"v_pk_fma_f32 {vr(q_,2)}, {vr(a+2,2)}, {vr(a+2,2)}, {vr(q_,2)}")
            for i in range(2,8): k(f"v_pk_add_f32 {vr(s_,2)}, {vr(s_,2)}, {vr(a+2*i,2)}",f"v_pk_fma_f32 {vr(q_,2)}, {vr(a+2*i,2)}, {vr(a+2*i,2)}, {vr(q_,2)}")
            k(f"v_add_f32 v{s_}, v{s_}, v{s_+1}",f"v_add_f32 v{q_}, v{q_}, v{q_+1}")
        k(f"s_lshl_b32 s42, s{S_MI}, 2",f"s_add_u32 s42, s42, s{S_WM}","s_lshl_b32 s42, s42, 12",f"s_lshl_b32 s3, s{S_NI}, 3","s_add_u32 s42, s42, s3",
          "v_permlane32_swap_b32 v100, v104","v_permlane32_swap_b32 v102, v106","v_and_b32 v3, 15, v0","v_lshlrev_b32 v3, 7, v3",
          "v_add_f32 v100, v100, v104","v_add_f32 v102, v102, v106","v_lshrrev_b32 v4, 5, v0","v_lshl_add_u32 v3, v4, 11, v3",
          "v_permlane16_swap_b32 v100, v102","v_bfe_u32 v4, v0, 4, 1","v_lshl_add_u32 v3, v4, 2, v3","v_add_f32 v100, v100, v102",
          f"buffer_store_dword v100, v3, s[{SB}:{SB+3}], s42 offen")
    c=mkcfg(TM=2,TN=4,WM=4,WN=1,NS=6,K=1024,aarg=A_X,woff=WS_WO,xoff=WS_OF,map="4x8",prologue=zero_acc(32),aux=pro,auxat=G.AUX6,epilogue=epi,barpos=1,rstep=1,vmax=100)
    return gemm("oproj_kernel",c)
def k_ffn1():
    def lhead(k):
        k(srd(SA,P_WS,WS_CS,4*3584*4),srd(SB,P_A,0,3584*2),f"s_lshl_b32 s{S_T}, s{S_WAVE}, 6",f"v_add_u32 v20, s{S_T}, v0",
          f"s_mul_i32 s{S_T}, s{S_NI}, 224",f"v_add_u32 v21, s{S_T}, v20","v_lshlrev_b32 v22, 2, v21","v_lshlrev_b32 v21, 1, v21",
          f"buffer_load_ushort v40, v21, s[{SB}:{SB+3}], 0 offen")
        for p in range(4): k(f"s_mov_b32 s{S_T}, {p*3584*4}",f"buffer_load_dword v{24+p}, v22, s[{SA}:{SA+3}], s{S_T} offen")
        return 5
    def ltail(k,X):
        for p in range(1,4): k(f"v_add_f32 v24, v24, v{24+p}")
        k("v_lshlrev_b32 v40, 16, v40","v_lshrrev_b32 v21, 5, v20","v_bfe_u32 v22, v20, 2, 1","v_lshl_add_u32 v25, v21, 1, v22",
          "v_bfe_u32 v28, v20, 3, 2","v_bfe_u32 v29, v20, 2, 2","v_bfe_u32 v22, v20, 4, 1",
          "v_cmp_lt_u32 vcc, 3, v21","v_subrev_u32 v26, 1, v25","v_mul_u32_u24 v27, 7, v22","v_cndmask_b32 v25, v25, v26, vcc","v_cmp_eq_u32 vcc, 3, v21","v_add_u32 v27, 6, v27","s_nop 0","v_cndmask_b32 v25, v25, v27, vcc","v_cndmask_b32 v28, v28, v29, vcc",
          "v_cmp_eq_u32 vcc, 7, v21","v_mov_b32 v27, 15","s_nop 0","v_cndmask_b32 v25, v25, v27, vcc",
          "v_lshlrev_b32 v25, 6, v25","v_lshl_add_u32 v25, v28, 4, v25","v_and_b32 v26, 3, v20","v_lshl_add_u32 v25, v26, 2, v25",
          f"v_add_u32 v25, {X}, v25","ds_write_b32 v25, v24","ds_write_b32 v25, v40 offset:1024","s_waitcnt lgkmcnt(0)")
    ST=208
    def pro(k):
        k(srd(SB,P_WS,WS_ST,2048*128),f"s_lshl_b32 s{S_T}, s{S_MI}, 1",f"s_add_u32 s{S_T}, s{S_T}, s{S_WM}",f"s_lshl_b32 s{S_T}, s{S_T}, 13",
          "v_and_b32 v7, 15, v0","v_lshlrev_b32 v7, 7, v7","v_lshrrev_b32 v1, 4, v0","v_lshl_add_u32 v7, v1, 5, v7")
        for tm in range(4):
            if tm==2: k(f"s_add_u32 s{S_T}, s{S_T}, 4096")
            for j in range(2): k(f"buffer_load_dwordx4 {vr(ST+8*tm+4*j,4)}, v7, s[{SB}:{SB+3}], s{S_T} offen offset:{2048*(tm%2)+16*j}")
    def epi(k,ACC,FR,X):
        k(srd(SO,P_WS,WS_GF,2048*3584*2))
        CSR=FR; BR=FR+28; T=FR+56
        k(f"s_mul_i32 s3, s{S_WN}, 448",f"s_add_u32 s3, s3, {X}","v_lshrrev_b32 v3, 4, v0","v_lshlrev_b32 v3, 4, v3","v_add_u32 v3, s3, v3")
        for tn in range(7): k(f"ds_read_b128 {vr(CSR+4*tn,4)}, v3 offset:{64*tn}",f"ds_read_b128 {vr(BR+4*tn,4)}, v3 offset:{1024+64*tn}")
        k(f"s_mul_i32 s41, s{S_MI}, {3584*256}",f"s_lshl_b32 s3, s{S_WM}, 13","s_add_u32 s41, s41, s3",f"s_mul_i32 s42, s{S_NI}, 7",f"s_lshl_b32 s43, s{S_WN}, 2")
        for p in range(4):
            if p<3: k(f"s_add_u32 s3, s42, s43",f"s_add_u32 s3, s3, {p}")
            else: k("s_add_u32 s3, s42, 3")
            k(f"s_lshr_b32 s{54+p}, s3, 1",f"s_lshl_b32 s{54+p}, s{54+p}, 14","s_and_b32 s3, s3, 1","s_lshl_b32 s3, s3, 10",f"s_add_u32 s{54+p}, s{54+p}, s3",f"s_add_u32 s{54+p}, s{54+p}, s41")
        k(f"s_lshl_b32 s3, s{S_WN}, 9","s_add_u32 s57, s57, s3","v_add_u32 v7, 4096, v2",
          "v_and_b32 v6, 15, v0","v_lshlrev_b32 v6, 4, v6","v_bfe_u32 v1, v0, 4, 1","v_lshl_add_u32 v6, v1, 11, v6","v_lshrrev_b32 v1, 5, v0","v_lshl_add_u32 v6, v1, 8, v6","s_waitcnt vmcnt(0)")
        for tm in range(4):
            r=ST+8*tm
            k(f"v_pk_add_f32 {vr(r,2)}, {vr(r,2)}, {vr(r+2,2)}",f"v_pk_add_f32 {vr(r+4,2)}, {vr(r+4,2)}, {vr(r+6,2)}",f"v_pk_add_f32 {vr(r,2)}, {vr(r,2)}, {vr(r+4,2)}")
        for op in ("v_permlane16_swap_b32","v_permlane32_swap_b32"):
            for tm in range(4): r=ST+8*tm; k(f"v_mov_b32 v{r+2}, v{r}",f"v_mov_b32 v{r+3}, v{r+1}")
            k("s_nop 1")
            for tm in range(4): r=ST+8*tm; k(f"{op} v{r}, v{r+2}",f"{op} v{r+1}, v{r+3}")
            k("s_nop 1")
            for tm in range(4): r=ST+8*tm; k(f"v_pk_add_f32 {vr(r,2)}, {vr(r,2)}, {vr(r+2,2)}")
        for tm in range(4): r=ST+8*tm; rstd_from(k,r,r+1,r+2); k(f"v_mov_b32 v{r+1}, v{r}",f"v_mov_b32 v{r+3}, v{r+2}")
        a_=-2*0.7978845608028654*math.log2(math.e); b_=a_*0.044715
        k(f"s_mov_b32 s52, {f2u(b_)}",f"s_mov_b32 s53, {f2u(b_)}",f"v_mov_b32 v4, {f2u(a_)}",f"v_mov_b32 v5, {f2u(a_)}","s_waitcnt lgkmcnt(0)")
        P=lambda r,i:vr(r+2*i,2)
        for tm in range(4):
            a=ACC+28*tm; r=ST+8*tm
            for i in range(14): k(f"v_pk_fma_f32 {P(a,i)}, {P(CSR,i)}, {vr(r,2)}, {P(a,i)}")
            for i in range(14): k(f"v_pk_fma_f32 {P(a,i)}, {P(a,i)}, {vr(r+2,2)}, {P(BR,i)}")
            for i in range(14): k(f"v_pk_mul_f32 {P(T,i)}, {P(a,i)}, {P(a,i)}")
            for i in range(14): k(f"v_pk_fma_f32 {P(T,i)}, {P(T,i)}, s[52:53], v[4:5]")
            for i in range(14): k(f"v_pk_mul_f32 {P(T,i)}, {P(T,i)}, {P(a,i)}")
            for i in range(28): k(f"v_exp_f32 v{T+i}, v{T+i}")
            for i in range(14): k(f"v_pk_add_f32 {P(T,i)}, {P(T,i)}, 1.0 op_sel_hi:[1,0]")
            for i in range(28): k(f"v_rcp_f32 v{T+i}, v{T+i}")
            for i in range(14): k(f"v_pk_mul_f32 {P(T,i)}, {P(T,i)}, {P(a,i)}")
            pack(k,a,T,24); sg=ACC+28*(tm&~1)+12; pack(k,sg+2*(tm%2),T+24,4)
            va=2 if tm<2 else 7
            for p in range(3): k(f"buffer_store_dwordx4 {vr(a+4*p,4)}, v{va}, s[{SO}:{SO+3}], s{54+p} offen offset:{2048*(tm%2)}{G.STF}")
            if tm%2:
                k(f"v_permlane16_swap_b32 v{sg}, v{sg+2}",f"v_permlane16_swap_b32 v{sg+1}, v{sg+3}",f"buffer_store_dwordx4 {vr(sg,4)}, v6, s[{SO}:{SO+3}], s57 offen{G.STF}","s_add_u32 s57, s57, 4096")
    c=mkcfg(TM=4,TN=7,WM=2,WN=2,NS=3,K=1024,aarg=A_B1,woff=WS_W1,xoff=WS_HF,map="8x4",prologue=zero_acc(112),aux=pro,auxat=2,epilogue=epi,loader_head=lhead,loader_tail=ltail,lds_extra=2048,vmax=208)
    return gemm("ffn1_kernel",c)
def k_ffn2():
    def pro(k):
        k(srd(SA,P_WS,WS_HF,0x400000),srd(SB,P_A,0,2048)); hunit_addr(k,41)
        k(f"s_lshl_b32 s42, s{S_NI}, 7","v_lshrrev_b32 v7, 4, v0","v_lshlrev_b32 v7, 4, v7")
        for j in range(4): k(f"buffer_load_dwordx4 {vr(100+4*j,4)}, v2, s[{SA}:{SA+3}], s41 offen offset:{1024*j}")
        for j in range(2): k(f"buffer_load_dwordx4 {vr(116+4*j,4)}, v7, s[{SB}:{SB+3}], s42 offen offset:{64*j}")
    def epi(k,ACC,FR,X):
        k(srd(SO,P_B,0,0x400000)); rowmajor_addr(k,7,41)
        k("s_waitcnt vmcnt(0)"); unpack(k,130,100,24)
        for i in range(16): k(f"v_pk_add_f32 {vr(ACC+2*i,2)}, {vr(ACC+2*i,2)}, {vr(162+2*(i%8),2)}")
        for i in range(16): k(f"v_pk_add_f32 {vr(ACC+2*i,2)}, {vr(ACC+2*i,2)}, {vr(130+2*i,2)}")
        pack(k,FR,ACC,32)
        for j in range(4): k(f"buffer_store_dwordx4 {vr(FR+4*j,4)}, v7, s[{SO}:{SO+3}], s{41+j//2} offen offset:{64*(j%2)}")
    c=mkcfg(TM=2,TN=4,WM=4,WN=1,NS=6,K=3584,aarg=A_B2,barg=A_OUT,woff=WS_W2,xoff=WS_GF,map="4x8",prologue=zero_acc(32),aux=pro,auxat=G.AUX6,epilogue=epi,barpos=1,rstep=1,vmax=100)
    return gemm("ffn2_kernel",c)
def k_prep():
    k=K("prep_kernel",256,512,256+4*6144,nv=256 if G.STAMP else 64)
    stamp0(k)
    k("s_cmp_ge_u32 s2, 256",f"s_cbranch_scc1 {k.lab('end')}",f"s_load_dwordx2 s[4:5], s[0:1], {A_WS}",f"s_load_dwordx4 s[48:51], s[0:1], {A_X}",f"s_load_dwordx2 s[52:53], s[0:1], {A_B1}",f"s_load_dwordx2 s[54:55], s[0:1], {A_B2}",
      "v_lshrrev_b32 v1, 6, v0","v_and_b32 v0, 63, v0","s_nop 0",f"v_readfirstlane_b32 s30, v1","s_nop 1","s_cmp_ge_u32 s30, 4",f"s_cbranch_scc1 {k.lab('w')}")
    k("v_and_b32 v2, 7, v0","v_lshrrev_b32 v3, 3, v0","v_lshlrev_b32 v4, 11, v2","v_lshl_add_u32 v4, v3, 4, v4","s_lshl_b32 s31, s2, 14","s_lshl_b32 s32, s30, 9","s_add_u32 s31, s31, s32",
      "s_waitcnt lgkmcnt(0)",srd(8,48,0,0x400000))
    for i in range(4): k(f"buffer_load_dwordx4 {vr(8+4*i,4)}, v4, s[8:11], s31 offen offset:{128*i}")
    stamp(k,1,True)
    k(srd(12,4,WS_XN,0x400000),"s_lshr_b32 s33, s2, 4","s_lshl_b32 s33, s33, 18","s_bfe_u32 s34, s2, 0x30001","s_lshl_b32 s34, s34, 11","s_add_u32 s33, s33, s34",
      "s_and_b32 s34, s2, 1","s_lshl_b32 s34, s34, 7","s_add_u32 s33, s33, s34","s_lshl_b32 s34, s30, 16","s_add_u32 s33, s33, s34",
      "v_lshlrev_b32 v5, 8, v3","v_lshl_add_u32 v5, v2, 4, v5","s_waitcnt vmcnt(0)")
    stamp(k,2)
    unpack(k,32,8,16)
    k("v_pk_add_f32 v[24:25], v[32:33], v[34:35]","v_pk_mul_f32 v[26:27], v[32:33], v[32:33]","v_pk_fma_f32 v[26:27], v[34:35], v[34:35], v[26:27]")
    for i in range(2,16): k(f"v_pk_add_f32 v[24:25], v[24:25], {vr(32+2*i,2)}",f"v_pk_fma_f32 v[26:27], {vr(32+2*i,2)}, {vr(32+2*i,2)}, v[26:27]")
    k("v_add_f32 v24, v24, v25","v_add_f32 v25, v26, v27","s_nop 1","v_add_f32_dpp v24, v24, v24 row_ror:8 row_mask:0xf bank_mask:0xf","v_add_f32_dpp v25, v25, v25 row_ror:8 row_mask:0xf bank_mask:0xf")
    for op in ("v_permlane16_swap_b32","v_permlane32_swap_b32"):
        k("v_mov_b32 v26, v24","v_mov_b32 v27, v25","s_nop 1",f"{op} v24, v26",f"{op} v25, v27","s_nop 1","v_add_f32 v24, v24, v26","v_add_f32 v25, v25, v27")
    k("s_lshl_b32 s34, s30, 6","v_lshlrev_b32 v6, 3, v2","v_add_u32 v7, s34, v6","ds_write_b64 v7, v[24:25]","s_waitcnt lgkmcnt(0)","s_barrier")
    for w in range(4): k(f"ds_read_b64 {vr(8+2*w,2)}, v6 offset:{64*w}")
    k("s_waitcnt lgkmcnt(0)","v_pk_add_f32 v[8:9], v[8:9], v[10:11]","v_pk_add_f32 v[12:13], v[12:13], v[14:15]","v_pk_add_f32 v[24:25], v[8:9], v[12:13]")
    rstd_from(k,24,25,26); k("v_mov_b32 v25, v24","v_mov_b32 v27, v26")
    for i in range(16): k(f"v_pk_add_f32 {vr(32+2*i,2)}, {vr(32+2*i,2)}, v[24:25]")
    for i in range(16): k(f"v_pk_mul_f32 {vr(32+2*i,2)}, {vr(32+2*i,2)}, v[26:27]")
    pack(k,8,32,32)
    for i in range(4): k(f"buffer_store_dwordx4 {vr(8+4*i,4)}, v5, s[12:15], s33 offen{G.STF}","s_add_u32 s33, s33, 16384")
    stamp(k,3)
    if G.STAMP: k("s_waitcnt vmcnt(0)")
    stamp(k,4)
    k("s_endpgm")
    k.label("w")
    k("s_sub_u32 s30, s30, 4","s_mov_b32 s35, 6144"); relayout_addr(k,2,3,35,None,None)
    k("v_lshrrev_b32 v7, 4, v0","v_lshl_add_u32 v3, v7, 9, v3","s_mul_i32 s36, s30, 6144","s_add_u32 s36, s36, 256","v_add_u32 v3, s36, v3","v_lshlrev_b32 v4, 4, v0",
      "s_lshr_b32 s31, s2, 3","s_and_b32 s32, s2, 7","s_mul_i32 s32, s32, 12","s_mul_i32 s33, s30, 3","s_add_u32 s32, s32, s33",
      f"s_mul_i32 s33, s31, {32*6144}","s_lshl_b32 s34, s32, 6","s_add_u32 s33, s33, s34",f"s_add_u32 s34, s33, {16*6144}",
      "s_waitcnt lgkmcnt(0)",srd(8,50,0,1024*6144),srd(12,4,WS_WQ,1024*6144))
    for it in range(3):
        k(f"s_add_u32 m0, s36, {2048*it}","s_nop 0","buffer_load_dwordx4 v2, s[8:11], s33 offen lds",f"s_add_u32 m0, s36, {2048*it+1024}","s_add_u32 s33, s33, 64",
          "buffer_load_dwordx4 v2, s[8:11], s34 offen lds","s_add_u32 s34, s34, 64")
    k("s_barrier","s_lshr_b32 s37, s31, 1","s_mul_i32 s37, s37, 24576","s_and_b32 s31, s31, 1","s_lshl_b32 s31, s31, 10","s_add_u32 s37, s37, s31")
    for it in range(3):
        k(f"s_waitcnt vmcnt({4 if it else 4})" if it==0 else f"s_waitcnt vmcnt({4})")
        for t in range(2):
            k(f"ds_read_b64_tr_b16 {vr(8+8*it+4*t,2)}, v3 offset:{2048*it+8*t}",f"ds_read_b64_tr_b16 {vr(10+8*it+4*t,2)}, v3 offset:{2048*it+8*t+256}")
        k("s_lshr_b32 s39, s32, 5","s_bfe_u32 s40, s32, 0x40001",f"s_mul_i32 s40, s40, {16*24576}","s_and_b32 s41, s32, 1","s_mul_i32 s41, s41, 3","s_add_u32 s39, s39, s41","s_lshl_b32 s39, s39, 12",
          "s_add_u32 s39, s39, s40","s_add_u32 s39, s39, s37","s_add_u32 s32, s32, 1","s_waitcnt lgkmcnt(0)")
        for t in range(2): k(f"buffer_store_dwordx4 {vr(8+8*it+4*t,4)}, v4, s[12:15], s39 offen offset:{2048*t}{G.STF}")
    k("s_cmp_lg_u32 s2, 0",f"s_cbranch_scc1 {k.lab('end')}",srd(8,52,0,7168),srd(12,54,0,2048),"v_lshlrev_b32 v4, 7, v0",
      "buffer_load_dword v5, v4, s[8:11], 0 offen","buffer_load_dword v6, v4, s[12:15], 0 offen","s_waitcnt vmcnt(0)")
    k.label("end"); k("s_endpgm")
    return k
```

```python
from lib import *
from gemm import *
import gemm as G
def k_attn(km=None):
    mega=km is not None; P=G.LDP if mega else ''
    k=begin(km,"attn",163840)
    Q=8; NM=24; SB_=56; O=120; L=152; KF=160; VF=176; SEL=192; IDX=196; VC,VN,VL,VP=2,3,4,201
    S_HEAD,S_QT,S_KH,S_QG,S_NMAX,S_GO,S_M0,S_CUR,S_NXT=31,32,33,35,36,39,40,41,42
    k(
      f"s_load_dwordx2 s[48:49], s[0:1], {A_W1}",f"s_load_dwordx2 s[50:51], s[0:1], {A_W2}",
      "s_and_b32 s3, s2, 7","s_lshr_b32 s37, s2, 3",
      f"s_lshl_b32 s{S_HEAD}, s3, 2","s_lshr_b32 s3, s37, 3",f"s_add_u32 s{S_HEAD}, s{S_HEAD}, s3",
      f"s_and_b32 s{S_QG}, s{S_WAVE}, 3",f"s_lshr_b32 s{S_KH}, s{S_WAVE}, 2",
      f"s_and_b32 s{S_QT}, s37, 7",f"s_lshl_b32 s{S_QT}, s{S_QT}, 2",f"s_add_u32 s{S_QT}, s{S_QT}, s{S_QG}",f"s_lshl_b32 s{S_QT}, s{S_QT}, 1",
      f"v_lshlrev_b32 v{VL}, 4, v0",
      f"v_and_b32 v{VP}, 0x23, v0","v_bfe_u32 v5, v0, 2, 1",f"v_lshl_or_b32 v{VP}, v5, 4, v{VP}","v_bfe_u32 v5, v0, 3, 2",f"v_lshl_or_b32 v{VP}, v5, 2, v{VP}",f"v_lshlrev_b32 v{VP}, 4, v{VP}",f"s_mov_b32 s{S_NMAX}, 1","s_waitcnt lgkmcnt(0)",
      srd(8,4,WS_QF,0x400000),srd(12,4,WS_KV,0x800000),srd(16,4,WS_OF,0x400000))
    stamp(k,1,True)
    if mega:
        fsrd(k); k(f"s_lshl_b32 s43, s{S_HEAD}, 12")
        if G.GATE: k(f"s_cmp_lg_u32 s{S_WAVE}, 0",f"s_cbranch_scc1 {k.lab('pdx')}")
        poll(k,"x",43,32,1)
        if G.GATE: k("s_waitcnt vmcnt(0)","s_barrier")
    k(f"s_lshl_b32 s37, s{S_HEAD}, 6",f"s_add_u32 s37, s37, s{S_QT}","s_lshl_b32 s37, s37, 11")
    for j in range(4): k(f"buffer_load_dwordx4 {vr(Q+4*j,4)}, v{VL}, s[8:11], s37 offen offset:{1024*j}{P}")
    k.label("retry")
    k(f"s_lshl_b32 s38, s{S_HEAD}, 18")
    for j in range(2): k(f"buffer_load_dwordx4 {vr(KF+4*j,4)}, v{VL}, s[12:15], s38 offen offset:{1024*j}{P}")
    k(f"s_lshl_b32 s{S_GO}, s{S_KH}, 5",f"s_add_u32 s{S_GO}, s{S_GO}, s{S_QG}",f"s_lshl_b32 s{S_GO}, s{S_GO}, 12",f"s_add_u32 s{S_GO}, s{S_GO}, s38",
      f"s_lshl_b32 s{S_M0}, s{S_WAVE}, 12")
    def dma():
        return [f"buffer_load_dwordx4 v{VL}, s[12:15], s{S_GO} offen offset:{1024*j}{P} lds" for j in range(4)]+[f"s_add_u32 s{S_GO}, s{S_GO}, 16384"]
    k(f"s_mov_b32 m0, s{S_M0}","s_nop 0",dma(),f"s_add_u32 m0, s{S_M0}, 32768","s_nop 0",dma())
    SJ_SRC,SJ_STEP,SJ_DST,SJ_DA,SJ_DB,SJ_DT,SJ_RS,SJ_LDS=70,71,72,73,74,75,76,77
    VS,VT1,VT2,WF,CSA,ONE=198,199,200,204,212,220
    k("s_cmp_lt_u32 s2, 112",f"s_cbranch_scc0 {k.lab('sj2')}",
      srd(20,48,0,1024*7168),srd(24,4,WS_W1,1024*7168),
      f"s_mul_i32 s37, s2, 2341","s_lshr_b32 s37, s37, 16","s_mul_i32 s43, s37, 28","s_sub_u32 s43, s2, s43","s_lshl_b32 s43, s43, 2",f"s_add_u32 s43, s43, s{S_QG}",
      f"s_mul_i32 s{SJ_SRC}, s37, {256*7168}","s_lshl_b32 s44, s43, 6",f"s_add_u32 s{SJ_SRC}, s{SJ_SRC}, s44",f"s_mov_b32 s{SJ_STEP}, {32*7168}",f"s_mov_b32 s{SJ_RS}, 7168",
      f"s_mul_i32 s78, s37, {3584*4}","s_lshl_b32 s44, s43, 7","s_add_u32 s78, s78, s44",
      "s_mul_i32 s44, s43, 9363","s_lshr_b32 s44, s44, 16","s_mul_i32 s45, s44, 7","s_sub_u32 s45, s43, s45",
      f"s_mul_i32 s{SJ_DST}, s44, {16*28672}",f"s_mul_i32 s44, s37, {4*28672}",f"s_add_u32 s{SJ_DST}, s{SJ_DST}, s44",
      "s_lshl_b32 s44, s45, 1","s_cmp_gt_u32 s45, 3","s_cselect_b32 s46, 1, 0","s_sub_u32 s44, s44, s46","s_lshl_b32 s44, s44, 11",f"s_add_u32 s{SJ_DST}, s{SJ_DST}, s44",
      "s_cmp_eq_u32 s45, 3",f"s_cselect_b32 s{SJ_DT}, 7, 1","s_cselect_b32 s47, 1, 0",f"s_lshl_b32 s{SJ_DT}, s{SJ_DT}, 11",f"s_mov_b32 s{SJ_DA}, 1024",f"s_mov_b32 s{SJ_DB}, {28672-1024}","s_mov_b32 s44, 0",f"s_branch {k.lab('sjd')}")
    k.label("sj2")
    k(srd(20,50,0,3584*2048),srd(24,4,WS_W2,3584*2048),"s_sub_u32 s37, s2, 112",f"s_mov_b32 s45, {56*8192}","s_mov_b32 s44, 0")
    k(f"s_lshl_b32 s{SJ_SRC}, s37, 16",f"s_lshl_b32 s43, s{S_QG}, 9",f"s_add_u32 s{SJ_SRC}, s{SJ_SRC}, s43",f"s_mov_b32 s{SJ_STEP}, 64",f"s_mov_b32 s{SJ_RS}, 2048",
      f"s_lshl_b32 s43, s{S_QG}, 2",f"s_mul_i32 s{SJ_DST}, s43, s45","s_lshr_b32 s43, s37, 1","s_lshl_b32 s43, s43, 13",f"s_add_u32 s{SJ_DST}, s{SJ_DST}, s43",
      "s_and_b32 s43, s37, 1","s_lshl_b32 s43, s43, 10",f"s_add_u32 s{SJ_DST}, s{SJ_DST}, s43",f"s_mov_b32 s{SJ_DT}, 2048",f"s_mov_b32 s{SJ_DA}, 4096",f"s_sub_u32 s{SJ_DB}, s45, 4096","s_mov_b32 s78, 0","s_mov_b32 s47, 0")
    k.label("sjd")
    relayout_addr(k,VS,VT1,SJ_RS,None,None)
    k(f"s_lshl_b32 s{SJ_LDS}, s{S_QG}, 14",f"s_add_u32 s{SJ_LDS}, s{SJ_LDS}, 98304","s_lshr_b32 s45, 512, s44","s_lshl_b32 s46, 256, s44",
      "v_lshrrev_b32 v7, 5, v0",f"v_lshl_add_u32 v{VT1}, v7, 10, v{VT1}","v_bfe_u32 v7, v0, 4, 1","v_mul_lo_u32 v7, s45, v7",f"v_add3_u32 v{VT1}, v{VT1}, v7, s{SJ_LDS}","v_and_b32 v7, 3, v0","v_lshlrev_b32 v7, 3, v7","v_mul_lo_u32 v7, s47, v7",f"v_sub_u32 v{VT1}, v{VT1}, v7",f"v_add_u32 v{VT2}, s46, v{VT1}",
      "s_lshl_b32 s85, s47, 1","s_lshl_b32 s85, 8, s85",f"v_add_u32 v{VT1+3}, s85, v{VT1}",f"v_add_u32 v{VT2+3}, s85, v{VT2}",
      f"s_lshl_b32 s{SJ_RS}, s{SJ_RS}, 4",srd(80,4,WS_CS,4*3584*4))
    for i in range(8): k(f"v_mov_b32 v{CSA+i}, 0")
    for i in range(4): k(f"v_mov_b32 v{ONE+i}, 0x3f803f80")
    def sj_rd(off):
        o=[]
        for t in range(2): o+=[f"ds_read_b64_tr_b16 {vr(WF+4*t,2)}, v{VT1+3*t} offset:{off}",f"ds_read_b64_tr_b16 {vr(WF+4*t+2,2)}, v{VT2+3*t} offset:{off}"]
        return o
    def sj_st(adv):
        o=[f"s_add_u32 s37, s{SJ_DST}, s{SJ_DT}",f"buffer_store_dwordx4 {vr(WF,4)}, v{VL}, s[24:27], s{SJ_DST} offen{G.STW}",f"buffer_store_dwordx4 {vr(WF+4,4)}, v{VL}, s[24:27], s37 offen{G.STW}"]
        for t in range(2): o+=[f"v_mfma_f32_16x16x32_bf16 {vr(CSA+4*t,4)}, {vr(WF+4*t,4)}, {vr(ONE,4)}, {vr(CSA+4*t,4)}"]
        o+=[f"s_add_u32 s{SJ_DST}, s{SJ_DST}, s{SJ_DA}",f"s_mov_b32 s37, s{SJ_DA}",f"s_mov_b32 s{SJ_DA}, s{SJ_DB}",f"s_mov_b32 s{SJ_DB}, s37"]
        if adv: o+=[f"v_add_u32 v{r}, 4096, v{r}" for r in (VT1,VT2,VT1+3,VT2+3)]
        return o
    def sj_load():
        return [f"s_mov_b32 m0, s{SJ_LDS}",f"s_add_u32 s37, s{SJ_SRC}, s{SJ_RS}",f"buffer_load_dwordx4 v{VS}, s[20:23], s{SJ_SRC} offen{G.SJP} lds",f"s_add_u32 m0, s{SJ_LDS}, 1024",
                f"s_add_u32 s{SJ_SRC}, s{SJ_SRC}, s{SJ_STEP}",f"buffer_load_dwordx4 v{VS}, s[20:23], s37 offen{G.SJP} lds",f"s_add_u32 s{SJ_LDS}, s{SJ_LDS}, 2048"]
    S_MODE,S_MT=79,84
    def site(n,mode,code):
        l=k.lab(f"h{n}_{mode}")
        return [f"s_cmp_eq_u32 s{S_MODE}, {mode}",f"s_cbranch_scc0 {l}"]+code+[l+":"]
    k(f"v_mov_b32 v{IDX}, 0xdddddddd","v_bfe_u32 v5, v0, 2, 1","v_cmp_eq_u32 vcc, 0, v5","v_mov_b32 v6, 0x3f803f80","s_nop 0",
      f"v_cndmask_b32 v{SEL}, 0, v6, vcc",f"v_cndmask_b32 v{SEL+1}, 0, v6, vcc",f"v_sub_u32 v{SEL+2}, v6, v{SEL}",f"v_sub_u32 v{SEL+3}, v6, v{SEL}",
      f"s_lshl_b32 s37, s{S_KH}, 14",f"v_add_u32 v5, s37, v{VP}",f"v_mov_b32 v{VC}, v5",f"v_add_u32 v{VN}, 32768, v5",f"s_mov_b32 s{S_CUR}, 0",
      "v_mov_b32 v6, 0xff800000","v_mov_b32 v7, 0xff800000")
    for i in range(40): k(f"v_mov_b32 v{O+i}, 0")
    for i in range(16): k(f"v_mov_b32 v{SB_+48+i}, 0")
    for i in range(16): k(f"v_mov_b32 v{VF+i}, 0")
    k(f"s_mov_b32 s{S_CNT}, s{S_NMAX}","s_waitcnt vmcnt(8)")
    k.label("mx")
    for u in range(2):
        k(f"v_mfma_f32_32x32x16_bf16 {vr(SB_+16*u,16)}, {vr(KF,4)}, {vr(Q+8*u,4)}, 0",f"v_mfma_f32_32x32x16_bf16 {vr(SB_+16*u,16)}, {vr(KF+4,4)}, {vr(Q+8*u+4,4)}, {vr(SB_+16*u,16)}")
    k("s_nop 15")
    for u in range(2):
        for i in range(8): k(f"v_max3_f32 v{6+u}, v{SB_+16*u+2*i}, v{SB_+16*u+2*i+1}, v{6+u}")
    k(f"s_sub_u32 s{S_CNT}, s{S_CNT}, 1",f"s_cmp_eq_u32 s{S_CNT}, 0",f"s_cbranch_scc1 {k.lab('mxd')}","s_add_u32 s38, s38, 4096")
    for j in range(2): k(f"buffer_load_dwordx4 {vr(KF+4*j,4)}, v{VL}, s[12:15], s38 offen offset:{1024*j}{P}")
    k("s_waitcnt vmcnt(0)",f"s_branch {k.lab('mx')}")
    k.label("mxd")
    k(f"v_mov_b32 v{NM}, v6",f"v_mov_b32 v{NM+16}, v7","s_nop 1",f"v_permlane32_swap_b32 v6, v{NM}",f"v_permlane32_swap_b32 v7, v{NM+16}","s_nop 1",
      f"v_max_f32 v6, v6, v{NM}",f"v_max_f32 v7, v7, v{NM+16}")
    for u in range(2):
        for i in range(16): k(f"v_sub_f32 v{NM+16*u+i}, 0, v{6+u}")
    k(f"s_cmp_eq_u32 s{S_KH}, 0",f"s_cbranch_scc1 {k.lab('w4')}","s_waitcnt vmcnt(0)"); k.label("w4")
    k("s_waitcnt vmcnt(4)","s_barrier"); stamp(k,2)
    def rdK(t):
        a,o=(VC,t*4096) if t<4 else (VN,(t-4)*4096)
        return [f"ds_read_b128 {vr(KF+8*(t%2)+4*j,4)}, v{a} offset:{o+1024*j}" for j in range(2)]
    def rdV(t): return [f"ds_read_b128 {vr(VF+8*(t%2)+4*j,4)}, v{VC} offset:{t*4096+2048+1024*j}" for j in range(2)]
    def qk(n):
        t,u=n//2,n%2; b=SB_+16*(n%4); kf=KF+8*(t%2)
        return [f"v_mfma_f32_32x32x16_bf16 {vr(b,16)}, {vr(kf,4)}, {vr(Q+8*u,4)}, {vr(NM+16*u,16)}",
                f"v_mfma_f32_32x32x16_bf16 {vr(b,16)}, {vr(kf+4,4)}, {vr(Q+8*u+4,4)}, {vr(b,16)}"]
    def pv(n):
        t,u=n//2,n%2; b=SB_+16*(n%4); vf=VF+8*(t%2)
        return [f"v_smfmac_f32_32x32x32_bf16 {vr(O+16*u,16)}, {vr(vf+4*j,4)}, {vr(b+8*j,8)}, v{IDX}" for j in range(2)]
    def sm(n):
        u=n%2; b=SB_+16*(n%4)
        return [f"v_smfmac_f32_16x16x64_bf16 {vr(L+4*u,4)}, {vr(SEL,4)}, {vr(b+8*j,8)}, v{IDX}" for j in range(2)]
    k(rdK(0),rdK(1),"s_waitcnt lgkmcnt(2)",qk(0),qk(1),f"s_mov_b32 s{S_CNT}, 0","s_nop 7","s_nop 1")
    k(f"s_mov_b32 s{S_MT}, 0x00111111",f"s_cmp_eq_u32 s{S_KH}, 0",f"s_cbranch_scc1 {k.lab('mt')}",f"s_mov_b32 s{S_MT}, 0x33332222","s_cmp_lt_u32 s2, 224",f"s_cselect_b32 s{S_MT}, s{S_MT}, 0x44444444"); k.label("mt")
    if G.APRIO: k(f"s_cmp_eq_u32 s{S_KH}, {G.APRIO-1}",f"s_cbranch_scc0 {k.lab('np')}","s_setprio 1"); k.label("np")
    k(".p2align 3"); k.label("loop")
    for n in range(8):
        b=SB_+16*(n%4); e=[f"v_exp_f32 v{b+i}, v{b+i}" for i in range(16)]
        a,p,s=qk(n+2),pv(n-1),sm(n-1)
        rd=rdV(n//2) if n%2==0 else rdK(n//2+2)
        hk=[]
        if n==0: k(f"s_and_b32 s{S_MODE}, s{S_MT}, 15",f"s_lshr_b32 s{S_MT}, s{S_MT}, 4")
        if n==4 and not G.XNB:
            l=k.lab("nw")
            k(f"s_cmp_ge_u32 s{S_MODE}, 2",f"s_cbranch_scc1 {l}","s_waitcnt vmcnt(0)",l+":","s_barrier")
        if n in (4,5) and not G.XND:
            if n==4: pre=[f"s_add_u32 s37, s{S_CUR}, 65536","s_sub_u32 s38, s37, 98304","s_cmp_ge_u32 s37, 98304","s_cselect_b32 s37, s38, s37",f"s_add_u32 m0, s37, s{S_M0}","s_nop 0"]
            if n==5: pre=["s_add_u32 m0, m0, 16384",f"s_add_u32 s{S_GO}, s{S_GO}, 131072"]
            ld=[f"buffer_load_dwordx4 v{VL}, s[12:15], s{S_GO} offen offset:{1024*j}{P} lds" for j in range(4)]
            rd[0]=[rd[0]]+site(n+10,1,pre+ld[:2])
            hk+=site(n,1,ld[2:]+([f"s_sub_u32 s{S_GO}, s{S_GO}, {131072-16384}"] if n==5 else []))
        if G.SJ:
            if n in G.SJL and G.SJ&1: hk+=site(n,2,sj_load())
            if n%4==0: hk+=site(n,3,(["s_waitcnt vmcnt(12)"] if n==0 else [])+sj_rd(2048*(n//4)))
            if n%4==2 and G.SJ&2: hk+=site(n,3,sj_st(n==6))
        rd=[rd[0],[rd[1]]+hk]
        if G.XNR: rd=[[],[]]
        W="s_waitcnt lgkmcnt(0)"
        if G.AORD==0: k(e[0:2],W,a[0],rd,e[2:5],p[0],e[5:7],s[0],e[7:10],a[1],e[10:12],p[1],e[12:15],s[1],e[15])
        if G.AORD==1: k(e[0:2],W,a[0],rd,e[2:5],p[0],e[5:8],s[0],e[8:9],a[1],e[9:12],p[1],e[12:15],s[1],e[15])
        if G.AORD==2: k(W,a[0],e[0:3],a[1],rd,e[3:6],p[0],e[6:9],s[0],e[9:11],p[1],e[11:14],s[1],e[14:16])
        if G.AORD==3: k(W,s[0],a[0],rd[0],e[0:4],p[0],e[4:8],s[1],a[1],rd[1],e[8:12],p[1],e[12:16])
        if G.AORD==4: k(W,a[0],e[0:4],p[0],rd[0],e[4:7],s[0],e[7:8],a[1],e[8:12],p[1],rd[1],e[12:15],s[1],e[15:16])
    k(f"s_add_u32 s{S_CUR}, s{S_CUR}, 32768",f"s_cmp_ge_u32 s{S_CUR}, 98304",f"s_cselect_b32 s{S_CUR}, 0, s{S_CUR}",
      f"s_add_u32 s37, s{S_CUR}, 32768","s_cmp_ge_u32 s37, 98304","s_cselect_b32 s37, 0, s37",
      f"v_mov_b32 v{VC}, v{VN}",f"v_add_u32 v{VN}, s37, v5",
      f"s_add_u32 s{S_CNT}, s{S_CNT}, 1",f"s_cmp_lt_u32 s{S_CNT}, 8",f"s_cbranch_scc1 {k.lab('loop')}")
    k(pv(7),sm(7),"s_waitcnt lgkmcnt(0)","s_barrier"); stamp(k,3)
    k("s_cmp_lt_u32 s2, 112",f"s_cbranch_scc0 {k.lab('nocs')}",f"s_cmp_eq_u32 s{S_KH}, 1",f"s_cbranch_scc0 {k.lab('nocs')}","v_lshrrev_b32 v7, 4, v0","s_sub_u32 s37, 5, s47","v_lshlrev_b32 v7, s37, v7","s_lshl_b32 s85, s85, 1","s_add_u32 s85, s85, s78","s_mov_b32 exec_lo, 0x10001","s_mov_b32 exec_hi, 0x10001",
      f"buffer_store_dwordx4 {vr(CSA,4)}, v7, s[80:83], s78 offen sc1",f"buffer_store_dwordx4 {vr(CSA+4,4)}, v7, s[80:83], s85 offen sc1","s_mov_b64 exec, -1")
    k.label("nocs")
    k(f"s_mul_i32 s37, s{S_WAVE}, 5120",f"s_xor_b32 s38, s{S_WAVE}, 4","s_mul_i32 s38, s38, 5120",f"v_add_u32 v6, s37, v{VL}",f"v_add_u32 v7, s38, v{VL}","s_nop 7",
      f"s_cmp_eq_u32 s{S_KH}, 0",f"s_cbranch_scc1 {k.lab('kh0')}")
    for j in range(4): k(f"ds_write_b128 v6, {vr(O+4*j,4)} offset:{1024*j}")
    k(f"ds_write_b128 v6, {vr(L,4)} offset:4096")
    k("s_nop 1")
    for i in range(16): k(f"v_mov_b32 v{O+i}, v{O+16+i}")
    k(f"v_mov_b32 v{L}, v{L+4}",f"s_branch {k.lab('khd')}")
    k.label("kh0")
    for j in range(4): k(f"ds_write_b128 v6, {vr(O+16+4*j,4)} offset:{1024*j}")
    k(f"ds_write_b128 v6, {vr(L+4,4)} offset:4096")
    k.label("khd")
    k("v_mov_b32 v1, 0","v_mov_b32 v197, 163776","ds_write_b32 v197, v1","s_waitcnt lgkmcnt(0)","s_barrier")
    for j in range(4): k(f"ds_read_b128 {vr(SB_+4*j,4)}, v7 offset:{1024*j}")
    k(f"ds_read_b128 {vr(SB_+16,4)}, v7 offset:4096","s_waitcnt lgkmcnt(0)",f"v_add_f32 v{L}, v{L}, v{SB_+16}",f"v_rcp_f32 v{L+2}, v{L}")
    for i in range(8): k(f"v_pk_add_f32 {vr(O+2*i,2)}, {vr(O+2*i,2)}, {vr(SB_+2*i,2)}")
    k(f"v_mov_b32 v{L+3}, v{L+2}")
    for i in range(8): k(f"v_pk_mul_f32 {vr(O+2*i,2)}, {vr(O+2*i,2)}, {vr(L+2,2)}")
    k(f"s_cmp_lg_u32 s{S_NMAX}, 1",f"s_cbranch_scc1 {k.lab('ok')}")
    for i in range(16): k(f"v_fma_f32 v{L}, v{O+i}, 0, v{L}")
    k(f"v_mov_b32 v6, {f2u(2.0**60)}",f"v_cmp_nlt_f32 vcc, v{L}, v6","s_nop 4","s_cmp_eq_u64 vcc, 0",f"s_cbranch_scc1 {k.lab('ok')}",
      "v_mov_b32 v1, 1","ds_write_b32 v197, v1")
    k.label("ok")
    k("s_waitcnt vmcnt(0) lgkmcnt(0)","s_barrier","ds_read_b32 v1, v197","s_waitcnt lgkmcnt(0)","v_readfirstlane_b32 s37, v1","s_nop 3","s_cmp_eq_u32 s37, 0",f"s_cbranch_scc1 {k.lab('store')}",
      f"s_mov_b32 s{S_NMAX}, 64","s_barrier",f"s_branch {k.lab('retry')}")
    k.label("store")
    pack(k,SB_,O)
    k(f"s_add_u32 s37, s{S_QT}, s{S_KH}","s_lshr_b32 s38, s37, 2","s_lshl_b32 s38, s38, 18","s_and_b32 s37, s37, 3","s_lshl_b32 s37, s37, 12","s_add_u32 s37, s37, s38",
      f"s_lshr_b32 s38, s{S_HEAD}, 1","s_lshl_b32 s38, s38, 14","s_add_u32 s37, s37, s38",f"s_and_b32 s38, s{S_HEAD}, 1","s_lshl_b32 s38, s38, 10","s_add_u32 s37, s37, s38",
      "v_and_b32 v6, 15, v0","v_lshlrev_b32 v6, 4, v6","v_bfe_u32 v7, v0, 4, 1","v_lshl_add_u32 v6, v7, 11, v6","v_lshrrev_b32 v7, 5, v0","v_lshl_add_u32 v6, v7, 8, v6")
    for j in range(2): k(f"buffer_store_dwordx4 {vr(SB_+4*j,4)}, v6, s[16:19], s37 offen offset:{512*j}{G.STF}")
    if mega:
        k("s_setprio 0",f"s_add_u32 s43, s{S_QT}, s{S_KH}","s_lshl_b32 s43, s43, 5",f"s_add_u32 s43, s43, s{S_HEAD}","s_lshl_b32 s43, s43, 7",f"s_add_u32 s43, s43, {F2}"); signal(k,43)
        k(f"s_cmp_eq_u32 s{S_WAVE}, 0",f"s_cbranch_scc0 {k.lab('nsj')}","s_lshl_b32 s43, s2, 2",f"s_add_u32 s43, s43, {F5}",
          "s_mov_b64 exec, 1",f"buffer_store_dword v241, v240, s[{SF}:{SF+3}], s43 offen sc1","s_mov_b64 exec, -1")
        k.label("nsj")
    if G.STAMP and not mega: k("s_waitcnt vmcnt(0)")
    stamp(k,4)
    return k if mega else finish(k)
```

```python
from lib import *
WS_XN=0x0; WS_QF=0x400000; WS_KV=0x800000; WS_OF=0x1000000; WS_HF=0x1400000; WS_GF=0x1800000; WS_ST=0x2600000; WS_CS=0x2700000
WS_WQ=0x2800000; WS_WO=0x3200000; WS_W1=0x3400000; WS_W2=0x3c00000
import os
if os.environ.get('OVL','0')=='1': WS_OF=0; WS_GF=0; WS_HF=WS_WQ; WS_WO=WS_WQ+0x400000
P0=2; AUX6=4; R6=2; MEGA=1; GATE=1; LDP=' sc1'; SLP=6
WS_FL=0x4400000; F1,F2,F3,F4,F5=0,0x20000,0x60000,0x80000,0xa0000; FLN=0xa0400; SF=88; S_W8=29
AORD=4; APRIO=2; SJL=(6,7); SJP=' nt'; XNB=0; XND=0; XNR=0; SJ=3
STW=' sc1'
STF=' sc1'
A_X,A_WQKV,A_WO,A_W1,A_B1,A_W2,A_B2,A_OUT,A_DBG,A_WS=0,8,16,32,40,48,56,64,72,80
S_WAVE,S_MI,S_NI,S_SLOT,S_CNT,S_XO,S_WO,S_T,S_T2,S_WM,S_WN=30,31,32,33,34,35,36,37,38,39,40
SX,SW,SO,SA,SB,SC=8,12,16,20,24,44
P_WS,P_W,P_A,P_B=4,6,48,50
STAMP=False
KID={"prep":0,"qkv":1,"attn":2,"oproj":3,"ffn1":4,"ffn2":5}
def stamp0(k):
    if STAMP: k("s_memrealtime s[66:67]","s_memtime s[68:69]")
def stamp(k,idx,pre=False):
    if not STAMP: return
    base=0x2f00000+KID[k.pre]*65536
    k("s_memtime s[60:61]","s_memrealtime s[64:65]","s_lshl_b32 s62, s2, 7",f"s_add_u32 s62, s62, {base+4*idx}","s_waitcnt lgkmcnt(0)",
      "v_mov_b32 v255, s62","v_mov_b32 v254, s60","v_mov_b32 v253, s64","global_store_dword v255, v254, s[4:5] offset:64","global_store_dword v255, v253, s[4:5]")
    if pre: k("v_mov_b32 v254, s68","v_mov_b32 v253, s66","global_store_dword v255, v254, s[4:5] offset:60","global_store_dword v255, v253, s[4:5] offset:-4")

class Cfg: pass
def begin(k,name,lds):
    first = k is None or not k.L
    if k is None: k=K(name+"_kernel",256,512,lds)
    k.pre=name; stamp0(k)
    if first:
        k("s_cmp_ge_u32 s2, 256",f"s_cbranch_scc1 {k.name}_exit",f"s_load_dwordx2 s[{P_WS}:{P_WS+1}], s[0:1], {A_WS}",
          "v_lshrrev_b32 v1, 6, v0","v_and_b32 v0, 63, v0","s_nop 0",f"v_readfirstlane_b32 s{S_W8}, v1","s_nop 1")
    k(f"s_mov_b32 s{S_WAVE}, s{S_W8}")
    return k
def finish(k):
    k.L.append(f"{k.name}_exit:"); k("s_endpgm"); k(k.ool); return k
def fsrd(k): k(srd(SF,P_WS,WS_FL,FLN))
def poll(k,tag,soff,nlanes,expect,x4=False,v=240):
    k(f"v_min_u32 v{v+4}, {nlanes-1}, v0",f"v_lshlrev_b32 v{v+4}, {4 if x4 else 7}, v{v+4}","s_mov_b32 s87, 0x40000",f"s_mov_b32 s86, {hex(expect)}")
    k.label("pl"+tag)
    if x4: k(f"buffer_load_dwordx4 {vr(v,4)}, v{v+4}, s[{SF}:{SF+3}], s{soff} offen sc1","s_waitcnt vmcnt(0)",f"v_and_b32 v{v}, v{v}, v{v+1}",f"v_and_b32 v{v+2}, v{v+2}, v{v+3}",f"v_and_b32 v{v}, v{v}, v{v+2}")
    else: k(f"buffer_load_dword v{v}, v{v+4}, s[{SF}:{SF+3}], s{soff} offen sc1","s_waitcnt vmcnt(0)")
    k(f"v_cmp_ne_u32 vcc, s86, v{v}","s_sub_u32 s87, s87, 1","s_nop 3",f"s_cbranch_vccz {k.lab('pd'+tag)}",f"s_sleep {SLP}","s_cmp_lg_u32 s87, 0",f"s_cbranch_scc1 {k.lab('pl'+tag)}")
    k.label("pd"+tag)
def signal(k,soff,n=1,v=240,byte=False):
    k(f"v_lshlrev_b32 v{v}, 7, v0",f"v_mov_b32 v{v+1}, 1","s_waitcnt vmcnt(0)",f"s_mov_b64 exec, {(1<<n)-1}",
      f"buffer_store_{'byte' if byte else 'dword'} v{v+1}, v{v}, s[{SF}:{SF+3}], s{soff} offen sc1","s_mov_b64 exec, -1")

def wgmap(k,kind):
    if kind=="8x4":
        k(f"s_and_b32 s{S_MI}, s{S_T}, 1",f"s_lshl_b32 s{S_MI}, s{S_MI}, 3",f"s_and_b32 s3, s{S_T2}, 7",f"s_add_u32 s{S_MI}, s{S_MI}, s3",
          f"s_lshr_b32 s{S_NI}, s{S_T}, 1",f"s_lshl_b32 s{S_NI}, s{S_NI}, 2",f"s_lshr_b32 s3, s{S_T2}, 3",f"s_add_u32 s{S_NI}, s{S_NI}, s3")
    else:
        k(f"s_and_b32 s{S_MI}, s{S_T}, 3",f"s_lshl_b32 s{S_MI}, s{S_MI}, 2",f"s_and_b32 s3, s{S_T2}, 3",f"s_add_u32 s{S_MI}, s{S_MI}, s3",
          f"s_lshr_b32 s{S_NI}, s{S_T}, 2",f"s_lshl_b32 s{S_NI}, s{S_NI}, 3",f"s_lshr_b32 s3, s{S_T2}, 2",f"s_add_u32 s{S_NI}, s{S_NI}, s3")
def gemm(name, c, km=None):
    TM,TN,WM,WN,NS,KD=c.TM,c.TN,c.WM,c.WN,c.NS,c.K
    R=c.R; NT=TN*WN; WB=NT*2048; SG1=16384+WB; STG=SG1*R; S1=KD//64; S=S1//R; NWL=NT//2; LW=(4+NWL)*R
    XTRA=147456; mega=km is not None
    k=begin(km,name,max(NS*STG,XTRA+c.lds_extra if c.lds_extra else 0))
    if c.aarg is not None: k(f"s_load_dwordx2 s[{P_A}:{P_A+1}], s[0:1], {c.aarg}")
    if c.barg is not None: k(f"s_load_dwordx2 s[{P_B}:{P_B+1}], s[0:1], {c.barg}")
    k(f"s_and_b32 s{S_T}, s2, 7",f"s_lshr_b32 s{S_T2}, s2, 3")
    wgmap(k,c.map)
    k("v_lshlrev_b32 v2, 4, v0",f"s_cmp_lt_u32 s{S_WAVE}, 4",f"s_cbranch_scc1 {k.lab('cons')}")
    k(f"s_sub_u32 s{S_WAVE}, s{S_WAVE}, 4",f"s_lshl_b32 s41, s{S_WAVE}, 12",f"s_mul_i32 s42, s{S_WAVE}, {NWL*1024}",
      f"s_mul_i32 s{S_XO}, s{S_MI}, {KD*256}",f"s_add_u32 s{S_XO}, s{S_XO}, s41",
      f"s_mul_i32 s{S_WO}, s{S_NI}, {S1*WB}",f"s_add_u32 s{S_WO}, s{S_WO}, s42","s_add_u32 s42, s42, 16384",f"s_mov_b32 s{S_SLOT}, 0",
      "s_waitcnt lgkmcnt(0)",srd(SX,P_WS,c.xoff,2048*KD*2),srd(SW,P_WS,c.woff,16*S1*WB))
    dep=mega and c.xflag is not None
    P=LDP if dep else ''
    def issue(w=True,x=True): return [issue1(w,x) for r in range(R)]
    def issue1(w,x):
        o=[]
        if w:
            o+=[f"s_add_u32 m0, s{S_SLOT}, s42",f"s_add_u32 s{S_T2}, s{S_WO}, 4096"]
            for j in range(NWL):
                if j==4: o+=["s_add_u32 m0, m0, 4096","s_nop 0"]
                o+=[f"buffer_load_dwordx4 v2, s[{SW}:{SW+3}], s{S_WO if j<4 else S_T2} offen offset:{(j%4)*1024}{P} lds"]
            o+=[f"s_add_u32 s{S_WO}, s{S_WO}, {WB}"]
        if x:
            o+=[f"s_add_u32 m0, s{S_SLOT}, s41","s_nop 0"]
            for u in range(4): o+=[f"buffer_load_dwordx4 v2, s[{SX}:{SX+3}], s{S_XO} offen offset:{u*1024}{P} lds"]
            o+=[f"s_add_u32 s{S_XO}, s{S_XO}, 16384"]
        o+=[f"s_add_u32 s{S_SLOT}, s{S_SLOT}, {SG1}",f"s_cmp_ge_u32 s{S_SLOT}, {NS*STG}",f"s_cselect_b32 s{S_SLOT}, 0, s{S_SLOT}"]
        return o
    def rep(tag,n,code): k(f"s_mov_b32 s{S_CNT}, {n}"); k.label(tag); k(code,f"s_sub_u32 s{S_CNT}, s{S_CNT}, 1",f"s_cmp_lg_u32 s{S_CNT}, 0",f"s_cbranch_scc1 {k.lab(tag)}")
    if STAMP: k("s_memtime s[70:71]")
    if dep:
        fsrd(k)
        if c.wflag: k(f"s_mov_b32 s43, {c.wflag[0]}"); poll(k,"w",43,c.wflag[1],1,c.wflag[2])
        rep("lpw",(NS-1)*R,issue1(True,False))
        k(f"s_lshl_b32 s43, s{S_MI}, 2",f"s_add_u32 s43, s43, s{S_WAVE}",f"s_lshr_b32 s43, s43, {c.xflag[2]}",f"s_mul_i32 s43, s43, {c.xflag[1]*128}",f"s_add_u32 s43, s43, {c.xflag[0]}",f"s_mov_b32 s{S_SLOT}, 0")
        if c.gate: k("s_barrier")
        poll(k,"x",43,c.xflag[1],1)
        if STAMP: k("s_memtime s[72:73]")
        rep("lpx",(NS-1)*R,issue1(False,True))
        if STAMP: k("s_memtime s[74:75]")
        for j in range(NS-1): k(f"s_waitcnt vmcnt({(NS-2-j)*4*R+j*LW})","s_barrier",issue())
        P0=0
    else:
        P0=min(c.P0,NS-1)
        rep("lpro",P0,issue())
        if STAMP: k("s_memtime s[72:73]",f"s_waitcnt vmcnt({(P0-1)*LW})","s_memtime s[74:75]")
        for j in range(NS-1-P0): k(f"s_waitcnt vmcnt({(P0-1+j)*LW})","s_barrier",issue(),issue())
    k(f"s_mov_b32 s{S_CNT}, {S-(NS-1)-(NS-1-P0)}"); k.label("lloop")
    k(f"s_waitcnt vmcnt({(NS-2)*LW})","s_barrier",issue(),f"s_sub_u32 s{S_CNT}, s{S_CNT}, 1",f"s_cmp_lg_u32 s{S_CNT}, 0",f"s_cbranch_scc1 {k.lab('lloop')}")
    nh=c.loader_head(k) if c.loader_head else 0
    for j in range(NS-1): k(f"s_waitcnt vmcnt({(NS-2-j)*LW+nh})","s_barrier")
    if nh: k("s_waitcnt vmcnt(0)")
    if c.loader_tail: c.loader_tail(k,XTRA)
    if STAMP:
        k("s_lshl_b32 s62, s2, 7",f"s_add_u32 s62, s62, {0x2f00000+KID[k.pre]*65536+64+20}","s_waitcnt lgkmcnt(0)","v_mov_b32 v255, s62")
        for j,r in enumerate((68,70,72,74)): k(f"v_mov_b32 v254, s{r}",f"global_store_dword v255, v254, s[4:5] offset:{4*j}")
    k("s_barrier",f"s_branch {k.lab('end')}" if mega and c.sig else "s_endpgm")
    k.label("cons")
    ACC=c.acc0; FR=ACC+4*TM*TN; FSZ=4*(TM+TN)
    VX,VW,VX0,VW0=6,3,4,5
    assert FR+2*FSZ<=c.vmax,(FR+2*FSZ)
    if WN==2: k(f"s_lshr_b32 s{S_WM}, s{S_WAVE}, 1",f"s_and_b32 s{S_WN}, s{S_WAVE}, 1")
    else: k(f"s_mov_b32 s{S_WM}, s{S_WAVE}",f"s_mov_b32 s{S_WN}, 0")
    k(f"s_mul_i32 s{S_T}, s{S_WM}, {TM*2048}",f"v_add_u32 v{VX0}, s{S_T}, v2",
      f"s_mul_i32 s{S_T}, s{S_WN}, {TN*2048}",f"s_add_u32 s{S_T}, s{S_T}, 16384",f"v_add_u32 v{VW0}, s{S_T}, v2",
      f"v_mov_b32 v{VX}, v{VX0}",f"v_mov_b32 v{VW}, v{VW0}",f"s_mov_b32 s{S_SLOT}, 0",f"s_mov_b32 s{S_CNT}, {S}","s_waitcnt lgkmcnt(0)")
    if dep and c.gate: k("s_barrier")
    stamp(k,1,True)
    c.prologue(k,ACC,FR)
    def xf(b,tm): return FR+b*FSZ+4*tm
    def wf(b,tn): return FR+b*FSZ+4*TM+4*tn
    def reads(h):
        b=h%2; so=(h//2)*SG1
        X=[(f"ds_read_b128 {vr(xf(b,tm),4)}, v{VX} offset:{so+tm*2048+b*1024}",xf(b,tm)) for tm in range(TM)]
        W=[(f"ds_read_b128 {vr(wf(b,tn),4)}, v{VW} offset:{so+tn*2048+b*1024}",wf(b,tn)) for tn in range(TN)]
        return W[:1]+X+W[1:]
    def mfmas(b):
        o=[]
        for tn in range(TN):
            for tm in range(TM):
                a=ACC+4*(tm*TN+tn); x,w=xf(b,tm),wf(b,tn)
                A,B=(x,w) if c.swap(tn) else (w,x)
                o.append((f"v_mfma_f32_16x16x32_bf16 {vr(a,4)}, {vr(A,4)}, {vr(B,4)}, {vr(a,4)}",(x,w)))
        return o
    k("s_barrier"); stamp(k,2)
    q=[]
    for ins,d in reads(0): k(ins); q.append(d)
    k(".p2align 3"); k.label("cloop")
    if c.aux: k(f"s_cmp_eq_u32 s{S_CNT}, {c.auxat}",f"s_cbranch_scc1 {k.lab('aux')}"); k.label("auxd")
    done=[0]
    def need(regs):
        idx=max([i for i,d in enumerate(q) if d in regs],default=-1)
        if idx>=done[0]:
            n=min(15,len(q)-1-idx); k(f"s_waitcnt lgkmcnt({n})"); done[0]=len(q)-n
    for h in range(2*R):
        last=h==2*R-1
        M=mfmas(h%2); RD=reads((h+1)%(2*R)); p=0
        bar=c.barpos if last else -1
        first=bar if last else 0
        for j,(ins,regs) in enumerate(M):
            need(regs); k(ins)
            if last and j==0 : k(f"s_add_u32 s{S_SLOT}, s{S_SLOT}, {STG}",f"s_cmp_ge_u32 s{S_SLOT}, {NS*STG}",f"s_cselect_b32 s{S_SLOT}, 0, s{S_SLOT}")
            if j==bar:
                k("s_waitcnt lgkmcnt(0)",f"v_add_u32 v{VX}, s{S_SLOT}, v{VX0}",f"v_add_u32 v{VW}, s{S_SLOT}, v{VW0}","s_barrier"); done[0]=len(q)
            if j>=first and (j-first)%c.rstep==0 and p<len(RD):
                k(RD[p][0]); q.append(RD[p][1]); p+=1
        for ins2,d in RD[p:]: k(ins2); q.append(d)
    k(f"s_sub_u32 s{S_CNT}, s{S_CNT}, 1",f"s_cmp_lg_u32 s{S_CNT}, 0",f"s_cbranch_scc1 {k.lab('cloop')}")
    k("s_waitcnt lgkmcnt(0)","s_nop 7"); stamp(k,3)
    c.epilogue(k,ACC,FR,XTRA)
    if mega and c.sig: fsrd(k); c.sig(k)
    if STAMP and not (mega and c.sig): k("s_waitcnt vmcnt(0)")
    stamp(k,4)
    k.label("end")
    if c.aux:
        L=k.L; k.L=k.ool; k.label("aux"); c.aux(k); k(f"s_branch {k.lab('auxd')}"); k.L=L
    return k if mega else finish(k)
def zero_acc(n):
    def f(k,ACC,FR):
        for i in range(n): k(f"v_mov_b32 v{ACC+i}, 0")
    return f
def pack(k,dst,src,n=16):
    for i in range(n//2): k(f"v_cvt_pk_bf16_f32 v{dst+i}, v{src+2*i}, v{src+2*i+1}")
def relayout_addr(k,vsrc,vtr,sstride,g1,g2,vt=7):
    k(f"v_lshrrev_b32 v{vsrc}, 2, v0",f"v_mul_lo_u32 v{vsrc}, s{sstride}, v{vsrc}",f"v_and_b32 v{vt}, 3, v0",f"v_lshl_add_u32 v{vsrc}, v{vt}, 4, v{vsrc}",
      f"v_lshlrev_b32 v{vtr}, 4, v{vt}",f"v_bfe_u32 v{vt}, v0, 2, 2",f"v_lshl_add_u32 v{vtr}, v{vt}, 6, v{vtr}")
```

```python
from lib import *
import gemm as G
from gemm import *
import math
def mkcfg(**kw):
    c=Cfg(); c.aarg=None; c.barg=None; c.loader_head=None; c.loader_tail=None; c.lds_extra=0; c.swap=lambda tn:False; c.acc0=8; c.vmax=252; c.barpos=2; c.rstep=2; c.aux=None; c.auxat=0; c.P0=G.P0; c.R=1; c.xflag=None; c.wflag=None; c.sig=None; c.gate=G.GATE
    c.__dict__.update(kw); return c
def unpack(k,dst,src,n):
    for i in range(n): k(f"v_lshlrev_b32 v{dst+2*i}, 16, v{src+i}",f"v_and_b32 v{dst+2*i+1}, 0xffff0000, v{src+i}")
def rstd_from(k,s,q,out):
    k(f"v_mul_f32 v{s}, {f2u(-1/1024)}, v{s}",f"v_mul_f32 v{q}, {f2u(1/1024)}, v{q}",f"v_fma_f32 v{q}, -v{s}, v{s}, v{q}",f"v_max_f32 v{q}, 0, v{q}",
      f"v_add_f32 v{q}, {f2u(1e-5)}, v{q}",f"v_rsq_f32 v{out}, v{q}")
def k_qkv(km=None):
    def epi(k,ACC,FR,X):
        k(srd(SO,P_WS,WS_QF,0x400000),srd(SA,P_WS,WS_KV,0x800000))
        k(f"s_lshl_b32 s{S_T}, s{S_MI}, 2",f"s_lshl_b32 s3, s{S_WM}, 1",f"s_add_u32 s{S_T}, s{S_T}, s3",
          f"s_lshl_b32 s{S_T2}, s{S_NI}, 1",f"s_add_u32 s{S_T2}, s{S_T2}, s{S_WN}",f"s_lshl_b32 s{S_T2}, s{S_T2}, 6",f"s_add_u32 s{S_T}, s{S_T}, s{S_T2}",
          f"s_lshl_b32 s41, s{S_T}, 11",f"s_lshl_b32 s42, s{S_T}, 12","s_add_u32 s43, s42, 4096",
          f"s_mov_b32 s52, {f2u(math.log2(math.e)/math.sqrt(32))}",f"s_mov_b32 s53, s52",
          "v_lshrrev_b32 v4, 4, v0","v_lshlrev_b32 v4, 9, v4","v_and_b32 v5, 15, v0","v_lshl_add_u32 v2, v5, 4, v4",
          )
        d=FR
        for tm in range(4):
            a=ACC+24*tm; sk=42+tm//2
            pack(k,d,a+8,8); k(f"buffer_store_dwordx4 {vr(d,4)}, v2, s[{SA}:{SA+3}], s{sk} offen offset:{256*(tm%2)}{G.STF}"); d+=4
            if tm%2:
                for t in range(2):
                    pack(k,d,a-24+16+4*t,4); pack(k,d+2,a+16+4*t,4)
                    k(f"buffer_store_dwordx4 {vr(d,4)}, v2, s[{SA}:{SA+3}], s{sk} offen offset:{2048+256*t}{G.STF}"); d+=4
            for i in range(4): k(f"v_pk_mul_f32 {vr(a+2*i,2)}, {vr(a+2*i,2)}, s[52:53]")
            pack(k,d,a,8); k(f"buffer_store_dwordx4 {vr(d,4)}, v2, s[{SO}:{SO+3}], s41 offen offset:{2048*(tm//2)+256*(tm%2)}{G.STF}"); d+=4
    def sig(k):
        k(f"s_lshl_b32 s43, s{S_NI}, 1",f"s_add_u32 s43, s43, s{S_WN}","s_lshl_b32 s43, s43, 5",f"s_lshl_b32 s3, s{S_MI}, 1","s_add_u32 s43, s43, s3",f"s_add_u32 s43, s43, s{S_WM}","s_lshl_b32 s43, s43, 7"); signal(k,43)
    c=mkcfg(sig=sig,TM=4,TN=6,WM=2,WN=2,NS=4,K=1024,woff=WS_WQ,xoff=WS_XN,map="8x4",swap=lambda tn:tn>=4,prologue=zero_acc(96),epilogue=epi)
    return gemm("qkv",c,km)
def rowmajor_addr(k,v,sdst):
    k(f"s_lshl_b32 s{sdst}, s{S_MI}, 2",f"s_add_u32 s{sdst}, s{sdst}, s{S_WM}",f"s_lshl_b32 s{sdst}, s{sdst}, 16",f"s_lshl_b32 s3, s{S_NI}, 7",f"s_add_u32 s{sdst}, s{sdst}, s3",
      f"s_add_u32 s{sdst+1}, s{sdst}, 32768",f"v_and_b32 v{v}, 15, v0",f"v_lshlrev_b32 v{v}, 11, v{v}","v_lshrrev_b32 v1, 4, v0",f"v_lshl_add_u32 v{v}, v1, 4, v{v}")
def hunit_addr(k,sdst):
    k(f"s_lshl_b32 s{sdst}, s{S_MI}, 18",f"s_lshl_b32 s3, s{S_NI}, 14",f"s_add_u32 s{sdst}, s{sdst}, s3",f"s_lshl_b32 s3, s{S_WM}, 12",f"s_add_u32 s{sdst}, s{sdst}, s3")
def k_oproj(km=None):
    def pro(k):
        k(srd(SA,P_A,0,0x400000)); rowmajor_addr(k,7,41)
        for j in range(4): k(f"buffer_load_dwordx4 {vr(100+4*j,4)}, v7, s[{SA}:{SA+3}], s{41+j//2} offen offset:{64*(j%2)}")
    def epi(k,ACC,FR,X):
        k(srd(SO,P_WS,WS_HF,0x400000),srd(SB,P_WS,WS_ST,2048*128)); hunit_addr(k,41)
        k("s_waitcnt vmcnt(0)"); unpack(k,120,100,16)
        for i in range(16): k(f"v_pk_add_f32 {vr(ACC+2*i,2)}, {vr(ACC+2*i,2)}, {vr(120+2*i,2)}")
        pack(k,FR,ACC,32)
        for j in range(4): k(f"buffer_store_dwordx4 {vr(FR+4*j,4)}, v2, s[{SO}:{SO+3}], s41 offen offset:{1024*j}{G.STF}")
        for tm in range(2):
            a=ACC+16*tm; s_,q_=100+4*tm,102+4*tm
            k(f"v_pk_add_f32 {vr(s_,2)}, {vr(a,2)}, {vr(a+2,2)}",f"v_pk_mul_f32 {vr(q_,2)}, {vr(a,2)}, {vr(a,2)}",f"v_pk_fma_f32 {vr(q_,2)}, {vr(a+2,2)}, {vr(a+2,2)}, {vr(q_,2)}")
            for i in range(2,8): k(f"v_pk_add_f32 {vr(s_,2)}, {vr(s_,2)}, {vr(a+2*i,2)}",f"v_pk_fma_f32 {vr(q_,2)}, {vr(a+2*i,2)}, {vr(a+2*i,2)}, {vr(q_,2)}")
            k(f"v_add_f32 v{s_}, v{s_}, v{s_+1}",f"v_add_f32 v{q_}, v{q_}, v{q_+1}")
        k(f"s_lshl_b32 s42, s{S_MI}, 2",f"s_add_u32 s42, s42, s{S_WM}","s_lshl_b32 s42, s42, 12",f"s_lshl_b32 s3, s{S_NI}, 3","s_add_u32 s42, s42, s3",
          "v_permlane32_swap_b32 v100, v104","v_permlane32_swap_b32 v102, v106","v_and_b32 v3, 15, v0","v_lshlrev_b32 v3, 7, v3",
          "v_add_f32 v100, v100, v104","v_add_f32 v102, v102, v106","v_lshrrev_b32 v4, 5, v0","v_lshl_add_u32 v3, v4, 11, v3",
          "v_permlane16_swap_b32 v100, v102","v_bfe_u32 v4, v0, 4, 1","v_lshl_add_u32 v3, v4, 2, v3","v_add_f32 v100, v100, v102",
          f"buffer_store_dword v100, v3, s[{SB}:{SB+3}], s42 offen sc1")
    def sig(k):
        k(f"s_lshl_b32 s43, s{S_MI}, 2",f"s_add_u32 s43, s43, s{S_WM}","s_lshl_b32 s43, s43, 4",f"s_add_u32 s43, s43, s{S_NI}","s_lshl_b32 s43, s43, 7",f"s_add_u32 s43, s43, {F3}"); signal(k,43)
    c=mkcfg(sig=sig,xflag=(F2,32,0),gate=0,TM=2,TN=4,WM=4,WN=1,NS=6//G.R6,R=G.R6,K=1024,aarg=A_X,woff=WS_WO,xoff=WS_OF,map="4x8",prologue=zero_acc(32),aux=pro,auxat=G.AUX6//G.R6,epilogue=epi,barpos=1,rstep=1,vmax=100)
    return gemm("oproj",c,km)
def k_ffn1(km=None):
    def lhead(k):
        k(srd(SA,P_WS,WS_CS,4*3584*4),srd(SB,P_A,0,3584*2),f"s_lshl_b32 s{S_T}, s{S_WAVE}, 6",f"v_add_u32 v20, s{S_T}, v0",
          f"s_mul_i32 s{S_T}, s{S_NI}, 224",f"v_add_u32 v21, s{S_T}, v20","v_lshlrev_b32 v22, 2, v21","v_lshlrev_b32 v21, 1, v21",
          f"buffer_load_ushort v40, v21, s[{SB}:{SB+3}], 0 offen")
        for p in range(4): k(f"s_mov_b32 s{S_T}, {p*3584*4}",f"buffer_load_dword v{24+p}, v22, s[{SA}:{SA+3}], s{S_T} offen sc1")
        return 5
    def ltail(k,X):
        for p in range(1,4): k(f"v_add_f32 v24, v24, v{24+p}")
        k("v_lshlrev_b32 v40, 16, v40","v_lshrrev_b32 v21, 5, v20","v_bfe_u32 v22, v20, 2, 1","v_lshl_add_u32 v25, v21, 1, v22",
          "v_bfe_u32 v28, v20, 3, 2","v_bfe_u32 v29, v20, 2, 2","v_bfe_u32 v22, v20, 4, 1",
          "v_cmp_lt_u32 vcc, 3, v21","v_subrev_u32 v26, 1, v25","v_mul_u32_u24 v27, 7, v22","v_cndmask_b32 v25, v25, v26, vcc","v_cmp_eq_u32 vcc, 3, v21","v_add_u32 v27, 6, v27","s_nop 0","v_cndmask_b32 v25, v25, v27, vcc","v_cndmask_b32 v28, v28, v29, vcc",
          "v_cmp_eq_u32 vcc, 7, v21","v_mov_b32 v27, 15","s_nop 0","v_cndmask_b32 v25, v25, v27, vcc",
          "v_lshlrev_b32 v25, 6, v25","v_lshl_add_u32 v25, v28, 4, v25","v_and_b32 v26, 3, v20","v_lshl_add_u32 v25, v26, 2, v25",
          f"v_add_u32 v25, {X}, v25","ds_write_b32 v25, v24","ds_write_b32 v25, v40 offset:1024","s_waitcnt lgkmcnt(0)")
    ST=208
    def pro(k):
        k(srd(SB,P_WS,WS_ST,2048*128),f"s_lshl_b32 s{S_T}, s{S_MI}, 1",f"s_add_u32 s{S_T}, s{S_T}, s{S_WM}",f"s_lshl_b32 s{S_T}, s{S_T}, 13",
          "v_and_b32 v7, 15, v0","v_lshlrev_b32 v7, 7, v7","v_lshrrev_b32 v1, 4, v0","v_lshl_add_u32 v7, v1, 5, v7")
        for tm in range(4):
            if tm==2: k(f"s_add_u32 s{S_T}, s{S_T}, 4096")
            for j in range(2): k(f"buffer_load_dwordx4 {vr(ST+8*tm+4*j,4)}, v7, s[{SB}:{SB+3}], s{S_T} offen offset:{2048*(tm%2)+16*j} sc1")
    def epi(k,ACC,FR,X):
        k(srd(SO,P_WS,WS_GF,2048*3584*2))
        CSR=FR; BR=FR+28; T=FR+56
        k(f"s_mul_i32 s3, s{S_WN}, 448",f"s_add_u32 s3, s3, {X}","v_lshrrev_b32 v3, 4, v0","v_lshlrev_b32 v3, 4, v3","v_add_u32 v3, s3, v3")
        for tn in range(7): k(f"ds_read_b128 {vr(CSR+4*tn,4)}, v3 offset:{64*tn}",f"ds_read_b128 {vr(BR+4*tn,4)}, v3 offset:{1024+64*tn}")
        k(f"s_mul_i32 s41, s{S_MI}, {3584*256}",f"s_lshl_b32 s3, s{S_WM}, 13","s_add_u32 s41, s41, s3",f"s_mul_i32 s42, s{S_NI}, 7",f"s_lshl_b32 s43, s{S_WN}, 2")
        for p in range(4):
            if p<3: k(f"s_add_u32 s3, s42, s43",f"s_add_u32 s3, s3, {p}")
            else: k("s_add_u32 s3, s42, 3")
            k(f"s_lshr_b32 s{54+p}, s3, 1",f"s_lshl_b32 s{54+p}, s{54+p}, 14","s_and_b32 s3, s3, 1","s_lshl_b32 s3, s3, 10",f"s_add_u32 s{54+p}, s{54+p}, s3",f"s_add_u32 s{54+p}, s{54+p}, s41")
        k(f"s_lshl_b32 s3, s{S_WN}, 9","s_add_u32 s57, s57, s3","v_add_u32 v7, 4096, v2",
          "v_and_b32 v6, 15, v0","v_lshlrev_b32 v6, 4, v6","v_bfe_u32 v1, v0, 4, 1","v_lshl_add_u32 v6, v1, 11, v6","v_lshrrev_b32 v1, 5, v0","v_lshl_add_u32 v6, v1, 8, v6","s_waitcnt vmcnt(0)")
        for tm in range(4):
            r=ST+8*tm
            k(f"v_pk_add_f32 {vr(r,2)}, {vr(r,2)}, {vr(r+2,2)}",f"v_pk_add_f32 {vr(r+4,2)}, {vr(r+4,2)}, {vr(r+6,2)}",f"v_pk_add_f32 {vr(r,2)}, {vr(r,2)}, {vr(r+4,2)}")
        for op in ("v_permlane16_swap_b32","v_permlane32_swap_b32"):
            for tm in range(4): r=ST+8*tm; k(f"v_mov_b32 v{r+2}, v{r}",f"v_mov_b32 v{r+3}, v{r+1}")
            k("s_nop 1")
            for tm in range(4): r=ST+8*tm; k(f"{op} v{r}, v{r+2}",f"{op} v{r+1}, v{r+3}")
            k("s_nop 1")
            for tm in range(4): r=ST+8*tm; k(f"v_pk_add_f32 {vr(r,2)}, {vr(r,2)}, {vr(r+2,2)}")
        for tm in range(4): r=ST+8*tm; rstd_from(k,r,r+1,r+2); k(f"v_mov_b32 v{r+1}, v{r}",f"v_mov_b32 v{r+3}, v{r+2}")
        a_=-2*0.7978845608028654*math.log2(math.e); b_=a_*0.044715
        k(f"s_mov_b32 s52, {f2u(b_)}",f"s_mov_b32 s53, {f2u(b_)}",f"v_mov_b32 v4, {f2u(a_)}",f"v_mov_b32 v5, {f2u(a_)}","s_waitcnt lgkmcnt(0)")
        P=lambda r,i:vr(r+2*i,2)
        for tm in range(4):
            a=ACC+28*tm; r=ST+8*tm
            for i in range(14): k(f"v_pk_fma_f32 {P(a,i)}, {P(CSR,i)}, {vr(r,2)}, {P(a,i)}")
            for i in range(14): k(f"v_pk_fma_f32 {P(a,i)}, {P(a,i)}, {vr(r+2,2)}, {P(BR,i)}")
            for i in range(14): k(f"v_pk_mul_f32 {P(T,i)}, {P(a,i)}, {P(a,i)}")
            for i in range(14): k(f"v_pk_fma_f32 {P(T,i)}, {P(T,i)}, s[52:53], v[4:5]")
            for i in range(14): k(f"v_pk_mul_f32 {P(T,i)}, {P(T,i)}, {P(a,i)}")
            for i in range(28): k(f"v_exp_f32 v{T+i}, v{T+i}")
            for i in range(14): k(f"v_pk_add_f32 {P(T,i)}, {P(T,i)}, 1.0 op_sel_hi:[1,0]")
            for i in range(28): k(f"v_rcp_f32 v{T+i}, v{T+i}")
            for i in range(14): k(f"v_pk_mul_f32 {P(T,i)}, {P(T,i)}, {P(a,i)}")
            pack(k,a,T,24); sg=ACC+28*(tm&~1)+12; pack(k,sg+2*(tm%2),T+24,4)
            va=2 if tm<2 else 7
            for p in range(3): k(f"buffer_store_dwordx4 {vr(a+4*p,4)}, v{va}, s[{SO}:{SO+3}], s{54+p} offen offset:{2048*(tm%2)}{G.STF}")
            if tm%2:
                k(f"v_permlane16_swap_b32 v{sg}, v{sg+2}",f"v_permlane16_swap_b32 v{sg+1}, v{sg+3}",f"buffer_store_dwordx4 {vr(sg,4)}, v6, s[{SO}:{SO+3}], s57 offen{G.STF}","s_add_u32 s57, s57, 4096")
    def sig(k):
        k(f"s_lshl_b32 s43, s{S_MI}, 1",f"s_add_u32 s43, s43, s{S_WM}","s_lshl_b32 s43, s43, 5",f"s_lshl_b32 s3, s{S_NI}, 1","s_add_u32 s43, s43, s3",f"s_add_u32 s43, s43, s{S_WN}","s_lshl_b32 s43, s43, 7",f"s_add_u32 s43, s43, {F4}"); signal(k,43)
    c=mkcfg(sig=sig,xflag=(F3,16,0),wflag=(F5,56,True),TM=4,TN=7,WM=2,WN=2,NS=3,K=1024,aarg=A_B1,woff=WS_W1,xoff=WS_HF,map="8x4",prologue=zero_acc(112),aux=pro,auxat=2,epilogue=epi,loader_head=lhead,loader_tail=ltail,lds_extra=2048,vmax=208)
    return gemm("ffn1",c,km)
def k_ffn2(km=None):
    def pro(k):
        k(srd(SA,P_WS,WS_HF,0x400000),srd(SB,P_A,0,2048)); hunit_addr(k,41)
        k(f"s_lshl_b32 s42, s{S_NI}, 7","v_lshrrev_b32 v7, 4, v0","v_lshlrev_b32 v7, 4, v7")
        for j in range(4): k(f"buffer_load_dwordx4 {vr(100+4*j,4)}, v2, s[{SA}:{SA+3}], s41 offen offset:{1024*j} sc1")
        for j in range(2): k(f"buffer_load_dwordx4 {vr(116+4*j,4)}, v7, s[{SB}:{SB+3}], s42 offen offset:{64*j}")
    def epi(k,ACC,FR,X):
        k(srd(SO,P_B,0,0x400000)); rowmajor_addr(k,7,41)
        k("s_waitcnt vmcnt(0)"); unpack(k,130,100,24)
        for i in range(16): k(f"v_pk_add_f32 {vr(ACC+2*i,2)}, {vr(ACC+2*i,2)}, {vr(162+2*(i%8),2)}")
        for i in range(16): k(f"v_pk_add_f32 {vr(ACC+2*i,2)}, {vr(ACC+2*i,2)}, {vr(130+2*i,2)}")
        pack(k,FR,ACC,32)
        for j in range(4): k(f"buffer_store_dwordx4 {vr(FR+4*j,4)}, v7, s[{SO}:{SO+3}], s{41+j//2} offen offset:{64*(j%2)}")
    c=mkcfg(xflag=(F4,32,1),TM=2,TN=4,WM=4,WN=1,NS=6//G.R6,R=G.R6,K=3584,aarg=A_B2,barg=A_OUT,woff=WS_W2,xoff=WS_GF,map="4x8",prologue=zero_acc(32),aux=pro,auxat=G.AUX6//G.R6,epilogue=epi,barpos=1,rstep=1,vmax=100)
    return gemm("ffn2",c,km)
def k_prep():
    k=K("prep_kernel",256,512,256+4*8192,nv=256 if G.STAMP else 64)
    stamp0(k)
    k("s_cmp_ge_u32 s2, 256",f"s_cbranch_scc1 {k.lab('end')}",f"s_load_dwordx2 s[4:5], s[0:1], {A_WS}",f"s_load_dwordx4 s[48:51], s[0:1], {A_X}",f"s_load_dwordx2 s[56:57], s[0:1], {A_WO}",f"s_load_dwordx2 s[52:53], s[0:1], {A_B1}",f"s_load_dwordx2 s[54:55], s[0:1], {A_B2}",
      "v_lshrrev_b32 v1, 6, v0","v_and_b32 v0, 63, v0","s_nop 0",f"v_readfirstlane_b32 s30, v1","s_nop 1","s_cmp_ge_u32 s30, 4",f"s_cbranch_scc1 {k.lab('w')}")
    k("v_and_b32 v2, 7, v0","v_lshrrev_b32 v3, 3, v0","v_lshlrev_b32 v4, 11, v2","v_lshl_add_u32 v4, v3, 4, v4","s_lshl_b32 s31, s2, 14","s_lshl_b32 s32, s30, 9","s_add_u32 s31, s31, s32",
      "s_waitcnt lgkmcnt(0)",srd(8,48,0,0x400000))
    for i in range(4): k(f"buffer_load_dwordx4 {vr(8+4*i,4)}, v4, s[8:11], s31 offen offset:{128*i}")
    k(srd(16,4,WS_FL,FLN),"s_lshl_b32 s35, s2, 2","s_add_u32 s35, s35, s30","s_lshl_b32 s35, s35, 10","v_lshlrev_b32 v6, 4, v0","v_mov_b32 v28, 0","v_mov_b32 v29, 0","v_mov_b32 v30, 0","v_mov_b32 v31, 0",
      f"buffer_store_dwordx4 v[28:31], v6, s[16:19], s35 offen{G.STF}")
    stamp(k,1,True)
    k(srd(12,4,WS_XN,0x400000),"s_lshr_b32 s33, s2, 4","s_lshl_b32 s33, s33, 18","s_bfe_u32 s34, s2, 0x30001","s_lshl_b32 s34, s34, 11","s_add_u32 s33, s33, s34",
      "s_and_b32 s34, s2, 1","s_lshl_b32 s34, s34, 7","s_add_u32 s33, s33, s34","s_lshl_b32 s34, s30, 16","s_add_u32 s33, s33, s34",
      "v_lshlrev_b32 v5, 8, v3","v_lshl_add_u32 v5, v2, 4, v5","s_waitcnt vmcnt(1)")
    stamp(k,2)
    unpack(k,32,8,16)
    k("v_pk_add_f32 v[24:25], v[32:33], v[34:35]","v_pk_mul_f32 v[26:27], v[32:33], v[32:33]","v_pk_fma_f32 v[26:27], v[34:35], v[34:35], v[26:27]")
    for i in range(2,16): k(f"v_pk_add_f32 v[24:25], v[24:25], {vr(32+2*i,2)}",f"v_pk_fma_f32 v[26:27], {vr(32+2*i,2)}, {vr(32+2*i,2)}, v[26:27]")
    k("v_add_f32 v24, v24, v25","v_add_f32 v25, v26, v27","s_nop 1","v_add_f32_dpp v24, v24, v24 row_ror:8 row_mask:0xf bank_mask:0xf","v_add_f32_dpp v25, v25, v25 row_ror:8 row_mask:0xf bank_mask:0xf")
    for op in ("v_permlane16_swap_b32","v_permlane32_swap_b32"):
        k("v_mov_b32 v26, v24","v_mov_b32 v27, v25","s_nop 1",f"{op} v24, v26",f"{op} v25, v27","s_nop 1","v_add_f32 v24, v24, v26","v_add_f32 v25, v25, v27")
    k("s_lshl_b32 s34, s30, 6","v_lshlrev_b32 v6, 3, v2","v_add_u32 v7, s34, v6","ds_write_b64 v7, v[24:25]","s_waitcnt lgkmcnt(0)","s_barrier")
    for w in range(4): k(f"ds_read_b64 {vr(8+2*w,2)}, v6 offset:{64*w}")
    k("s_waitcnt lgkmcnt(0)","v_pk_add_f32 v[8:9], v[8:9], v[10:11]","v_pk_add_f32 v[12:13], v[12:13], v[14:15]","v_pk_add_f32 v[24:25], v[8:9], v[12:13]")
    rstd_from(k,24,25,26); k("v_mov_b32 v25, v24","v_mov_b32 v27, v26")
    for i in range(16): k(f"v_pk_add_f32 {vr(32+2*i,2)}, {vr(32+2*i,2)}, v[24:25]")
    for i in range(16): k(f"v_pk_mul_f32 {vr(32+2*i,2)}, {vr(32+2*i,2)}, v[26:27]")
    pack(k,8,32,32)
    for i in range(4): k(f"buffer_store_dwordx4 {vr(8+4*i,4)}, v5, s[12:15], s33 offen{G.STF}","s_add_u32 s33, s33, 16384")
    stamp(k,3)
    if G.STAMP: k("s_waitcnt vmcnt(0)")
    stamp(k,4)
    k("s_endpgm")
    k.label("w")
    k("s_sub_u32 s30, s30, 4","s_mov_b32 s35, 6144"); relayout_addr(k,2,3,35,None,None)
    k("v_lshrrev_b32 v7, 4, v0","v_lshl_add_u32 v3, v7, 9, v3","s_lshl_b32 s36, s30, 13","s_add_u32 s36, s36, 256","v_add_u32 v3, s36, v3","v_lshlrev_b32 v4, 4, v0",
      "s_lshr_b32 s31, s2, 3","s_and_b32 s32, s2, 7","s_mul_i32 s32, s32, 12","s_mul_i32 s33, s30, 3","s_add_u32 s32, s32, s33",
      f"s_mul_i32 s33, s31, {32*6144}","s_lshl_b32 s34, s32, 6","s_add_u32 s33, s33, s34",f"s_add_u32 s34, s33, {16*6144}",
      "s_waitcnt lgkmcnt(0)",srd(8,50,0,1024*6144),srd(12,4,WS_WQ,1024*6144))
    for it in range(3):
        k(f"s_add_u32 m0, s36, {2048*it}","s_nop 0","buffer_load_dwordx4 v2, s[8:11], s33 offen lds",f"s_add_u32 m0, s36, {2048*it+1024}","s_add_u32 s33, s33, 64",
          "buffer_load_dwordx4 v2, s[8:11], s34 offen lds","s_add_u32 s34, s34, 64")
    k(srd(16,56,0,1024*2048),srd(20,4,WS_WO,1024*2048),"s_mov_b32 s35, 2048"); relayout_addr(k,40,41,35,None,None)
    k("s_and_b32 s42, s2, 7","s_lshl_b32 s42, s42, 2","s_add_u32 s42, s42, s30","s_lshl_b32 s33, s31, 16","s_lshl_b32 s34, s42, 6","s_add_u32 s33, s33, s34","s_add_u32 s34, s33, 32768",
      "s_add_u32 m0, s36, 6144","v_lshrrev_b32 v7, 5, v0","buffer_load_dwordx4 v40, s[16:19], s33 offen lds","s_add_u32 m0, s36, 7168","v_lshl_add_u32 v41, v7, 10, v41","buffer_load_dwordx4 v40, s[16:19], s34 offen lds",
      "v_bfe_u32 v7, v0, 4, 1","v_lshl_add_u32 v41, v7, 8, v41","v_add_u32 v41, s36, v41",
      "s_lshr_b32 s43, s42, 1","s_lshl_b32 s43, s43, 17","s_and_b32 s42, s42, 1","s_lshl_b32 s42, s42, 12","s_add_u32 s43, s43, s42","s_lshr_b32 s42, s31, 1","s_lshl_b32 s42, s42, 13","s_add_u32 s43, s43, s42",
      "s_and_b32 s42, s31, 1","s_lshl_b32 s42, s42, 10","s_add_u32 s43, s43, s42")
    k("s_barrier","s_lshr_b32 s37, s31, 1","s_mul_i32 s37, s37, 24576","s_and_b32 s31, s31, 1","s_lshl_b32 s31, s31, 10","s_add_u32 s37, s37, s31")
    for it in range(3):
        k("s_waitcnt vmcnt(6)")
        for t in range(2):
            k(f"ds_read_b64_tr_b16 {vr(8+8*it+4*t,2)}, v3 offset:{2048*it+8*t}",f"ds_read_b64_tr_b16 {vr(10+8*it+4*t,2)}, v3 offset:{2048*it+8*t+256}")
        k("s_lshr_b32 s39, s32, 5","s_bfe_u32 s40, s32, 0x40001",f"s_mul_i32 s40, s40, {16*24576}","s_and_b32 s41, s32, 1","s_mul_i32 s41, s41, 3","s_add_u32 s39, s39, s41","s_lshl_b32 s39, s39, 12",
          "s_add_u32 s39, s39, s40","s_add_u32 s39, s39, s37","s_add_u32 s32, s32, 1","s_waitcnt lgkmcnt(0)")
        for t in range(2): k(f"buffer_store_dwordx4 {vr(8+8*it+4*t,4)}, v4, s[12:15], s39 offen offset:{2048*t}{G.STF}")
    k("s_waitcnt vmcnt(6)")
    for t in range(2): k(f"ds_read_b64_tr_b16 {vr(32+4*t,2)}, v41 offset:{6144+8*t}",f"ds_read_b64_tr_b16 {vr(34+4*t,2)}, v41 offset:{6144+8*t+512}")
    k("s_waitcnt lgkmcnt(0)")
    for t in range(2): k(f"buffer_store_dwordx4 {vr(32+4*t,4)}, v4, s[20:23], s43 offen offset:{2048*t}{G.STF}")
    k("s_cmp_lg_u32 s2, 0",f"s_cbranch_scc1 {k.lab('end')}",srd(8,52,0,7168),srd(12,54,0,2048),"v_lshlrev_b32 v4, 7, v0",
      "buffer_load_dword v5, v4, s[8:11], 0 offen","buffer_load_dword v6, v4, s[12:15], 0 offen","s_waitcnt vmcnt(0)")
    k.label("end"); k("s_endpgm")
    return k
```

```python
import sys
import gemm as G
for a in sys.argv[2:]:
    if a=="stamp": G.STAMP=True
    elif "=" in a:
        n,v=a.split("="); setattr(G,n,eval(v))
from lib import *
from kern import *
from attn import *
NAME="sequential_preLN__softmax_full_mha__dense_activation_gelu__prompt"
hdr=[l.rstrip("\n") for l in open(f"cdna_kernels/{NAME}.s.ref") if l.startswith(";") and "@launch" not in l and "Override" not in l and "grid=ceil" not in l]
if G.MEGA:
    km=K("fused_kernel",256,512,163840)
    for f in (k_qkv,k_attn,k_oproj,k_ffn1,k_ffn2): f(km)
    ks=[k_prep(),G.finish(km)]
else: ks=[k_prep(),k_qkv(),k_attn(),k_oproj(),k_ffn1(),k_ffn2()]
emit(sys.argv[1] if len(sys.argv)>1 else f"cdna_kernels/{NAME}.s",hdr,ks)
```

```python
from lib import *
from gemm import *
import gemm as G
def k_attn(km=None):
    mega=km is not None; P=G.LDP if mega else ''
    k=begin(km,"attn",163840)
    Q=8; NM=24; SB_=56; O=120; L=152; KF=160; VF=176; SEL=192; IDX=196; VC,VN,VL,VP=2,3,4,201
    S_HEAD,S_QT,S_KH,S_QG,S_NMAX,S_GO,S_M0,S_CUR,S_NXT=31,32,33,35,36,39,40,41,42
    k(
      f"s_load_dwordx2 s[6:7], s[0:1], {A_WO}",f"s_load_dwordx2 s[52:53], s[0:1], {A_B1}",f"s_load_dwordx2 s[54:55], s[0:1], {A_B2}",f"s_load_dwordx2 s[48:49], s[0:1], {A_W1}",f"s_load_dwordx2 s[50:51], s[0:1], {A_W2}",
      "s_and_b32 s3, s2, 7","s_lshr_b32 s37, s2, 3",
      f"s_lshl_b32 s{S_HEAD}, s3, 2","s_lshr_b32 s3, s37, 3",f"s_add_u32 s{S_HEAD}, s{S_HEAD}, s3",
      f"s_and_b32 s{S_QG}, s{S_WAVE}, 3",f"s_lshr_b32 s{S_KH}, s{S_WAVE}, 2",
      f"s_and_b32 s{S_QT}, s37, 7",f"s_lshl_b32 s{S_QT}, s{S_QT}, 2",f"s_add_u32 s{S_QT}, s{S_QT}, s{S_QG}",f"s_lshl_b32 s{S_QT}, s{S_QT}, 1",
      f"v_lshlrev_b32 v{VL}, 4, v0",
      f"v_and_b32 v{VP}, 0x23, v0","v_bfe_u32 v5, v0, 2, 1",f"v_lshl_or_b32 v{VP}, v5, 4, v{VP}","v_bfe_u32 v5, v0, 3, 2",f"v_lshl_or_b32 v{VP}, v5, 2, v{VP}",f"v_lshlrev_b32 v{VP}, 4, v{VP}",f"s_mov_b32 s{S_NMAX}, 1","s_waitcnt lgkmcnt(0)",
      srd(8,4,WS_QF,0x400000),srd(12,4,WS_KV,0x800000),srd(16,4,WS_OF,0x400000))
    stamp(k,1,True)
    if mega:
        fsrd(k)
        k("s_lshl_b32 s43, s2, 3",f"s_add_u32 s43, s43, s{S_WAVE}","s_cmp_lg_u32 s43, 4",f"s_cbranch_scc1 {k.lab('nb')}",srd(20,52,0,7168),srd(24,54,0,2048),"v_lshlrev_b32 v240, 7, v0",
          "buffer_load_dword v241, v240, s[20:23], 0 offen","buffer_load_dword v242, v240, s[24:27], 0 offen"); k.label("nb")
        k(f"s_cmp_lg_u32 s{S_WAVE}, 0",f"s_cbranch_scc1 {k.lab('pdq')}")
        sh=2*G.PSH
        k(f"s_sub_u32 s43, s{S_HEAD}, {sh}","s_and_b32 s43, s43, 31","s_lshl_b32 s43, s43, 12",f"s_sub_u32 s44, s{S_HEAD}, {2*sh}","s_and_b32 s44, s44, 31","s_lshl_b32 s44, s44, 12","s_mov_b32 s45, 0")
        poll(k,"x",45,64,1,hi=(43,44))
        k(f"s_lshl_b32 s43, s{S_HEAD}, 12",f"s_lshl_b32 s44, s{S_QT}, 6","s_add_u32 s43, s43, s44"); poll(k,"q",43,4,1)
        k("s_waitcnt vmcnt(0)","s_barrier")
    k(f"s_lshl_b32 s37, s{S_HEAD}, 6",f"s_add_u32 s37, s37, s{S_QT}","s_lshl_b32 s37, s37, 11")
    for j in range(4): k(f"buffer_load_dwordx4 {vr(Q+4*j,4)}, v{VL}, s[8:11], s37 offen offset:{1024*j}{P}")
    k.label("retry")
    k(f"s_lshl_b32 s38, s{S_HEAD}, 18")
    for j in range(2): k(f"buffer_load_dwordx4 {vr(KF+4*j,4)}, v{VL}, s[12:15], s38 offen offset:{1024*j}{P}")
    k(f"s_lshl_b32 s{S_GO}, s{S_KH}, 5",f"s_add_u32 s{S_GO}, s{S_GO}, s{S_QG}",f"s_lshl_b32 s{S_GO}, s{S_GO}, 12",f"s_add_u32 s{S_GO}, s{S_GO}, s38",
      f"s_lshl_b32 s{S_M0}, s{S_WAVE}, 12")
    def dma():
        return [f"buffer_load_dwordx4 v{VL}, s[12:15], s{S_GO} offen offset:{1024*j}{P} lds" for j in range(4)]+[f"s_add_u32 s{S_GO}, s{S_GO}, 16384"]
    k(f"s_mov_b32 m0, s{S_M0}","s_nop 0",dma(),f"s_add_u32 m0, s{S_M0}, 32768","s_nop 0",dma())
    SJ_SRC,SJ_STEP,SJ_DST,SJ_DA,SJ_DB,SJ_DT,SJ_RS,SJ_LDS=70,71,72,73,74,75,76,77
    VS,VT1,VT2,WF,CSA,ONE=198,199,200,204,212,220
    k("s_cmp_lt_u32 s2, 112",f"s_cbranch_scc0 {k.lab('sj2')}",
      srd(20,48,0,1024*7168),srd(24,4,WS_W1,1024*7168),
      f"s_mul_i32 s37, s2, 2341","s_lshr_b32 s37, s37, 16","s_mul_i32 s43, s37, 28","s_sub_u32 s43, s2, s43","s_lshl_b32 s43, s43, 2",f"s_add_u32 s43, s43, s{S_QG}",
      f"s_mul_i32 s{SJ_SRC}, s37, {256*7168}","s_lshl_b32 s44, s43, 6",f"s_add_u32 s{SJ_SRC}, s{SJ_SRC}, s44",f"s_mov_b32 s{SJ_STEP}, {32*7168}",f"s_mov_b32 s{SJ_RS}, 7168",
      f"s_mul_i32 s78, s37, {3584*4}","s_lshl_b32 s44, s43, 7","s_add_u32 s78, s78, s44",
      "s_mul_i32 s44, s43, 9363","s_lshr_b32 s44, s44, 16","s_mul_i32 s45, s44, 7","s_sub_u32 s45, s43, s45",
      f"s_mul_i32 s{SJ_DST}, s44, {16*28672}",f"s_mul_i32 s44, s37, {4*28672}",f"s_add_u32 s{SJ_DST}, s{SJ_DST}, s44",
      "s_lshl_b32 s44, s45, 1","s_cmp_gt_u32 s45, 3","s_cselect_b32 s46, 1, 0","s_sub_u32 s44, s44, s46","s_lshl_b32 s44, s44, 11",f"s_add_u32 s{SJ_DST}, s{SJ_DST}, s44",
      "s_cmp_eq_u32 s45, 3",f"s_cselect_b32 s{SJ_DT}, 7, 1","s_cselect_b32 s47, 1, 0",f"s_lshl_b32 s{SJ_DT}, s{SJ_DT}, 11",f"s_mov_b32 s{SJ_DA}, 1024",f"s_mov_b32 s{SJ_DB}, {28672-1024}","s_mov_b32 s44, 0",f"s_branch {k.lab('sjd')}")
    k.label("sj2")
    k("s_cmp_lt_u32 s2, 224",f"s_cbranch_scc0 {k.lab('sj3')}",srd(20,50,0,3584*2048),srd(24,4,WS_W2,3584*2048),"s_sub_u32 s37, s2, 112",f"s_mov_b32 s45, {56*8192}",f"s_branch {k.lab('sj4')}")
    k.label("sj3")
    k(srd(20,6,0,1024*2048),srd(24,4,WS_WO,1024*2048),"s_sub_u32 s37, s2, 224",f"s_mov_b32 s45, {16*8192}")
    k.label("sj4"); k("s_mov_b32 s44, 0")
    k(f"s_lshl_b32 s{SJ_SRC}, s37, 16",f"s_lshl_b32 s43, s{S_QG}, 9",f"s_add_u32 s{SJ_SRC}, s{SJ_SRC}, s43",f"s_mov_b32 s{SJ_STEP}, 64",f"s_mov_b32 s{SJ_RS}, 2048",
      f"s_lshl_b32 s43, s{S_QG}, 2",f"s_mul_i32 s{SJ_DST}, s43, s45","s_lshr_b32 s43, s37, 1","s_lshl_b32 s43, s43, 13",f"s_add_u32 s{SJ_DST}, s{SJ_DST}, s43",
      "s_and_b32 s43, s37, 1","s_lshl_b32 s43, s43, 10",f"s_add_u32 s{SJ_DST}, s{SJ_DST}, s43",f"s_mov_b32 s{SJ_DT}, 2048",f"s_mov_b32 s{SJ_DA}, 4096",f"s_sub_u32 s{SJ_DB}, s45, 4096","s_mov_b32 s78, 0","s_mov_b32 s47, 0")
    k.label("sjd")
    relayout_addr(k,VS,VT1,SJ_RS,None,None)
    k(f"s_lshl_b32 s{SJ_LDS}, s{S_QG}, 14",f"s_add_u32 s{SJ_LDS}, s{SJ_LDS}, 98304","s_lshr_b32 s45, 512, s44","s_lshl_b32 s46, 256, s44",
      "v_lshrrev_b32 v7, 5, v0",f"v_lshl_add_u32 v{VT1}, v7, 10, v{VT1}","v_bfe_u32 v7, v0, 4, 1","v_mul_lo_u32 v7, s45, v7",f"v_add3_u32 v{VT1}, v{VT1}, v7, s{SJ_LDS}","v_and_b32 v7, 3, v0","v_lshlrev_b32 v7, 3, v7","v_mul_lo_u32 v7, s47, v7",f"v_sub_u32 v{VT1}, v{VT1}, v7",f"v_add_u32 v{VT2}, s46, v{VT1}",
      "s_lshl_b32 s85, s47, 1","s_lshl_b32 s85, 8, s85",f"v_add_u32 v{VT1+3}, s85, v{VT1}",f"v_add_u32 v{VT2+3}, s85, v{VT2}",
      f"s_lshl_b32 s{SJ_RS}, s{SJ_RS}, 4",srd(80,4,WS_CS,4*3584*4))
    for i in range(8): k(f"v_mov_b32 v{CSA+i}, 0")
    for i in range(4): k(f"v_mov_b32 v{ONE+i}, 0x3f803f80")
    def sj_rd(off):
        o=[]
        for t in range(2): o+=[f"ds_read_b64_tr_b16 {vr(WF+4*t,2)}, v{VT1+3*t} offset:{off}",f"ds_read_b64_tr_b16 {vr(WF+4*t+2,2)}, v{VT2+3*t} offset:{off}"]
        return o
    def sj_st(adv):
        o=[f"s_add_u32 s37, s{SJ_DST}, s{SJ_DT}",f"buffer_store_dwordx4 {vr(WF,4)}, v{VL}, s[24:27], s{SJ_DST} offen{G.STW}",f"buffer_store_dwordx4 {vr(WF+4,4)}, v{VL}, s[24:27], s37 offen{G.STW}"]
        for t in range(2): o+=[f"v_mfma_f32_16x16x32_bf16 {vr(CSA+4*t,4)}, {vr(WF+4*t,4)}, {vr(ONE,4)}, {vr(CSA+4*t,4)}"]
        o+=[f"s_add_u32 s{SJ_DST}, s{SJ_DST}, s{SJ_DA}",f"s_mov_b32 s37, s{SJ_DA}",f"s_mov_b32 s{SJ_DA}, s{SJ_DB}",f"s_mov_b32 s{SJ_DB}, s37"]
        if adv: o+=[f"v_add_u32 v{r}, 4096, v{r}" for r in (VT1,VT2,VT1+3,VT2+3)]
        return o
    def sj_load():
        return [f"s_mov_b32 m0, s{SJ_LDS}",f"s_add_u32 s37, s{SJ_SRC}, s{SJ_RS}",f"buffer_load_dwordx4 v{VS}, s[20:23], s{SJ_SRC} offen{G.SJP} lds",f"s_add_u32 m0, s{SJ_LDS}, 1024",
                f"s_add_u32 s{SJ_SRC}, s{SJ_SRC}, s{SJ_STEP}",f"buffer_load_dwordx4 v{VS}, s[20:23], s37 offen{G.SJP} lds",f"s_add_u32 s{SJ_LDS}, s{SJ_LDS}, 2048"]
    S_MODE,S_MT=79,84
    def site(n,mode,code):
        l=k.lab(f"h{n}_{mode}")
        return [f"s_cmp_eq_u32 s{S_MODE}, {mode}",f"s_cbranch_scc0 {l}"]+code+[l+":"]
    k(f"v_mov_b32 v{IDX}, 0xdddddddd","v_bfe_u32 v5, v0, 2, 1","v_cmp_eq_u32 vcc, 0, v5","v_mov_b32 v6, 0x3f803f80","s_nop 0",
      f"v_cndmask_b32 v{SEL}, 0, v6, vcc",f"v_cndmask_b32 v{SEL+1}, 0, v6, vcc",f"v_sub_u32 v{SEL+2}, v6, v{SEL}",f"v_sub_u32 v{SEL+3}, v6, v{SEL}",
      f"s_lshl_b32 s37, s{S_KH}, 14",f"v_add_u32 v5, s37, v{VP}",f"v_mov_b32 v{VC}, v5",f"v_add_u32 v{VN}, 32768, v5",f"s_mov_b32 s{S_CUR}, 0",
      "v_mov_b32 v6, 0xff800000","v_mov_b32 v7, 0xff800000")
    for i in range(40): k(f"v_mov_b32 v{O+i}, 0")
    for i in range(16): k(f"v_mov_b32 v{SB_+48+i}, 0")
    for i in range(16): k(f"v_mov_b32 v{VF+i}, 0")
    k(f"s_mov_b32 s{S_CNT}, s{S_NMAX}","s_waitcnt vmcnt(8)")
    k.label("mx")
    for u in range(2):
        k(f"v_mfma_f32_32x32x16_bf16 {vr(SB_+16*u,16)}, {vr(KF,4)}, {vr(Q+8*u,4)}, 0",f"v_mfma_f32_32x32x16_bf16 {vr(SB_+16*u,16)}, {vr(KF+4,4)}, {vr(Q+8*u+4,4)}, {vr(SB_+16*u,16)}")
    k("s_nop 15")
    for u in range(2):
        for i in range(8): k(f"v_max3_f32 v{6+u}, v{SB_+16*u+2*i}, v{SB_+16*u+2*i+1}, v{6+u}")
    k(f"s_sub_u32 s{S_CNT}, s{S_CNT}, 1",f"s_cmp_eq_u32 s{S_CNT}, 0",f"s_cbranch_scc1 {k.lab('mxd')}","s_add_u32 s38, s38, 4096")
    for j in range(2): k(f"buffer_load_dwordx4 {vr(KF+4*j,4)}, v{VL}, s[12:15], s38 offen offset:{1024*j}{P}")
    k("s_waitcnt vmcnt(0)",f"s_branch {k.lab('mx')}")
    k.label("mxd")
    k(f"v_mov_b32 v{NM}, v6",f"v_mov_b32 v{NM+16}, v7","s_nop 1",f"v_permlane32_swap_b32 v6, v{NM}",f"v_permlane32_swap_b32 v7, v{NM+16}","s_nop 1",
      f"v_max_f32 v6, v6, v{NM}",f"v_max_f32 v7, v7, v{NM+16}")
    for u in range(2):
        for i in range(16): k(f"v_sub_f32 v{NM+16*u+i}, 0, v{6+u}")
    k(f"s_cmp_eq_u32 s{S_KH}, 0",f"s_cbranch_scc1 {k.lab('w4')}","s_waitcnt vmcnt(0)"); k.label("w4")
    k("s_waitcnt vmcnt(4)","s_barrier"); stamp(k,2)
    def rdK(t):
        a,o=(VC,t*4096) if t<4 else (VN,(t-4)*4096)
        return [f"ds_read_b128 {vr(KF+8*(t%2)+4*j,4)}, v{a} offset:{o+1024*j}" for j in range(2)]
    def rdV(t): return [f"ds_read_b128 {vr(VF+8*(t%2)+4*j,4)}, v{VC} offset:{t*4096+2048+1024*j}" for j in range(2)]
    def qk(n):
        t,u=n//2,n%2; b=SB_+16*(n%4); kf=KF+8*(t%2)
        return [f"v_mfma_f32_32x32x16_bf16 {vr(b,16)}, {vr(kf,4)}, {vr(Q+8*u,4)}, {vr(NM+16*u,16)}",
                f"v_mfma_f32_32x32x16_bf16 {vr(b,16)}, {vr(kf+4,4)}, {vr(Q+8*u+4,4)}, {vr(b,16)}"]
    def pv(n):
        t,u=n//2,n%2; b=SB_+16*(n%4); vf=VF+8*(t%2)
        return [f"v_smfmac_f32_32x32x32_bf16 {vr(O+16*u,16)}, {vr(vf+4*j,4)}, {vr(b+8*j,8)}, v{IDX}" for j in range(2)]
    def sm(n):
        u=n%2; b=SB_+16*(n%4)
        return [f"v_smfmac_f32_16x16x64_bf16 {vr(L+4*u,4)}, {vr(SEL,4)}, {vr(b+8*j,8)}, v{IDX}" for j in range(2)]
    k(rdK(0),rdK(1),"s_waitcnt lgkmcnt(2)",qk(0),qk(1),f"s_mov_b32 s{S_CNT}, 0","s_nop 7","s_nop 1")
    k(f"s_mov_b32 s{S_MT}, 0x00111111",f"s_cmp_eq_u32 s{S_KH}, 0",f"s_cbranch_scc1 {k.lab('mt')}",f"s_mov_b32 s{S_MT}, 0x33332222"); k.label("mt")
    if G.APRIO: k(f"s_cmp_eq_u32 s{S_KH}, {G.APRIO-1}",f"s_cbranch_scc0 {k.lab('np')}","s_setprio 1"); k.label("np")
    k(".p2align 3"); k.label("loop")
    for n in range(8):
        b=SB_+16*(n%4); e=[f"v_exp_f32 v{b+i}, v{b+i}" for i in range(16)]
        a,p,s=qk(n+2),pv(n-1),sm(n-1)
        rd=rdV(n//2) if n%2==0 else rdK(n//2+2)
        hk=[]
        if n==0: k(f"s_and_b32 s{S_MODE}, s{S_MT}, 15",f"s_lshr_b32 s{S_MT}, s{S_MT}, 4")
        if n==4 and not G.XNB:
            l=k.lab("nw")
            k(f"s_cmp_ge_u32 s{S_MODE}, 2",f"s_cbranch_scc1 {l}","s_waitcnt vmcnt(0)",l+":","s_barrier")
        if n in (4,5) and not G.XND:
            if n==4: pre=[f"s_add_u32 s37, s{S_CUR}, 65536","s_sub_u32 s38, s37, 98304","s_cmp_ge_u32 s37, 98304","s_cselect_b32 s37, s38, s37",f"s_add_u32 m0, s37, s{S_M0}","s_nop 0"]
            if n==5: pre=["s_add_u32 m0, m0, 16384",f"s_add_u32 s{S_GO}, s{S_GO}, 131072"]
            ld=[f"buffer_load_dwordx4 v{VL}, s[12:15], s{S_GO} offen offset:{1024*j}{P} lds" for j in range(4)]
            rd[0]=[rd[0]]+site(n+10,1,pre+ld[:2])
            hk+=site(n,1,ld[2:]+([f"s_sub_u32 s{S_GO}, s{S_GO}, {131072-16384}"] if n==5 else []))
        if G.SJ:
            if n in G.SJL and G.SJ&1: hk+=site(n,2,sj_load())
            if n%4==0: hk+=site(n,3,(["s_waitcnt vmcnt(12)"] if n==0 else [])+sj_rd(2048*(n//4)))
            if n%4==2 and G.SJ&2: hk+=site(n,3,sj_st(n==6))
        rd=[rd[0],[rd[1]]+hk]
        if G.XNR: rd=[[],[]]
        W="s_waitcnt lgkmcnt(0)"
        if G.AORD==0: k(e[0:2],W,a[0],rd,e[2:5],p[0],e[5:7],s[0],e[7:10],a[1],e[10:12],p[1],e[12:15],s[1],e[15])
        if G.AORD==1: k(e[0:2],W,a[0],rd,e[2:5],p[0],e[5:8],s[0],e[8:9],a[1],e[9:12],p[1],e[12:15],s[1],e[15])
        if G.AORD==2: k(W,a[0],e[0:3],a[1],rd,e[3:6],p[0],e[6:9],s[0],e[9:11],p[1],e[11:14],s[1],e[14:16])
        if G.AORD==3: k(W,s[0],a[0],rd[0],e[0:4],p[0],e[4:8],s[1],a[1],rd[1],e[8:12],p[1],e[12:16])
        if G.AORD==4: k(W,a[0],e[0:4],p[0],rd[0],e[4:7],s[0],e[7:8],a[1],e[8:12],p[1],rd[1],e[12:15],s[1],e[15:16])
    k(f"s_add_u32 s{S_CUR}, s{S_CUR}, 32768",f"s_cmp_ge_u32 s{S_CUR}, 98304",f"s_cselect_b32 s{S_CUR}, 0, s{S_CUR}",
      f"s_add_u32 s37, s{S_CUR}, 32768","s_cmp_ge_u32 s37, 98304","s_cselect_b32 s37, 0, s37",
      f"v_mov_b32 v{VC}, v{VN}",f"v_add_u32 v{VN}, s37, v5",
      f"s_add_u32 s{S_CNT}, s{S_CNT}, 1",f"s_cmp_lt_u32 s{S_CNT}, 8",f"s_cbranch_scc1 {k.lab('loop')}")
    k(pv(7),sm(7),"s_waitcnt lgkmcnt(0)","s_barrier"); stamp(k,3)
    k("s_cmp_lt_u32 s2, 112",f"s_cbranch_scc0 {k.lab('nocs')}",f"s_cmp_eq_u32 s{S_KH}, 1",f"s_cbranch_scc0 {k.lab('nocs')}","v_lshrrev_b32 v7, 4, v0","s_sub_u32 s37, 5, s47","v_lshlrev_b32 v7, s37, v7","s_lshl_b32 s85, s85, 1","s_add_u32 s85, s85, s78","s_mov_b32 exec_lo, 0x10001","s_mov_b32 exec_hi, 0x10001",
      f"buffer_store_dwordx4 {vr(CSA,4)}, v7, s[80:83], s78 offen sc1",f"buffer_store_dwordx4 {vr(CSA+4,4)}, v7, s[80:83], s85 offen sc1","s_mov_b64 exec, -1")
    k.label("nocs")
    k(f"s_mul_i32 s37, s{S_WAVE}, 5120",f"s_xor_b32 s38, s{S_WAVE}, 4","s_mul_i32 s38, s38, 5120",f"v_add_u32 v6, s37, v{VL}",f"v_add_u32 v7, s38, v{VL}","s_nop 7",
      f"s_cmp_eq_u32 s{S_KH}, 0",f"s_cbranch_scc1 {k.lab('kh0')}")
    for j in range(4): k(f"ds_write_b128 v6, {vr(O+4*j,4)} offset:{1024*j}")
    k(f"ds_write_b128 v6, {vr(L,4)} offset:4096")
    k("s_nop 1")
    for i in range(16): k(f"v_mov_b32 v{O+i}, v{O+16+i}")
    k(f"v_mov_b32 v{L}, v{L+4}",f"s_branch {k.lab('khd')}")
    k.label("kh0")
    for j in range(4): k(f"ds_write_b128 v6, {vr(O+16+4*j,4)} offset:{1024*j}")
    k(f"ds_write_b128 v6, {vr(L+4,4)} offset:4096")
    k.label("khd")
    k("v_mov_b32 v1, 0","v_mov_b32 v197, 163776","ds_write_b32 v197, v1","s_waitcnt lgkmcnt(0)","s_barrier")
    for j in range(4): k(f"ds_read_b128 {vr(SB_+4*j,4)}, v7 offset:{1024*j}")
    k(f"ds_read_b128 {vr(SB_+16,4)}, v7 offset:4096","s_waitcnt lgkmcnt(0)",f"v_add_f32 v{L}, v{L}, v{SB_+16}",f"v_rcp_f32 v{L+2}, v{L}")
    for i in range(8): k(f"v_pk_add_f32 {vr(O+2*i,2)}, {vr(O+2*i,2)}, {vr(SB_+2*i,2)}")
    k(f"v_mov_b32 v{L+3}, v{L+2}")
    for i in range(8): k(f"v_pk_mul_f32 {vr(O+2*i,2)}, {vr(O+2*i,2)}, {vr(L+2,2)}")
    k(f"s_cmp_lg_u32 s{S_NMAX}, 1",f"s_cbranch_scc1 {k.lab('ok')}")
    for i in range(16): k(f"v_fma_f32 v{L}, v{O+i}, 0, v{L}")
    k(f"v_mov_b32 v6, {f2u(2.0**60)}",f"v_cmp_nlt_f32 vcc, v{L}, v6","s_nop 4","s_cmp_eq_u64 vcc, 0",f"s_cbranch_scc1 {k.lab('ok')}",
      "v_mov_b32 v1, 1","ds_write_b32 v197, v1")
    k.label("ok")
    k("s_waitcnt vmcnt(0) lgkmcnt(0)","s_barrier","ds_read_b32 v1, v197","s_waitcnt lgkmcnt(0)","v_readfirstlane_b32 s37, v1","s_nop 3","s_cmp_eq_u32 s37, 0",f"s_cbranch_scc1 {k.lab('store')}",
      f"s_mov_b32 s{S_NMAX}, 64","s_barrier",f"s_branch {k.lab('retry')}")
    k.label("store")
    pack(k,SB_,O)
    k(f"s_add_u32 s37, s{S_QT}, s{S_KH}","s_lshr_b32 s38, s37, 2","s_lshl_b32 s38, s38, 18","s_and_b32 s37, s37, 3","s_lshl_b32 s37, s37, 12","s_add_u32 s37, s37, s38",
      f"s_lshr_b32 s38, s{S_HEAD}, 1","s_lshl_b32 s38, s38, 14","s_add_u32 s37, s37, s38",f"s_and_b32 s38, s{S_HEAD}, 1","s_lshl_b32 s38, s38, 10","s_add_u32 s37, s37, s38",
      "v_and_b32 v6, 15, v0","v_lshlrev_b32 v6, 4, v6","v_bfe_u32 v7, v0, 4, 1","v_lshl_add_u32 v6, v7, 11, v6","v_lshrrev_b32 v7, 5, v0","v_lshl_add_u32 v6, v7, 9, v6")
    for j in range(2): k(f"buffer_store_dwordx4 {vr(SB_+4*j,4)}, v6, s[16:19], s37 offen offset:{256*j}{G.STF}")
    if mega:
        k("s_setprio 0",f"s_add_u32 s43, s{S_QT}, s{S_KH}","s_lshl_b32 s43, s43, 5",f"s_add_u32 s43, s43, s{S_HEAD}","s_lshl_b32 s43, s43, 7",f"s_add_u32 s43, s43, {F2}"); signal(k,43)
        k(f"s_cmp_eq_u32 s{S_WAVE}, 0",f"s_cbranch_scc0 {k.lab('nsj')}","s_lshl_b32 s43, s2, 2",f"s_add_u32 s43, s43, {F5}","s_lshl_b32 s44, s2, 7",f"s_add_u32 s44, s44, {F6-224*128}","s_cmp_lt_u32 s2, 224","s_cselect_b32 s43, s43, s44",
          "s_mov_b64 exec, 1",f"buffer_store_dword v241, v240, s[{SF}:{SF+3}], s43 offen sc1","s_mov_b64 exec, -1")
        k.label("nsj")
    if G.STAMP and not mega: k("s_waitcnt vmcnt(0)")
    stamp(k,4)
    return k if mega else finish(k)
```

```python
from lib import *
WS_XN=0x0; WS_QF=0x400000; WS_KV=0x800000; WS_OF=0x1000000; WS_HF=0x1400000; WS_GF=0x1800000; WS_ST=0x2600000; WS_CS=0x2700000
WS_WQ=0x2800000; WS_WO=0x3200000; WS_W1=0x3400000; WS_W2=0x3c00000
import os
if os.environ.get('OVL','0')=='1': WS_OF=0; WS_GF=0; WS_HF=WS_WQ; WS_WO=WS_WQ+0x400000
P0=2; AUX6=4; R6=2; MEGA=1; NOPREP=1; LAT=1; SGA=12; QLP=''; QORD='x0 00 10 x1 20 01 x2 11 x3 21'.split(); XOF=2; SK=0; SKM=3; PSH=5; QP0=2; UNR=2; UNR6=1; BP=2; RS=1; ALN=3; GATE=1; LDP=' sc1'; SLP=6
WS_FL=0x4400000; F1,F2,F3,F4,F5=0,0x20000,0x60000,0x80000,0xa0000; F6=0xa0400; FLN=0xa1400; SF=88; S_W8=29
AORD=4; APRIO=2; SJL=(6,7); SJP=' nt'; XNB=0; XND=0; XNR=0; SJ=3
STW=' sc1'
STF=' sc1'
A_X,A_WQKV,A_WO,A_W1,A_B1,A_W2,A_B2,A_OUT,A_DBG,A_WS=0,8,16,32,40,48,56,64,72,80
S_WAVE,S_MI,S_NI,S_SLOT,S_CNT,S_XO,S_WO,S_T,S_T2,S_WM,S_WN=30,31,32,33,34,35,36,37,38,39,40
SX,SW,SO,SA,SB,SC=8,12,16,20,24,44
P_WS,P_W,P_A,P_B=4,6,48,50
STAMP=False
KID={"prep":0,"qkv":1,"attn":2,"oproj":3,"ffn1":4,"ffn2":5}
def stamp0(k):
    if STAMP: k("s_memrealtime s[66:67]","s_memtime s[68:69]")
def stamp(k,idx,pre=False):
    if not STAMP: return
    base=0x2f00000+KID[k.pre]*65536
    k("s_memtime s[60:61]","s_memrealtime s[64:65]","s_lshl_b32 s62, s2, 7",f"s_add_u32 s62, s62, {base+4*idx}","s_waitcnt lgkmcnt(0)",
      "v_mov_b32 v255, s62","v_mov_b32 v254, s60","v_mov_b32 v253, s64","global_store_dword v255, v254, s[4:5] offset:64","global_store_dword v255, v253, s[4:5]")
    if pre: k("v_mov_b32 v254, s68","v_mov_b32 v253, s66","global_store_dword v255, v254, s[4:5] offset:60","global_store_dword v255, v253, s[4:5] offset:-4")

class Cfg: pass
def begin(k,name,lds):
    first = k is None or not k.L
    if k is None: k=K(name+"_kernel",256,512,lds)
    k.pre=name; stamp0(k)
    if first:
        k("s_cmp_ge_u32 s2, 256",f"s_cbranch_scc1 {k.name}_exit",f"s_load_dwordx2 s[{P_WS}:{P_WS+1}], s[0:1], {A_WS}",
          "v_lshrrev_b32 v1, 6, v0","v_and_b32 v0, 63, v0","s_nop 0",f"v_readfirstlane_b32 s{S_W8}, v1","s_nop 1")
    k(f"s_mov_b32 s{S_WAVE}, s{S_W8}")
    return k
def finish(k):
    k.L.append(f"{k.name}_exit:"); k("s_endpgm"); k(k.ool); return k
def fsrd(k): k(srd(SF,P_WS,WS_FL,FLN))
def poll(k,tag,soff,nlanes,expect,x4=False,v=240,sh=7,hi=None):
    k(f"v_min_u32 v{v+4}, {nlanes-1}, v0",f"v_lshlrev_b32 v{v+4}, {4 if x4 else sh}, v{v+4}","s_mov_b32 s87, 0x40000",f"s_mov_b32 s86, {hex(expect)}")
    if hi: k(f"v_and_b32 v{v+4}, 31, v0",f"v_lshlrev_b32 v{v+4}, 7, v{v+4}",f"v_mov_b32 v{v}, s{hi[0]}",f"v_mov_b32 v{v+1}, s{hi[1]}","v_cmp_gt_u32 vcc, 32, v0","s_nop 1",f"v_cndmask_b32 v{v}, v{v+1}, v{v}, vcc",f"v_add_u32 v{v+4}, v{v}, v{v+4}")
    k.label("pl"+tag)
    if x4: k(f"buffer_load_dwordx4 {vr(v,4)}, v{v+4}, s[{SF}:{SF+3}], s{soff} offen sc1","s_waitcnt vmcnt(0)",f"v_and_b32 v{v}, v{v}, v{v+1}",f"v_and_b32 v{v+2}, v{v+2}, v{v+3}",f"v_and_b32 v{v}, v{v}, v{v+2}")
    else: k(f"buffer_load_dword v{v}, v{v+4}, s[{SF}:{SF+3}], s{soff} offen sc1","s_waitcnt vmcnt(0)")
    k(f"v_cmp_ne_u32 vcc, s86, v{v}","s_sub_u32 s87, s87, 1","s_nop 3",f"s_cbranch_vccz {k.lab('pd'+tag)}",f"s_sleep {SLP}","s_cmp_lg_u32 s87, 0",f"s_cbranch_scc1 {k.lab('pl'+tag)}")
    k.label("pd"+tag)
def signal(k,soff,n=1,v=240,byte=False):
    k(f"v_lshlrev_b32 v{v}, 7, v0",f"v_mov_b32 v{v+1}, 1","s_waitcnt vmcnt(0)",f"s_mov_b64 exec, {(1<<n)-1}",
      f"buffer_store_{'byte' if byte else 'dword'} v{v+1}, v{v}, s[{SF}:{SF+3}], s{soff} offen sc1","s_mov_b64 exec, -1")

def wgmap(k,kind):
    if kind=="8x4":
        k(f"s_and_b32 s{S_MI}, s{S_T}, 1",f"s_lshl_b32 s{S_MI}, s{S_MI}, 3",f"s_and_b32 s3, s{S_T2}, 7",f"s_add_u32 s{S_MI}, s{S_MI}, s3",
          f"s_lshr_b32 s{S_NI}, s{S_T}, 1",f"s_lshl_b32 s{S_NI}, s{S_NI}, 2",f"s_lshr_b32 s3, s{S_T2}, 3",f"s_add_u32 s{S_NI}, s{S_NI}, s3")
    else:
        k(f"s_and_b32 s{S_MI}, s{S_T}, 3",f"s_lshl_b32 s{S_MI}, s{S_MI}, 2",f"s_and_b32 s3, s{S_T2}, 3",f"s_add_u32 s{S_MI}, s{S_MI}, s3",
          f"s_lshr_b32 s{S_NI}, s{S_T}, 2",f"s_lshl_b32 s{S_NI}, s{S_NI}, 3",f"s_lshr_b32 s3, s{S_T2}, 2",f"s_add_u32 s{S_NI}, s{S_NI}, s3")
def gemm(name, c, km=None):
    TM,TN,WM,WN,NS,KD=c.TM,c.TN,c.WM,c.WN,c.NS,c.K
    R=c.R; NT=TN*WN; WB=NT*2048; SG1=16384+WB; STG=SG1*R; S1=KD//64; S=S1//R; NWL=NT//2; LW=(4+NWL)*R
    XTRA=147456; mega=km is not None
    k=begin(km,name,max(NS*STG,XTRA+c.lds_extra if c.lds_extra else 0))
    if c.aarg is not None: k(f"s_load_dwordx2 s[{P_A}:{P_A+1}], s[0:1], {c.aarg}")
    if c.barg is not None: k(f"s_load_dwordx2 s[{P_B}:{P_B+1}], s[0:1], {c.barg}")
    k(f"s_and_b32 s{S_T}, s2, 7",f"s_lshr_b32 s{S_T2}, s2, 3")
    wgmap(k,c.map)
    k("v_lshlrev_b32 v2, 4, v0",f"s_cmp_lt_u32 s{S_WAVE}, 4",f"s_cbranch_scc1 {k.lab('cons')}")
    k(f"s_sub_u32 s{S_WAVE}, s{S_WAVE}, 4",f"s_lshl_b32 s41, s{S_WAVE}, 12",f"s_mul_i32 s42, s{S_WAVE}, {NWL*1024}",
      f"s_mul_i32 s{S_XO}, s{S_MI}, {KD*256}",f"s_add_u32 s{S_XO}, s{S_XO}, s41",
      f"s_mul_i32 s{S_WO}, s{S_NI}, {S1*WB}",f"s_add_u32 s{S_WO}, s{S_WO}, s42","s_add_u32 s42, s42, 16384",f"s_mov_b32 s{S_SLOT}, 0",
      "s_waitcnt lgkmcnt(0)",srd(SX,P_WS,c.xoff,2048*KD*2),srd(SW,P_WS,c.woff,16*S1*WB))
    dep=mega and c.xflag is not None
    P=LDP if dep else ''
    def issue(w=True,x=True): return [issue1(w,x) for r in range(R)]
    def issue1(w,x):
        o=[]
        if w:
            o+=[f"s_add_u32 m0, s{S_SLOT}, s42",f"s_add_u32 s{S_T2}, s{S_WO}, 4096"]
            for j in range(NWL):
                if j==4: o+=["s_add_u32 m0, m0, 4096","s_nop 0"]
                o+=[f"buffer_load_dwordx4 v2, s[{SW}:{SW+3}], s{S_WO if j<4 else S_T2} offen offset:{(j%4)*1024}{P} lds"]
            o+=[f"s_add_u32 s{S_WO}, s{S_WO}, {WB}"]
        if x:
            o+=[f"s_add_u32 m0, s{S_SLOT}, s41","s_nop 0"]
            for u in range(4): o+=[f"buffer_load_dwordx4 v2, s[{SX}:{SX+3}], s{S_XO} offen offset:{u*1024}{P} lds"]
            o+=[f"s_add_u32 s{S_XO}, s{S_XO}, 16384"]
        o+=[f"s_add_u32 s{S_SLOT}, s{S_SLOT}, {SG1}",f"s_cmp_ge_u32 s{S_SLOT}, {NS*STG}",f"s_cselect_b32 s{S_SLOT}, 0, s{S_SLOT}"]
        return o
    def rep(tag,n,code): k(f"s_mov_b32 s{S_CNT}, {n}"); k.label(tag); k(code,f"s_sub_u32 s{S_CNT}, s{S_CNT}, 1",f"s_cmp_lg_u32 s{S_CNT}, 0",f"s_cbranch_scc1 {k.lab(tag)}")
    if STAMP: k("s_memtime s[70:71]")
    if dep:
        fsrd(k)
        if c.wflag: k(f"s_mov_b32 s43, {c.wflag[0]}"); poll(k,"w",43,c.wflag[1],1,c.wflag[2])
        if not c.wlate: rep("lpw",(NS-1)*R,issue1(True,False))
        k(f"s_lshl_b32 s43, s{S_MI}, 2",f"s_add_u32 s43, s43, s{S_WAVE}",f"s_lshr_b32 s43, s43, {c.xflag[2]}",f"s_mul_i32 s43, s43, {c.xflag[1]*128}",f"s_add_u32 s43, s43, {c.xflag[0]}",f"s_mov_b32 s{S_SLOT}, 0")
        if c.gate: k("s_barrier")
        if c.wlate: k(f"s_mov_b32 s44, {F6}","s_mov_b32 s45, 0"); poll(k,"x",45,64,1,hi=(43,44))
        else: poll(k,"x",43,c.xflag[1],1)
        if STAMP: k("s_memtime s[72:73]")
        rep("lpx",(NS-1)*R,issue1(c.wlate,True))
        if STAMP: k("s_memtime s[74:75]")
        for j in range(NS-1): k(f"s_waitcnt vmcnt({(NS-2-j)*(LW if c.wlate else 4*R)+j*LW})","s_barrier",issue())
        P0=0
    else:
        P0=min(c.P0,NS-1)
        rep("lpro",P0,issue())
        if STAMP: k("s_memtime s[72:73]",f"s_waitcnt vmcnt({(P0-1)*LW})","s_memtime s[74:75]")
        for j in range(NS-1-P0): k(f"s_waitcnt vmcnt({(P0-1+j)*LW})","s_barrier",issue(),issue())
    k(f"s_mov_b32 s{S_CNT}, {S-(NS-1)-(NS-1-P0)}"); k.label("lloop")
    k(f"s_waitcnt vmcnt({(NS-2)*LW})","s_barrier",issue(),f"s_sub_u32 s{S_CNT}, s{S_CNT}, 1",f"s_cmp_lg_u32 s{S_CNT}, 0",f"s_cbranch_scc1 {k.lab('lloop')}")
    nh=c.loader_head(k) if c.loader_head else 0
    for j in range(NS-1): k(f"s_waitcnt vmcnt({(NS-2-j)*LW+nh})","s_barrier")
    if nh: k("s_waitcnt vmcnt(0)")
    if c.loader_tail: c.loader_tail(k,XTRA)
    if STAMP:
        k("s_lshl_b32 s62, s2, 7",f"s_add_u32 s62, s62, {0x2f00000+KID[k.pre]*65536+64+20}","s_waitcnt lgkmcnt(0)","v_mov_b32 v255, s62")
        for j,r in enumerate((68,70,72,74)): k(f"v_mov_b32 v254, s{r}",f"global_store_dword v255, v254, s[4:5] offset:{4*j}")
    k("s_barrier",f"s_branch {k.lab('end')}" if mega and c.sig else "s_endpgm")
    k.label("cons")
    ACC=c.acc0; FR=ACC+4*TM*TN; FSZ=4*(TM+TN)
    VX,VW,VX0,VW0=6,3,4,5
    assert FR+2*FSZ<=c.vmax,(FR+2*FSZ)
    if WN==2: k(f"s_lshr_b32 s{S_WM}, s{S_WAVE}, 1",f"s_and_b32 s{S_WN}, s{S_WAVE}, 1")
    else: k(f"s_mov_b32 s{S_WM}, s{S_WAVE}",f"s_mov_b32 s{S_WN}, 0")
    k(f"s_mul_i32 s{S_T}, s{S_WM}, {TM*2048}",f"v_add_u32 v{VX0}, s{S_T}, v2",
      f"s_mul_i32 s{S_T}, s{S_WN}, {TN*2048}",f"s_add_u32 s{S_T}, s{S_T}, 16384",f"v_add_u32 v{VW0}, s{S_T}, v2",
      f"v_mov_b32 v{VX}, v{VX0}",f"v_mov_b32 v{VW}, v{VW0}",f"s_mov_b32 s{S_SLOT}, 0",f"s_mov_b32 s{S_CNT}, {S}","s_waitcnt lgkmcnt(0)")
    if dep and c.gate: k("s_barrier")
    stamp(k,1,True)
    c.prologue(k,ACC,FR)
    def xf(b,tm): return FR+b*FSZ+4*tm
    def wf(b,tn): return FR+b*FSZ+4*TM+4*tn
    def reads(h):
        b=h%2; so=(h//2)*SG1
        X=[(f"ds_read_b128 {vr(xf(b,tm),4)}, v{VX} offset:{so+tm*2048+b*1024}",xf(b,tm)) for tm in range(TM)]
        W=[(f"ds_read_b128 {vr(wf(b,tn),4)}, v{VW} offset:{so+tn*2048+b*1024}",wf(b,tn)) for tn in range(TN)]
        return W[:1]+X+W[1:]
    def mfmas(b):
        o=[]
        for tn in range(TN):
            for tm in range(TM):
                a=ACC+4*(tm*TN+tn); x,w=xf(b,tm),wf(b,tn)
                A,B=(x,w) if c.swap(tn) else (w,x)
                o.append((f"v_mfma_f32_16x16x32_bf16 {vr(a,4)}, {vr(A,4)}, {vr(B,4)}, {vr(a,4)}",(x,w)))
        return o
    k("s_barrier"); stamp(k,2)
    q=[]
    for ins,d in reads(0): k(ins); q.append(d)
    k(f".p2align {ALN}"); k.label("cloop")
    if c.aux: k(f"s_cmp_eq_u32 s{S_CNT}, {c.auxat}",f"s_cbranch_scc1 {k.lab('aux')}"); k.label("auxd")
    done=[0]
    def need(regs):
        idx=max([i for i,d in enumerate(q) if d in regs],default=-1)
        if idx>=done[0]:
            n=min(15,len(q)-1-idx); k(f"s_waitcnt lgkmcnt({n})"); done[0]=len(q)-n
    for hh in range(2*R*c.UNR):
        h=hh%(2*R); last=h==2*R-1
        M=mfmas(h%2); RD=reads((h+1)%(2*R)); p=0
        bar=c.barpos if last else -1
        first=bar if last else 0
        for j,(ins,regs) in enumerate(M):
            need(regs); k(ins)
            if last and j==0 : k(f"s_add_u32 s{S_SLOT}, s{S_SLOT}, {STG}",f"s_cmp_ge_u32 s{S_SLOT}, {NS*STG}",f"s_cselect_b32 s{S_SLOT}, 0, s{S_SLOT}")
            if j==bar:
                k("s_waitcnt lgkmcnt(0)",f"v_add_u32 v{VX}, s{S_SLOT}, v{VX0}",f"v_add_u32 v{VW}, s{S_SLOT}, v{VW0}","s_barrier"); done[0]=len(q)
            if hh==2*R*c.UNR-1 and j==len(M)-2: k(f"s_sub_u32 s{S_CNT}, s{S_CNT}, {c.UNR}",f"s_cmp_lg_u32 s{S_CNT}, 0")
            if j>=first and (j-first)%c.rstep==0 and p<len(RD):
                k(RD[p][0]); q.append(RD[p][1]); p+=1
        for ins2,d in RD[p:]: k(ins2); q.append(d)
    k(f"s_cbranch_scc1 {k.lab('cloop')}")
    k("s_waitcnt lgkmcnt(0)","s_nop 7"); stamp(k,3)
    c.epilogue(k,ACC,FR,XTRA)
    if mega and c.sig: fsrd(k); c.sig(k)
    if STAMP and not (mega and c.sig): k("s_waitcnt vmcnt(0)")
    stamp(k,4)
    k.label("end")
    if c.aux:
        L=k.L; k.L=k.ool; k.label("aux"); c.aux(k); k(f"s_branch {k.lab('auxd')}"); k.L=L
    return k if mega else finish(k)
def zero_acc(n):
    def f(k,ACC,FR):
        for i in range(n): k(f"v_mov_b32 v{ACC+i}, 0")
    return f
def pack(k,dst,src,n=16):
    for i in range(n//2): k(f"v_cvt_pk_bf16_f32 v{dst+i}, v{src+2*i}, v{src+2*i+1}")
def relayout_addr(k,vsrc,vtr,sstride,g1,g2,vt=7):
    k(f"v_lshrrev_b32 v{vsrc}, 2, v0",f"v_mul_lo_u32 v{vsrc}, s{sstride}, v{vsrc}",f"v_and_b32 v{vt}, 3, v0",f"v_lshl_add_u32 v{vsrc}, v{vt}, 4, v{vsrc}",
      f"v_lshlrev_b32 v{vtr}, 4, v{vt}",f"v_bfe_u32 v{vt}, v0, 2, 2",f"v_lshl_add_u32 v{vtr}, v{vt}, 6, v{vtr}")
```

```python
from lib import *
import gemm as G
from gemm import *
import math
def mkcfg(**kw):
    c=Cfg(); c.aarg=None; c.barg=None; c.loader_head=None; c.loader_tail=None; c.lds_extra=0; c.swap=lambda tn:False; c.acc0=8; c.vmax=252; c.barpos=G.BP; c.rstep=G.RS; c.UNR=G.UNR; c.aux=None; c.auxat=0; c.P0=G.P0; c.R=1; c.xflag=None; c.wflag=None; c.sig=None; c.wlate=False; c.gate=G.GATE
    c.__dict__.update(kw); return c
def unpack(k,dst,src,n):
    for i in range(n): k(f"v_lshlrev_b32 v{dst+2*i}, 16, v{src+i}",f"v_and_b32 v{dst+2*i+1}, 0xffff0000, v{src+i}")
def rstd_from(k,s,q,out):
    k(f"v_mul_f32 v{s}, {f2u(-1/1024)}, v{s}",f"v_mul_f32 v{q}, {f2u(1/1024)}, v{q}",f"v_fma_f32 v{q}, -v{s}, v{s}, v{q}",f"v_max_f32 v{q}, 0, v{q}",
      f"v_add_f32 v{q}, {f2u(1e-5)}, v{q}",f"v_rsq_f32 v{out}, v{q}")
def k_qkv(km=None):
    def epi(k,ACC,FR,X):
        k(srd(SO,P_WS,WS_QF,0x400000),srd(SA,P_WS,WS_KV,0x800000))
        k(f"s_lshl_b32 s{S_T}, s{S_MI}, 2",f"s_lshl_b32 s3, s{S_WM}, 1",f"s_add_u32 s{S_T}, s{S_T}, s3",
          f"s_lshl_b32 s{S_T2}, s{S_NI}, 1",f"s_add_u32 s{S_T2}, s{S_T2}, s{S_WN}",f"s_lshl_b32 s{S_T2}, s{S_T2}, 6",f"s_add_u32 s{S_T}, s{S_T}, s{S_T2}",
          f"s_lshl_b32 s41, s{S_T}, 11",f"s_lshl_b32 s42, s{S_T}, 12","s_add_u32 s43, s42, 4096",
          f"s_mov_b32 s52, {f2u(math.log2(math.e)/math.sqrt(32))}",f"s_mov_b32 s53, s52",
          "v_lshrrev_b32 v4, 4, v0","v_lshlrev_b32 v4, 9, v4","v_and_b32 v5, 15, v0","v_lshl_add_u32 v2, v5, 4, v4",
          )
        d=FR
        for tm in range(4):
            a=ACC+24*tm; sk=42+tm//2
            pack(k,d,a+8,8); k(f"buffer_store_dwordx4 {vr(d,4)}, v2, s[{SA}:{SA+3}], s{sk} offen offset:{256*(tm%2)}{G.STF}"); d+=4
            if tm%2:
                for t in range(2):
                    pack(k,d,a-24+16+4*t,4); pack(k,d+2,a+16+4*t,4)
                    k(f"buffer_store_dwordx4 {vr(d,4)}, v2, s[{SA}:{SA+3}], s{sk} offen offset:{2048+256*t}{G.STF}"); d+=4
            for i in range(4): k(f"v_pk_mul_f32 {vr(a+2*i,2)}, {vr(a+2*i,2)}, s[52:53]")
            pack(k,d,a,8); k(f"buffer_store_dwordx4 {vr(d,4)}, v2, s[{SO}:{SO+3}], s41 offen offset:{2048*(tm//2)+256*(tm%2)}{G.STF}"); d+=4
    def sig(k):
        k(f"s_lshl_b32 s43, s{S_NI}, 1",f"s_add_u32 s43, s43, s{S_WN}","s_lshl_b32 s43, s43, 5",f"s_lshl_b32 s3, s{S_MI}, 1","s_add_u32 s43, s43, s3",f"s_add_u32 s43, s43, s{S_WM}","s_lshl_b32 s43, s43, 7"); signal(k,43)
    c=mkcfg(sig=sig,TM=4,TN=6,WM=2,WN=2,NS=4,K=1024,woff=WS_WQ,xoff=WS_XN,map="8x4",swap=lambda tn:tn>=4,prologue=zero_acc(96),epilogue=epi)
    return gemm("qkv",c,km)
def rowmajor_addr(k,v,sdst):
    k(f"s_lshl_b32 s{sdst}, s{S_MI}, 2",f"s_add_u32 s{sdst}, s{sdst}, s{S_WM}",f"s_lshl_b32 s{sdst}, s{sdst}, 16",f"s_lshl_b32 s3, s{S_NI}, 7",f"s_add_u32 s{sdst}, s{sdst}, s3",
      f"s_add_u32 s{sdst+1}, s{sdst}, 32768",f"v_and_b32 v{v}, 15, v0",f"v_lshlrev_b32 v{v}, 11, v{v}","v_lshrrev_b32 v1, 4, v0",f"v_lshl_add_u32 v{v}, v1, 4, v{v}")
def hunit_addr(k,sdst):
    k(f"s_lshl_b32 s{sdst}, s{S_MI}, 18",f"s_lshl_b32 s3, s{S_NI}, 14",f"s_add_u32 s{sdst}, s{sdst}, s3",f"s_lshl_b32 s3, s{S_WM}, 12",f"s_add_u32 s{sdst}, s{sdst}, s3")
def k_oproj(km=None):
    def pro(k):
        k(srd(SA,P_A,0,0x400000)); rowmajor_addr(k,7,41)
        for j in range(4): k(f"buffer_load_dwordx4 {vr(100+4*j,4)}, v7, s[{SA}:{SA+3}], s{41+j//2} offen offset:{64*(j%2)}")
    def epi(k,ACC,FR,X):
        k(srd(SO,P_WS,WS_HF,0x400000),srd(SB,P_WS,WS_ST,2048*128)); hunit_addr(k,41)
        k("s_waitcnt vmcnt(0)"); unpack(k,120,100,16)
        for i in range(16): k(f"v_pk_add_f32 {vr(ACC+2*i,2)}, {vr(ACC+2*i,2)}, {vr(120+2*i,2)}")
        pack(k,FR,ACC,32)
        for j in range(4): k(f"buffer_store_dwordx4 {vr(FR+4*j,4)}, v2, s[{SO}:{SO+3}], s41 offen offset:{1024*j}{G.STF}")
        for tm in range(2):
            a=ACC+16*tm; s_,q_=100+4*tm,102+4*tm
            k(f"v_pk_add_f32 {vr(s_,2)}, {vr(a,2)}, {vr(a+2,2)}",f"v_pk_mul_f32 {vr(q_,2)}, {vr(a,2)}, {vr(a,2)}",f"v_pk_fma_f32 {vr(q_,2)}, {vr(a+2,2)}, {vr(a+2,2)}, {vr(q_,2)}")
            for i in range(2,8): k(f"v_pk_add_f32 {vr(s_,2)}, {vr(s_,2)}, {vr(a+2*i,2)}",f"v_pk_fma_f32 {vr(q_,2)}, {vr(a+2*i,2)}, {vr(a+2*i,2)}, {vr(q_,2)}")
            k(f"v_add_f32 v{s_}, v{s_}, v{s_+1}",f"v_add_f32 v{q_}, v{q_}, v{q_+1}")
        k(f"s_lshl_b32 s42, s{S_MI}, 2",f"s_add_u32 s42, s42, s{S_WM}","s_lshl_b32 s42, s42, 12",f"s_lshl_b32 s3, s{S_NI}, 3","s_add_u32 s42, s42, s3",
          "v_permlane32_swap_b32 v100, v104","v_permlane32_swap_b32 v102, v106","v_and_b32 v3, 15, v0","v_lshlrev_b32 v3, 7, v3",
          "v_add_f32 v100, v100, v104","v_add_f32 v102, v102, v106","v_lshrrev_b32 v4, 5, v0","v_lshl_add_u32 v3, v4, 11, v3",
          "v_permlane16_swap_b32 v100, v102","v_bfe_u32 v4, v0, 4, 1","v_lshl_add_u32 v3, v4, 2, v3","v_add_f32 v100, v100, v102",
          f"buffer_store_dword v100, v3, s[{SB}:{SB+3}], s42 offen sc1")
    def sig(k):
        k(f"s_lshl_b32 s43, s{S_MI}, 2",f"s_add_u32 s43, s43, s{S_WM}","s_lshl_b32 s43, s43, 4",f"s_add_u32 s43, s43, s{S_NI}","s_lshl_b32 s43, s43, 7",f"s_add_u32 s43, s43, {F3}"); signal(k,43)
    c=mkcfg(sig=sig,xflag=(F2,32,0),gate=0,wlate=bool(G.NOPREP),TM=2,TN=4,WM=4,WN=1,NS=6//G.R6,R=G.R6,K=1024,aarg=A_X,woff=WS_WO,xoff=WS_OF,map="4x8",prologue=zero_acc(32),aux=pro,auxat=G.AUX6//G.R6,epilogue=epi,barpos=1,rstep=1,UNR=G.UNR6,vmax=100)
    return gemm("oproj",c,km)
def k_ffn1(km=None):
    def lhead(k):
        k(srd(SA,P_WS,WS_CS,4*3584*4),srd(SB,P_A,0,3584*2),f"s_lshl_b32 s{S_T}, s{S_WAVE}, 6",f"v_add_u32 v20, s{S_T}, v0",
          f"s_mul_i32 s{S_T}, s{S_NI}, 224",f"v_add_u32 v21, s{S_T}, v20","v_lshlrev_b32 v22, 2, v21","v_lshlrev_b32 v21, 1, v21",
          f"buffer_load_ushort v40, v21, s[{SB}:{SB+3}], 0 offen")
        for p in range(4): k(f"s_mov_b32 s{S_T}, {p*3584*4}",f"buffer_load_dword v{24+p}, v22, s[{SA}:{SA+3}], s{S_T} offen sc1")
        return 5
    def ltail(k,X):
        for p in range(1,4): k(f"v_add_f32 v24, v24, v{24+p}")
        k("v_lshlrev_b32 v40, 16, v40","v_lshrrev_b32 v21, 5, v20","v_bfe_u32 v22, v20, 2, 1","v_lshl_add_u32 v25, v21, 1, v22",
          "v_bfe_u32 v28, v20, 3, 2","v_bfe_u32 v29, v20, 2, 2","v_bfe_u32 v22, v20, 4, 1",
          "v_cmp_lt_u32 vcc, 3, v21","v_subrev_u32 v26, 1, v25","v_mul_u32_u24 v27, 7, v22","v_cndmask_b32 v25, v25, v26, vcc","v_cmp_eq_u32 vcc, 3, v21","v_add_u32 v27, 6, v27","s_nop 0","v_cndmask_b32 v25, v25, v27, vcc","v_cndmask_b32 v28, v28, v29, vcc",
          "v_cmp_eq_u32 vcc, 7, v21","v_mov_b32 v27, 15","s_nop 0","v_cndmask_b32 v25, v25, v27, vcc",
          "v_lshlrev_b32 v25, 6, v25","v_lshl_add_u32 v25, v28, 4, v25","v_and_b32 v26, 3, v20","v_lshl_add_u32 v25, v26, 2, v25",
          f"v_add_u32 v25, {X}, v25","ds_write_b32 v25, v24","ds_write_b32 v25, v40 offset:1024","s_waitcnt lgkmcnt(0)")
    ST=208
    def pro(k):
        k(srd(SB,P_WS,WS_ST,2048*128),f"s_lshl_b32 s{S_T}, s{S_MI}, 1",f"s_add_u32 s{S_T}, s{S_T}, s{S_WM}",f"s_lshl_b32 s{S_T}, s{S_T}, 13",
          "v_and_b32 v7, 15, v0","v_lshlrev_b32 v7, 7, v7","v_lshrrev_b32 v1, 4, v0","v_lshl_add_u32 v7, v1, 5, v7")
        for tm in range(4):
            if tm==2: k(f"s_add_u32 s{S_T}, s{S_T}, 4096")
            for j in range(2): k(f"buffer_load_dwordx4 {vr(ST+8*tm+4*j,4)}, v7, s[{SB}:{SB+3}], s{S_T} offen offset:{2048*(tm%2)+16*j} sc1")
    def epi(k,ACC,FR,X):
        k(srd(SO,P_WS,WS_GF,2048*3584*2))
        CSR=FR; BR=FR+28; T=FR+56
        k(f"s_mul_i32 s3, s{S_WN}, 448",f"s_add_u32 s3, s3, {X}","v_lshrrev_b32 v3, 4, v0","v_lshlrev_b32 v3, 4, v3","v_add_u32 v3, s3, v3")
        for tn in range(7): k(f"ds_read_b128 {vr(CSR+4*tn,4)}, v3 offset:{64*tn}",f"ds_read_b128 {vr(BR+4*tn,4)}, v3 offset:{1024+64*tn}")
        k(f"s_mul_i32 s41, s{S_MI}, {3584*256}",f"s_lshl_b32 s3, s{S_WM}, 13","s_add_u32 s41, s41, s3",f"s_mul_i32 s42, s{S_NI}, 7",f"s_lshl_b32 s43, s{S_WN}, 2")
        for p in range(4):
            if p<3: k(f"s_add_u32 s3, s42, s43",f"s_add_u32 s3, s3, {p}")
            else: k("s_add_u32 s3, s42, 3")
            k(f"s_lshr_b32 s{54+p}, s3, 1",f"s_lshl_b32 s{54+p}, s{54+p}, 14","s_and_b32 s3, s3, 1","s_lshl_b32 s3, s3, 10",f"s_add_u32 s{54+p}, s{54+p}, s3",f"s_add_u32 s{54+p}, s{54+p}, s41")
        k(f"s_lshl_b32 s3, s{S_WN}, 9","s_add_u32 s57, s57, s3","v_add_u32 v7, 4096, v2",
          "v_and_b32 v6, 15, v0","v_lshlrev_b32 v6, 4, v6","v_bfe_u32 v1, v0, 4, 1","v_lshl_add_u32 v6, v1, 11, v6","v_lshrrev_b32 v1, 5, v0","v_lshl_add_u32 v6, v1, 8, v6","s_waitcnt vmcnt(0)")
        for tm in range(4):
            r=ST+8*tm
            k(f"v_pk_add_f32 {vr(r,2)}, {vr(r,2)}, {vr(r+2,2)}",f"v_pk_add_f32 {vr(r+4,2)}, {vr(r+4,2)}, {vr(r+6,2)}",f"v_pk_add_f32 {vr(r,2)}, {vr(r,2)}, {vr(r+4,2)}")
        for op in ("v_permlane16_swap_b32","v_permlane32_swap_b32"):
            for tm in range(4): r=ST+8*tm; k(f"v_mov_b32 v{r+2}, v{r}",f"v_mov_b32 v{r+3}, v{r+1}")
            k("s_nop 1")
            for tm in range(4): r=ST+8*tm; k(f"{op} v{r}, v{r+2}",f"{op} v{r+1}, v{r+3}")
            k("s_nop 1")
            for tm in range(4): r=ST+8*tm; k(f"v_pk_add_f32 {vr(r,2)}, {vr(r,2)}, {vr(r+2,2)}")
        for tm in range(4): r=ST+8*tm; rstd_from(k,r,r+1,r+2); k(f"v_mov_b32 v{r+1}, v{r}",f"v_mov_b32 v{r+3}, v{r+2}")
        a_=-2*0.7978845608028654*math.log2(math.e); b_=a_*0.044715
        k(f"s_mov_b32 s52, {f2u(b_)}",f"s_mov_b32 s53, {f2u(b_)}",f"v_mov_b32 v4, {f2u(a_)}",f"v_mov_b32 v5, {f2u(a_)}","s_waitcnt lgkmcnt(0)")
        P=lambda r,i:vr(r+2*i,2)
        for tm in range(4):
            a=ACC+28*tm; r=ST+8*tm
            for i in range(14): k(f"v_pk_fma_f32 {P(a,i)}, {P(CSR,i)}, {vr(r,2)}, {P(a,i)}")
            for i in range(14): k(f"v_pk_fma_f32 {P(a,i)}, {P(a,i)}, {vr(r+2,2)}, {P(BR,i)}")
            for i in range(14): k(f"v_pk_mul_f32 {P(T,i)}, {P(a,i)}, {P(a,i)}")
            for i in range(14): k(f"v_pk_fma_f32 {P(T,i)}, {P(T,i)}, s[52:53], v[4:5]")
            for i in range(14): k(f"v_pk_mul_f32 {P(T,i)}, {P(T,i)}, {P(a,i)}")
            for i in range(28): k(f"v_exp_f32 v{T+i}, v{T+i}")
            for i in range(14): k(f"v_pk_add_f32 {P(T,i)}, {P(T,i)}, 1.0 op_sel_hi:[1,0]")
            for i in range(28): k(f"v_rcp_f32 v{T+i}, v{T+i}")
            for i in range(14): k(f"v_pk_mul_f32 {P(T,i)}, {P(T,i)}, {P(a,i)}")
            pack(k,a,T,24); sg=ACC+28*(tm&~1)+12; pack(k,sg+2*(tm%2),T+24,4)
            va=2 if tm<2 else 7
            for p in range(3): k(f"buffer_store_dwordx4 {vr(a+4*p,4)}, v{va}, s[{SO}:{SO+3}], s{54+p} offen offset:{2048*(tm%2)}{G.STF}")
            if tm%2:
                k(f"v_permlane16_swap_b32 v{sg}, v{sg+2}",f"v_permlane16_swap_b32 v{sg+1}, v{sg+3}",f"buffer_store_dwordx4 {vr(sg,4)}, v6, s[{SO}:{SO+3}], s57 offen{G.STF}","s_add_u32 s57, s57, 4096")
    def sig(k):
        k(f"s_lshl_b32 s43, s{S_MI}, 1",f"s_add_u32 s43, s43, s{S_WM}","s_lshl_b32 s43, s43, 5",f"s_lshl_b32 s3, s{S_NI}, 1","s_add_u32 s43, s43, s3",f"s_add_u32 s43, s43, s{S_WN}","s_lshl_b32 s43, s43, 7",f"s_add_u32 s43, s43, {F4}"); signal(k,43)
    c=mkcfg(sig=sig,xflag=(F3,16,0),wflag=(F5,56,True),TM=4,TN=7,WM=2,WN=2,NS=3,K=1024,aarg=A_B1,woff=WS_W1,xoff=WS_HF,map="8x4",prologue=zero_acc(112),aux=pro,auxat=max(2,G.UNR),epilogue=epi,loader_head=lhead,loader_tail=ltail,lds_extra=2048,vmax=208)
    return gemm("ffn1",c,km)
def k_ffn2(km=None):
    def pro(k):
        k(srd(SA,P_WS,WS_HF,0x400000),srd(SB,P_A,0,2048)); hunit_addr(k,41)
        k(f"s_lshl_b32 s42, s{S_NI}, 7","v_lshrrev_b32 v7, 4, v0","v_lshlrev_b32 v7, 4, v7")
        for j in range(4): k(f"buffer_load_dwordx4 {vr(100+4*j,4)}, v2, s[{SA}:{SA+3}], s41 offen offset:{1024*j} sc1")
        for j in range(2): k(f"buffer_load_dwordx4 {vr(116+4*j,4)}, v7, s[{SB}:{SB+3}], s42 offen offset:{64*j}")
    def epi(k,ACC,FR,X):
        k(srd(SO,P_B,0,0x400000)); rowmajor_addr(k,7,41)
        k("s_waitcnt vmcnt(0)"); unpack(k,130,100,24)
        for i in range(16): k(f"v_pk_add_f32 {vr(ACC+2*i,2)}, {vr(ACC+2*i,2)}, {vr(162+2*(i%8),2)}")
        for i in range(16): k(f"v_pk_add_f32 {vr(ACC+2*i,2)}, {vr(ACC+2*i,2)}, {vr(130+2*i,2)}")
        pack(k,FR,ACC,32)
        for j in range(4): k(f"buffer_store_dwordx4 {vr(FR+4*j,4)}, v7, s[{SO}:{SO+3}], s{41+j//2} offen offset:{64*(j%2)}")
    c=mkcfg(xflag=(F4,32,1),TM=2,TN=4,WM=4,WN=1,NS=6//G.R6,R=G.R6,K=3584,aarg=A_B2,barg=A_OUT,woff=WS_W2,xoff=WS_GF,map="4x8",prologue=zero_acc(32),aux=pro,auxat=G.AUX6//G.R6,epilogue=epi,barpos=1,rstep=1,UNR=G.UNR6,vmax=100)
    return gemm("ffn2",c,km)
def k_prep():
    k=K("prep_kernel",256,512,256+4*8192,nv=256 if G.STAMP else 64)
    stamp0(k)
    k("s_cmp_ge_u32 s2, 256",f"s_cbranch_scc1 {k.lab('end')}",f"s_load_dwordx2 s[4:5], s[0:1], {A_WS}",f"s_load_dwordx4 s[48:51], s[0:1], {A_X}",f"s_load_dwordx2 s[56:57], s[0:1], {A_WO}",f"s_load_dwordx2 s[52:53], s[0:1], {A_B1}",f"s_load_dwordx2 s[54:55], s[0:1], {A_B2}",
      "v_lshrrev_b32 v1, 6, v0","v_and_b32 v0, 63, v0","s_nop 0",f"v_readfirstlane_b32 s30, v1","s_nop 1","s_cmp_ge_u32 s30, 4",f"s_cbranch_scc1 {k.lab('w')}")
    k("v_and_b32 v2, 7, v0","v_lshrrev_b32 v3, 3, v0","v_lshlrev_b32 v4, 11, v2","v_lshl_add_u32 v4, v3, 4, v4","s_lshl_b32 s31, s2, 14","s_lshl_b32 s32, s30, 9","s_add_u32 s31, s31, s32",
      "s_waitcnt lgkmcnt(0)",srd(8,48,0,0x400000))
    for i in range(4): k(f"buffer_load_dwordx4 {vr(8+4*i,4)}, v4, s[8:11], s31 offen offset:{128*i}")
    k(srd(16,4,WS_FL,FLN),"s_lshl_b32 s35, s2, 2","s_add_u32 s35, s35, s30","s_lshl_b32 s35, s35, 10","v_lshlrev_b32 v6, 4, v0","v_mov_b32 v28, 0","v_mov_b32 v29, 0","v_mov_b32 v30, 0","v_mov_b32 v31, 0",
      f"buffer_store_dwordx4 v[28:31], v6, s[16:19], s35 offen{G.STF}")
    stamp(k,1,True)
    k(srd(12,4,WS_XN,0x400000),"s_lshr_b32 s33, s2, 4","s_lshl_b32 s33, s33, 18","s_bfe_u32 s34, s2, 0x30001","s_lshl_b32 s34, s34, 11","s_add_u32 s33, s33, s34",
      "s_and_b32 s34, s2, 1","s_lshl_b32 s34, s34, 7","s_add_u32 s33, s33, s34","s_lshl_b32 s34, s30, 16","s_add_u32 s33, s33, s34",
      "v_lshlrev_b32 v5, 8, v3","v_lshl_add_u32 v5, v2, 4, v5","s_waitcnt vmcnt(1)")
    stamp(k,2)
    unpack(k,32,8,16)
    k("v_pk_add_f32 v[24:25], v[32:33], v[34:35]","v_pk_mul_f32 v[26:27], v[32:33], v[32:33]","v_pk_fma_f32 v[26:27], v[34:35], v[34:35], v[26:27]")
    for i in range(2,16): k(f"v_pk_add_f32 v[24:25], v[24:25], {vr(32+2*i,2)}",f"v_pk_fma_f32 v[26:27], {vr(32+2*i,2)}, {vr(32+2*i,2)}, v[26:27]")
    k("v_add_f32 v24, v24, v25","v_add_f32 v25, v26, v27","s_nop 1","v_add_f32_dpp v24, v24, v24 row_ror:8 row_mask:0xf bank_mask:0xf","v_add_f32_dpp v25, v25, v25 row_ror:8 row_mask:0xf bank_mask:0xf")
    for op in ("v_permlane16_swap_b32","v_permlane32_swap_b32"):
        k("v_mov_b32 v26, v24","v_mov_b32 v27, v25","s_nop 1",f"{op} v24, v26",f"{op} v25, v27","s_nop 1","v_add_f32 v24, v24, v26","v_add_f32 v25, v25, v27")
    k("s_lshl_b32 s34, s30, 6","v_lshlrev_b32 v6, 3, v2","v_add_u32 v7, s34, v6","ds_write_b64 v7, v[24:25]","s_waitcnt lgkmcnt(0)","s_barrier")
    for w in range(4): k(f"ds_read_b64 {vr(8+2*w,2)}, v6 offset:{64*w}")
    k("s_waitcnt lgkmcnt(0)","v_pk_add_f32 v[8:9], v[8:9], v[10:11]","v_pk_add_f32 v[12:13], v[12:13], v[14:15]","v_pk_add_f32 v[24:25], v[8:9], v[12:13]")
    rstd_from(k,24,25,26); k("v_mov_b32 v25, v24","v_mov_b32 v27, v26")
    for i in range(16): k(f"v_pk_add_f32 {vr(32+2*i,2)}, {vr(32+2*i,2)}, v[24:25]")
    for i in range(16): k(f"v_pk_mul_f32 {vr(32+2*i,2)}, {vr(32+2*i,2)}, v[26:27]")
    pack(k,8,32,32)
    for i in range(4): k(f"buffer_store_dwordx4 {vr(8+4*i,4)}, v5, s[12:15], s33 offen{G.STF}","s_add_u32 s33, s33, 16384")
    stamp(k,3)
    if G.STAMP: k("s_waitcnt vmcnt(0)")
    stamp(k,4)
    k("s_endpgm")
    k.label("w")
    k("s_sub_u32 s30, s30, 4","s_mov_b32 s35, 6144"); relayout_addr(k,2,3,35,None,None)
    k("v_lshrrev_b32 v7, 4, v0","v_lshl_add_u32 v3, v7, 9, v3","s_lshl_b32 s36, s30, 13","s_add_u32 s36, s36, 256","v_add_u32 v3, s36, v3","v_lshlrev_b32 v4, 4, v0",
      "s_lshr_b32 s31, s2, 3","s_and_b32 s32, s2, 7","s_mul_i32 s32, s32, 12","s_mul_i32 s33, s30, 3","s_add_u32 s32, s32, s33",
      f"s_mul_i32 s33, s31, {32*6144}","s_lshl_b32 s34, s32, 6","s_add_u32 s33, s33, s34",f"s_add_u32 s34, s33, {16*6144}",
      "s_waitcnt lgkmcnt(0)",srd(8,50,0,1024*6144),srd(12,4,WS_WQ,1024*6144))
    for it in range(3):
        k(f"s_add_u32 m0, s36, {2048*it}","s_nop 0","buffer_load_dwordx4 v2, s[8:11], s33 offen lds",f"s_add_u32 m0, s36, {2048*it+1024}","s_add_u32 s33, s33, 64",
          "buffer_load_dwordx4 v2, s[8:11], s34 offen lds","s_add_u32 s34, s34, 64")
    k(srd(16,56,0,1024*2048),srd(20,4,WS_WO,1024*2048),"s_mov_b32 s35, 2048"); relayout_addr(k,40,41,35,None,None)
    k("s_and_b32 s42, s2, 7","s_lshl_b32 s42, s42, 2","s_add_u32 s42, s42, s30","s_lshl_b32 s33, s31, 16","s_lshl_b32 s34, s42, 6","s_add_u32 s33, s33, s34","s_add_u32 s34, s33, 32768",
      "s_add_u32 m0, s36, 6144","v_lshrrev_b32 v7, 5, v0","buffer_load_dwordx4 v40, s[16:19], s33 offen lds","s_add_u32 m0, s36, 7168","v_lshl_add_u32 v41, v7, 10, v41","buffer_load_dwordx4 v40, s[16:19], s34 offen lds",
      "v_bfe_u32 v7, v0, 4, 1","v_lshl_add_u32 v41, v7, 8, v41","v_add_u32 v41, s36, v41",
      "s_lshr_b32 s43, s42, 1","s_lshl_b32 s43, s43, 17","s_and_b32 s42, s42, 1","s_lshl_b32 s42, s42, 12","s_add_u32 s43, s43, s42","s_lshr_b32 s42, s31, 1","s_lshl_b32 s42, s42, 13","s_add_u32 s43, s43, s42",
      "s_and_b32 s42, s31, 1","s_lshl_b32 s42, s42, 10","s_add_u32 s43, s43, s42")
    k("s_barrier","s_lshr_b32 s37, s31, 1","s_mul_i32 s37, s37, 24576","s_and_b32 s31, s31, 1","s_lshl_b32 s31, s31, 10","s_add_u32 s37, s37, s31")
    for it in range(3):
        k("s_waitcnt vmcnt(6)")
        for t in range(2):
            k(f"ds_read_b64_tr_b16 {vr(8+8*it+4*t,2)}, v3 offset:{2048*it+8*t}",f"ds_read_b64_tr_b16 {vr(10+8*it+4*t,2)}, v3 offset:{2048*it+8*t+256}")
        k("s_lshr_b32 s39, s32, 5","s_bfe_u32 s40, s32, 0x40001",f"s_mul_i32 s40, s40, {16*24576}","s_and_b32 s41, s32, 1","s_mul_i32 s41, s41, 3","s_add_u32 s39, s39, s41","s_lshl_b32 s39, s39, 12",
          "s_add_u32 s39, s39, s40","s_add_u32 s39, s39, s37","s_add_u32 s32, s32, 1","s_waitcnt lgkmcnt(0)")
        for t in range(2): k(f"buffer_store_dwordx4 {vr(8+8*it+4*t,4)}, v4, s[12:15], s39 offen offset:{2048*t}{G.STF}")
    k("s_waitcnt vmcnt(6)")
    for t in range(2): k(f"ds_read_b64_tr_b16 {vr(32+4*t,2)}, v41 offset:{6144+8*t}",f"ds_read_b64_tr_b16 {vr(34+4*t,2)}, v41 offset:{6144+8*t+512}")
    k("s_waitcnt lgkmcnt(0)")
    for t in range(2): k(f"buffer_store_dwordx4 {vr(32+4*t,4)}, v4, s[20:23], s43 offen offset:{2048*t}{G.STF}")
    k("s_cmp_lg_u32 s2, 0",f"s_cbranch_scc1 {k.lab('end')}",srd(8,52,0,7168),srd(12,54,0,2048),"v_lshlrev_b32 v4, 7, v0",
      "buffer_load_dword v5, v4, s[8:11], 0 offen","buffer_load_dword v6, v4, s[12:15], 0 offen","s_waitcnt vmcnt(0)")
    k.label("end"); k("s_endpgm")
    return k
```

```python
from lib import *
import gemm as G
from gemm import *
from kern import rstd_from
import math
WS_RP=0x0; WS_CP=0x100000
def k_qkvd(km):
    k=begin(km,"qkv",163840); NS=4; STG=40960; LW=10; S=16; PSH=G.PSH
    k(f"s_load_dwordx4 s[48:51], s[0:1], {A_X}",f"s_load_dwordx2 s[52:53], s[0:1], {A_DBG}",f"s_and_b32 s{S_T}, s2, 7",f"s_lshr_b32 s{S_T2}, s2, 3")
    wgmap(k,"8x4")
    if G.LAT: k(f"s_and_b32 s58, s{S_MI}, 7","s_lshl_b32 s58, s58, 1",f"s_lshr_b32 s3, s{S_MI}, 3","s_add_u32 s58, s58, s3")
    else: k(f"s_mov_b32 s58, s{S_MI}")
    k(f"s_add_u32 s58, s58, s{S_NI}","s_and_b32 s58, s58, 15",
      f"s_cmp_lt_u32 s{S_WAVE}, 4",f"s_cbranch_scc1 {k.lab('cons')}")
    k(f"s_sub_u32 s{S_WAVE}, s{S_WAVE}, 4","v_lshrrev_b32 v3, 3, v0","v_and_b32 v4, 7, v0","v_lshrrev_b32 v5, 1, v3","v_xor_b32 v6, v4, v5","v_lshlrev_b32 v7, 11, v3")
    for u in range(4): k(f"v_xor_b32 v1, {4*(u%2)}, v6",f"v_lshl_add_u32 v{8+u}, v1, 4, v7",f"v_add_u32 v{8+u}, {u*(16384-1024)}, v{8+u}")
    k("v_and_b32 v5, 2, v3","v_xor_b32 v6, v4, v5","v_mul_u32_u24 v7, 6144, v3","v_lshl_add_u32 v12, v6, 4, v7","v_xor_b32 v6, 4, v6","v_lshl_add_u32 v13, v6, 4, v7",f"v_add_u32 v13, {8*6144-1024}, v13",
      f"s_lshl_b32 s41, s{S_WAVE}, 12",f"s_lshl_b32 s42, s{S_WAVE}, 11","s_add_u32 s42, s42, 16384",
      f"s_lshl_b32 s43, s{S_MI}, 2",f"s_add_u32 s43, s43, s{S_WAVE}","s_lshl_b32 s43, s43, 16",f"s_mul_i32 s3, s{S_WAVE}, {16*6144}")
    for p in range(3): k(f"s_add_u32 s{44+p}, s{S_NI}, {PSH*p}",f"s_and_b32 s{44+p}, s{44+p}, 15",f"s_lshl_b32 s{44+p}, s{44+p}, 7",f"s_add_u32 s{44+p}, s{44+p}, s3",f"s_add_u32 s{44+p}, s{44+p}, {2048*p}")
    k("s_mov_b32 s47, s58","s_and_b32 s59, s2, 7",f"s_mul_i32 s59, s59, {G.XOF}",f"s_and_b32 s3, s{S_MI}, {G.SKM}",f"s_mul_i32 s3, s3, {G.SK}","s_add_u32 s59, s59, s3","s_and_b32 s59, s59, 15")
    if G.SK<0: k("s_mov_b32 s59, s58")
    k(f"s_mov_b32 s{S_SLOT}, 0","s_waitcnt lgkmcnt(0)",srd(SX,48,0,0x400000),srd(SW,50,0,1024*6144))
    def issue():
        o=[f"s_mul_i32 s{S_WO}, s58, {64*6144}",f"s_lshl_b32 s{S_XO}, s58, 7",f"s_add_u32 s{S_XO}, s{S_XO}, s43",f"s_add_u32 m0, s{S_SLOT}, s41","s_add_u32 s58, s59, 1"]
        o+=[f"s_add_u32 s54, s{S_SLOT}, s41",f"s_add_u32 s55, s{S_SLOT}, s42"]+[f"s_add_u32 s{78+p}, s{S_WO}, s{44+p}" for p in range(3)]
        for it in G.QORD:
            if it[0]=="x": u=int(it[1]); o+=["s_mov_b32 m0, s54","s_nop 0",f"buffer_load_dwordx4 v{8+u}, s[{SX}:{SX+3}], s{S_XO} offen offset:{1024*u}{G.QLP} lds"]
            else: p,h=int(it[0]),int(it[1]); o+=[f"s_add_u32 m0, s55, {8192*p}","s_nop 0",f"buffer_load_dwordx4 v{12+h}, s[{SW}:{SW+3}], s{78+p} offen offset:{1024*h}{G.QLP} lds"]
        o+=["s_and_b32 s58, s58, 15","s_cmp_eq_u32 s59, s47","s_cselect_b32 s58, s58, s59","s_add_u32 s59, s58, 1","s_and_b32 s59, s59, 15",f"s_add_u32 s{S_SLOT}, s{S_SLOT}, {STG}",f"s_cmp_ge_u32 s{S_SLOT}, {NS*STG}",f"s_cselect_b32 s{S_SLOT}, 0, s{S_SLOT}"]
        return o
    def rep(tag,n,code): k(f"s_mov_b32 s{S_CNT}, {n}"); k.label(tag); k(code,f"s_sub_u32 s{S_CNT}, s{S_CNT}, 1",f"s_cmp_lg_u32 s{S_CNT}, 0",f"s_cbranch_scc1 {k.lab(tag)}")
    P0=G.QP0
    rep("lpro",P0,issue())
    for j in range(NS-1-P0): k(f"s_waitcnt vmcnt({(P0-1+j)*LW})","s_barrier",issue(),issue())
    rep("lloop",S-(NS-1)-(NS-1-P0),[f"s_waitcnt vmcnt({(NS-2)*LW})","s_barrier",issue()])
    k(f"s_waitcnt vmcnt({2*LW})","s_barrier",srd(SF,52,0,256),"s_mov_b32 s43, 0")
    if G.STAMP: k("s_memtime s[70:71]")
    poll(k,"d",43,64,0x01010101,sh=2)
    if G.STAMP: k("s_memtime s[72:73]")
    k(srd(SA,P_WS,0,0x200000),f"s_and_b32 s3, s{S_WAVE}, 1","s_lshl_b32 s3, s3, 6","v_add_u32 v20, s3, v0",f"s_cmp_lt_u32 s{S_WAVE}, 2",f"s_cbranch_scc1 {k.lab('rows')}",
      "v_min_u32 v20, 95, v20",f"s_mul_i32 s43, s{S_NI}, {16*768}",f"s_add_u32 s43, s43, {WS_CP}","s_movk_i32 s44, 768",f"s_branch {k.lab('rc')}")
    k.label("rows"); k(f"s_lshl_b32 s43, s{S_MI}, 14","s_movk_i32 s44, 1024")
    k.label("rc"); k("v_lshlrev_b32 v21, 3, v20")
    for p in range(16): k(f"buffer_load_dwordx2 {vr(24+2*p,2)}, v21, s[{SA}:{SA+3}], s43 offen sc1","s_add_u32 s43, s43, s44")
    k("s_barrier","s_barrier","s_waitcnt vmcnt(0)")
    for p in range(1,16): k(f"v_pk_add_f32 v[24:25], v[24:25], {vr(24+2*p,2)}")
    k(f"s_cmp_lt_u32 s{S_WAVE}, 2",f"s_cbranch_scc1 {k.lab('rows2')}","ds_write_b64 v21, v[24:25] offset:1024",f"s_branch {k.lab('rc2')}")
    k.label("rows2"); rstd_from(k,24,25,26); k("v_lshlrev_b32 v21, 2, v20","ds_write_b32 v21, v24","ds_write_b32 v21, v26 offset:512")
    k.label("rc2")
    if G.STAMP:
        k("s_memtime s[74:75]","s_lshl_b32 s62, s2, 7",f"s_add_u32 s62, s62, {0x2f00000+65536+64+20}","s_waitcnt lgkmcnt(0)","v_mov_b32 v255, s62")
        for j,r in enumerate((68,70,72,74)): k(f"v_mov_b32 v254, s{r}",f"global_store_dword v255, v254, s[4:5] offset:{4*j}")
    k("s_waitcnt lgkmcnt(0)","s_barrier","s_barrier",f"s_branch {k.lab('end')}")
    k.label("cons")
    ACC=12; FR=ACC+96; FSZ=40; VX,VW,VX0,VW0=2,4,6,8
    k(f"s_lshr_b32 s{S_WM}, s{S_WAVE}, 1",f"s_and_b32 s{S_WN}, s{S_WAVE}, 1",
      "v_and_b32 v1, 15, v0","v_lshrrev_b32 v10, 4, v0","v_lshrrev_b32 v11, 1, v1","v_xor_b32 v11, v11, v10",f"v_lshlrev_b32 v{VX0}, 7, v1",f"v_lshl_add_u32 v{VX0}, v11, 4, v{VX0}",
      f"s_lshl_b32 s3, s{S_WM}, 13",f"v_add_u32 v{VX0}, s3, v{VX0}",f"v_xor_b32 v{VX0+1}, 64, v{VX0}",
      "v_bfe_u32 v11, v0, 3, 2",f"s_lshl_b32 s3, s{S_WN}, 1","v_xor_b32 v11, s3, v11",f"v_lshlrev_b32 v{VW0}, 5, v11",f"v_lshl_add_u32 v{VW0}, v10, 10, v{VW0}",
      "v_bfe_u32 v11, v0, 2, 2",f"v_lshl_add_u32 v{VW0}, v11, 7, v{VW0}","v_and_b32 v11, 3, v0",f"v_lshl_add_u32 v{VW0}, v11, 3, v{VW0}",f"v_add_u32 v{VW0}, 16384, v{VW0}",f"v_xor_b32 v{VW0+1}, 32, v{VW0}")
    for i in range(2): k(f"v_mov_b32 v{VX+i}, v{VX0+i}",f"v_mov_b32 v{VW+i}, v{VW0+i}")
    for i in range(96): k(f"v_mov_b32 v{ACC+i}, 0")
    k(f"s_mov_b32 s{S_SLOT}, 0",f"s_mov_b32 s{S_CNT}, {S}","s_waitcnt lgkmcnt(0)")
    fsrd(k); k("s_lshl_b32 s3, s2, 2",f"s_add_u32 s3, s3, s{S_WAVE}","s_lshl_b32 s3, s3, 10","v_lshlrev_b32 v11, 4, v0",f"buffer_store_dwordx4 {vr(ACC,4)}, v11, s[{SF}:{SF+3}], s3 offen sc1")
    stamp(k,1,True)
    ONE,T=190,196
    for i in range(4): k(f"v_mov_b32 v{ONE+i}, 0x3f803f80")
    k(srd(SA,P_WS,0,0x200000),srd(SB,52,0,256),f"s_lshl_b32 s3, s{S_WN}, 12",f"v_add_u32 v240, s3, v{VX0}",f"v_add_u32 v241, s3, v{VX0+1}",
      f"s_cmp_eq_u32 s{S_WM}, 0","s_cselect_b64 vcc, -1, 0",f"v_add_u32 v242, 8192, v{VW0+1}",f"v_add_u32 v243, 16384, v{VW0}",f"v_add_u32 v244, 16384, v{VW0+1}",f"v_add_u32 v245, 8192, v{VW0}",
      f"v_cndmask_b32 v242, v242, v{VW0}, vcc",f"v_cndmask_b32 v243, v243, v{VW0+1}, vcc","v_cndmask_b32 v244, v244, v245, vcc",
      f"s_lshl_b32 s41, s{S_MI}, 4","s_add_u32 s41, s41, s58","s_lshl_b32 s41, s41, 10",f"s_lshl_b32 s3, s{S_WAVE}, 8","s_add_u32 s41, s41, s3",
      f"s_lshl_b32 s42, s{S_NI}, 4","s_add_u32 s42, s42, s58","s_mul_i32 s42, s42, 768",f"s_mul_i32 s3, s{S_WN}, 384","s_add_u32 s42, s42, s3",f"s_mul_i32 s3, s{S_WM}, 192","s_add_u32 s42, s42, s3",f"s_add_u32 s42, s42, {WS_CP}",
      "v_lshlrev_b32 v246, 3, v1","v_lshlrev_b32 v247, 4, v10","v_and_b32 v11, 3, v0","v_cmp_eq_u32 s[54:55], 1, v11","v_cmp_eq_u32 s[56:57], 2, v11","v_cmp_eq_u32 s[60:61], 3, v11" if not G.STAMP else "v_cmp_eq_u32 s[76:77], 3, v11")
    M3="s[76:77]" if G.STAMP else "s[60:61]"
    k("s_barrier"); stamp(k,2)
    for kk in range(2):
        for t in range(2): k(f"ds_read_b128 {vr(FR+20*kk+4*t,4)}, v{240+kk} offset:{2048*t}")
        for t in range(3): k(f"ds_read_b64_tr_b16 {vr(FR+20*kk+8+4*t,2)}, v{242+t} offset:{4096*kk}",f"ds_read_b64_tr_b16 {vr(FR+20*kk+10+4*t,2)}, v{242+t} offset:{4096*kk+512}")
    for kk in range(2):
        k(f"s_waitcnt lgkmcnt({8-8*kk})")
        c=lambda d:(vr(d,4) if kk else "0")
        for t in range(2):
            x=vr(FR+20*kk+4*t,4)
            k(f"v_mfma_f32_16x16x32_bf16 {vr(T+8*t,4)}, {vr(ONE,4)}, {x}, {c(T+8*t)}",f"v_mfma_f32_16x16x32_bf16 {vr(T+8*t+4,4)}, {x}, {x}, {c(T+8*t+4)}")
        for t in range(3): k(f"v_mfma_f32_16x16x32_bf16 {vr(T+16+4*t,4)}, {vr(FR+20*kk+8+4*t,4)}, {vr(ONE,4)}, {c(T+16+4*t)}")
    def xf(b,tm): return FR+b*FSZ+4*tm
    def wf(b,tn): return FR+b*FSZ+16+4*tn
    def reads(b):
        X=[(f"ds_read_b128 {vr(xf(b,tm),4)}, v{VX+b} offset:{tm*2048}",xf(b,tm)) for tm in range(4)]
        W=[(f"ds_read_b64_tr_b16 {vr(wf(b,tn)+2*j,2)}, v{VW+tn%2} offset:{(tn//2)*8192+b*4096+j*512}",wf(b,tn)) for tn in range(6) for j in range(2)]
        return W[:2]+X+W[2:]
    q=[]
    for ins,d in reads(0): k(ins); q.append(d)
    for t in range(2):
        a=T+8*t
        k(f"v_cndmask_b32 v{a+1}, v{a+4}, v{a+5}, s[54:55]",f"v_cndmask_b32 v{a+1}, v{a+1}, v{a+6}, s[56:57]",f"v_cndmask_b32 v{a+1}, v{a+1}, v{a+7}, {M3}")
    k("s_mov_b32 exec_lo, 0x00f0000f","s_mov_b32 exec_hi, 0xf0000f00")
    for t in range(2): k(f"buffer_store_dwordx2 {vr(T+8*t,2)}, v246, s[{SA}:{SA+3}], s41 offen offset:{128*t} sc1")
    k("s_mov_b32 exec_lo, 0x00010001","s_mov_b32 exec_hi, 0x00010001")
    for t in range(3): k(f"buffer_store_dwordx4 {vr(T+16+4*t,4)}, v247, s[{SA}:{SA+3}], s42 offen offset:{64*t} sc1")
    k("s_mov_b64 exec, -1",".p2align 3"); k.label("cloop")
    k(f"s_sub_u32 s3, s{S_CNT}, {G.SGA}","s_cmp_lt_u32 s3, 4",f"s_cbranch_scc1 {k.lab('aux')}"); k.label("auxd")
    done=[0]
    def need(regs):
        idx=max([i for i,d in enumerate(q) if d in regs],default=-1)
        if idx>=done[0]:
            n=min(15,len(q)-1-idx); k(f"s_waitcnt lgkmcnt({n})"); done[0]=len(q)-n
    for hh in range(4):
        b=hh%2; RD=reads(1-b); p=0; j=0; first=G.BP if b else 0
        for tn in range(6):
            for tm in range(4):
                a=ACC+4*(tm*6+tn); x,w=xf(b,tm),wf(b,tn); A,B=(x,w) if tn>=4 else (w,x)
                need((x,w)); k(f"v_mfma_f32_16x16x32_bf16 {vr(a,4)}, {vr(A,4)}, {vr(B,4)}, {vr(a,4)}")
                if b and j==0: k(f"s_add_u32 s{S_SLOT}, s{S_SLOT}, {STG}",f"s_cmp_ge_u32 s{S_SLOT}, {NS*STG}",f"s_cselect_b32 s{S_SLOT}, 0, s{S_SLOT}",f"v_add_u32 v{VX}, s{S_SLOT}, v{VX0}",f"v_add_u32 v{VX+1}, s{S_SLOT}, v{VX0+1}")
                if b and j==first: k(f"v_add_u32 v{VW}, s{S_SLOT}, v{VW0}",f"v_add_u32 v{VW+1}, s{S_SLOT}, v{VW0+1}","s_waitcnt lgkmcnt(0)","s_barrier"); done[0]=len(q)
                if hh==3 and j==22: k(f"s_sub_u32 s{S_CNT}, s{S_CNT}, 2",f"s_cmp_lg_u32 s{S_CNT}, 0")
                if j>=first and p<len(RD): k(RD[p][0]); q.append(RD[p][1]); p+=1
                j+=1
        assert p==len(RD)
    k(f"s_cbranch_scc1 {k.lab('cloop')}","s_waitcnt lgkmcnt(0)"); stamp(k,3)
    L=k.L; k.L=k.ool; k.label("aux")
    k("s_waitcnt vmcnt(0)",f"s_cmp_eq_u32 s{S_CNT}, {G.SGA}",f"s_cbranch_scc0 {k.lab('auxd')}",f"s_cmp_eq_u32 s{S_WAVE}, 0",f"s_cbranch_scc0 {k.lab('auxd')}",
      "v_mov_b32 v240, 0","v_mov_b32 v241, 1","s_mov_b64 exec, 1",f"buffer_store_byte v241, v240, s[{SB}:{SB+3}], s2 offen sc1","s_mov_b64 exec, -1",f"s_branch {k.lab('auxd')}"); k.L=L
    CS,TK,VC,VT=FR,FR+16,FR+32,FR+36
    k(f"s_mul_i32 s3, s{S_WN}, 384","v_lshl_add_u32 v2, v10, 4, s3","v_lshl_add_u32 v3, v1, 2, s3",f"s_lshl_b32 s3, s{S_WM}, 8","v_lshl_add_u32 v4, v1, 2, s3","v_lshl_add_u32 v5, v10, 4, s3")
    for tn in range(4): k(f"ds_read_b128 {vr(CS+4*tn,4)}, v2 offset:{1024+64*tn}")
    for tm in range(4): k(f"ds_read_b32 v{TK+4*tm}, v4 offset:{64*tm}",f"ds_read_b32 v{TK+4*tm+2}, v4 offset:{512+64*tm}")
    k("s_waitcnt lgkmcnt(0)")
    for t in range(2): k(f"ds_read_b32 v{VC+2*t}, v3 offset:{1024+256+64*t}")
    for tm in range(4): k(f"ds_read_b128 {vr(VT+8*tm,4)}, v5 offset:{64*tm}",f"ds_read_b128 {vr(VT+8*tm+4,4)}, v5 offset:{512+64*tm}")
    k(srd(SO,P_WS,WS_QF,0x400000),srd(SA,P_WS,WS_KV,0x800000),f"s_lshl_b32 s{S_T}, s{S_MI}, 2",f"s_lshl_b32 s3, s{S_WM}, 1",f"s_add_u32 s{S_T}, s{S_T}, s3")
    for p in range(3): k(f"s_add_u32 s3, s{S_NI}, {PSH*p}","s_and_b32 s3, s3, 15","s_lshl_b32 s3, s3, 1",f"s_add_u32 s3, s3, s{S_WN}","s_lshl_b32 s3, s3, 6",f"s_add_u32 s3, s3, s{S_T}",f"s_lshl_b32 s{41+2*p}, s3, {12 if p else 11}",f"s_add_u32 s{42+2*p}, s{41+2*p}, {4096 if p else 2048}")
    k("v_lshlrev_b32 v2, 9, v10","v_lshl_add_u32 v2, v1, 4, v2","s_waitcnt lgkmcnt(0)","s_barrier")
    B="op_sel_hi:[1,0,1]"; d=FR+68; P=lambda r,i:vr(r+2*i,2)
    for tm in range(4):
        a=ACC+24*tm; m,r=vr(TK+4*tm,2),vr(TK+4*tm+2,2)
        for i in range(8): k(f"v_pk_fma_f32 {P(a,i)}, {P(CS,i)}, {m}, {P(a,i)} {B}")
        for i in range(4): k(f"v_pk_fma_f32 {P(a+16,i)}, {P(VT+8*tm,i%2)}, {vr(VC+2*(i//2),2)}, {P(a+16,i)} {B}")
        for i in range(4,8): k(f"v_pk_mul_f32 {P(a,i)}, {P(a,i)}, {r} op_sel_hi:[1,0]")
        k(f"v_mul_f32 v{TK+4*tm+2}, {f2u(math.log2(math.e)/math.sqrt(32))}, v{TK+4*tm+2}")
        for i in range(4): k(f"v_pk_mul_f32 {P(a+16,i)}, {P(a+16,i)}, {P(VT+8*tm+4,i%2)}")
        for i in range(4): k(f"v_pk_mul_f32 {P(a,i)}, {P(a,i)}, {r} op_sel_hi:[1,0]")
        pack(k,d,a+8,8); k(f"buffer_store_dwordx4 {vr(d,4)}, v2, s[{SA}:{SA+3}], s{43+tm//2} offen offset:{256*(tm%2)}{G.STF}"); d+=4
        if tm%2:
            for t in range(2):
                pack(k,d,a-24+16+4*t,4); pack(k,d+2,a+16+4*t,4)
                k(f"buffer_store_dwordx4 {vr(d,4)}, v2, s[{SA}:{SA+3}], s{45+tm//2} offen offset:{2048+256*t}{G.STF}"); d+=4
        pack(k,d,a,8); k(f"buffer_store_dwordx4 {vr(d,4)}, v2, s[{SO}:{SO+3}], s{41+tm//2} offen offset:{256*(tm%2)}{G.STF}"); d+=4
    k(f"s_lshl_b32 s43, s{S_NI}, 1",f"s_add_u32 s43, s43, s{S_WN}","s_lshl_b32 s43, s43, 5",f"s_lshl_b32 s3, s{S_MI}, 1","s_add_u32 s43, s43, s3",f"s_add_u32 s43, s43, s{S_WM}","s_lshl_b32 s92, s43, 7")
    stamp(k,4)
    k.label("end")
    return k
```

```python
import sys
import gemm as G
for a in sys.argv[2:]:
    if a=="stamp": G.STAMP=True
    elif "=" in a:
        n,v=a.split("="); setattr(G,n,eval(v))
from lib import *
from kern import *
from attn import *
NAME="sequential_preLN__softmax_full_mha__dense_activation_gelu__prompt"
hdr=[l.rstrip("\n") for l in open(f"cdna_kernels/{NAME}.s.ref") if l.startswith(";") and "@launch" not in l and "Override" not in l and "grid=ceil" not in l]
from qkvd import k_qkvd
km=K("fused_kernel",256,512,163840)
for f in (k_qkvd,k_attn,k_oproj,k_ffn1,k_ffn2): f(km)
ks=[G.finish(km)]
emit(sys.argv[1] if len(sys.argv)>1 else f"cdna_kernels/{NAME}.s",hdr,ks)
```

```python
from lib import *
WS_XN=0x0; WS_QF=0x400000; WS_KV=0x800000; WS_OF=0x1000000; WS_HF=0x1400000; WS_GF=0x1800000; WS_ST=0x2600000; WS_CS=0x2700000
WS_WQ=0x2800000; WS_WO=0x3200000; WS_W1=0x3400000; WS_W2=0x3c00000
import os
if os.environ.get('OVL','0')=='1': WS_OF=0; WS_GF=0; WS_HF=WS_WQ; WS_WO=WS_WQ+0x400000
P0=2; AUX6=4; R6=2; MEGA=1; NOPREP=1; WRM=20; WRC=1; TLB=0; NCT=4; OUTP=''; DSTAMP=0; LAT=1; SGA=12; QLP=''; QORD='x0 00 10 x1 20 01 x2 11 x3 21'.split(); XOF=2; SK=0; SKM=3; PSH=0; QP0=2; UNR=2; UNR6=1; BP=2; RS=1; ALN=3; GATE=1; LDP=' sc1'; SLP=6
WS_FL=0x4400000; F1,F2,F3,F4,F5=0,0x20000,0x60000,0x80000,0xa0000; F6=0xa0400; FLN=0xa1400; SF=88; S_W8=29
AORD=4; APRIO=2; SJL=(6,7); SJP=' nt'; XNB=0; XND=0; XNR=0; SJ=3
STW=' sc1'
STF=' sc1'
A_X,A_WQKV,A_WO,A_W1,A_B1,A_W2,A_B2,A_OUT,A_DBG,A_WS=0,8,16,32,40,48,56,64,72,80
S_WAVE,S_MI,S_NI,S_SLOT,S_CNT,S_XO,S_WO,S_T,S_T2,S_WM,S_WN=30,31,32,33,34,35,36,37,38,39,40
SX,SW,SO,SA,SB,SC=8,12,16,20,24,44
P_WS,P_W,P_A,P_B=4,6,48,50
STAMP=False
KID={"prep":0,"qkv":1,"attn":2,"oproj":3,"ffn1":4,"ffn2":5}
def stamp0(k):
    if STAMP: k("s_memrealtime s[66:67]","s_memtime s[68:69]")
def stamp(k,idx,pre=False):
    if DSTAMP and idx in (2,3,4) or DSTAMP and idx==1 and k.pre=="qkv":
        n=0 if idx==1 else (KID[k.pre]-1)*3+idx-1
        k("s_memrealtime s[64:65]","s_waitcnt lgkmcnt(0)",f"v_writelane_b32 v252, s64, {n}")
        if n==15: k("s_cmp_lg_u32 s2, 9",f"s_cbranch_scc1 {k.lab('ds')}",f"s_cmp_lg_u32 s{S_W8}, 0",f"s_cbranch_scc1 {k.lab('ds')}","s_load_dwordx2 s[62:63], s[0:1], 72","v_readlane_b32 s64, v252, 0","v_lshlrev_b32 v251, 2, v0","s_waitcnt lgkmcnt(0)",
                    "v_subrev_u32 v252, s64, v252","s_mov_b64 exec, 0xffff","global_store_dword v251, v252, s[62:63]"); k.label("ds")
    if not STAMP: return
    base=0x2f00000+KID[k.pre]*65536
    k("s_memtime s[60:61]","s_memrealtime s[64:65]","s_lshl_b32 s62, s2, 7",f"s_add_u32 s62, s62, {base+4*idx}","s_waitcnt lgkmcnt(0)",
      "v_mov_b32 v255, s62","v_mov_b32 v254, s60","v_mov_b32 v253, s64","global_store_dword v255, v254, s[4:5] offset:64","global_store_dword v255, v253, s[4:5]")
    if pre: k("v_mov_b32 v254, s68","v_mov_b32 v253, s66","global_store_dword v255, v254, s[4:5] offset:60","global_store_dword v255, v253, s[4:5] offset:-4")

class Cfg: pass
def begin(k,name,lds):
    first = k is None or not k.L
    if k is None: k=K(name+"_kernel",256,512,lds)
    k.pre=name; stamp0(k)
    if first:
        k("s_cmp_ge_u32 s2, 256",f"s_cbranch_scc1 {k.name}_exit",f"s_load_dwordx2 s[{P_WS}:{P_WS+1}], s[0:1], {A_WS}",
          "v_lshrrev_b32 v1, 6, v0","v_and_b32 v0, 63, v0","s_nop 0",f"v_readfirstlane_b32 s{S_W8}, v1","s_nop 1")
    k(f"s_mov_b32 s{S_WAVE}, s{S_W8}")
    return k
def finish(k):
    k.L.append(f"{k.name}_exit:"); k("s_endpgm"); k(k.ool); k.L.insert(len(k.L)-1,f"{k.name}_last:"); return k
def fsrd(k): k(srd(SF,P_WS,WS_FL,FLN))
def poll(k,tag,soff,nlanes,expect,x4=False,v=240,sh=7,hi=None):
    k(f"v_min_u32 v{v+4}, {nlanes-1}, v0",f"v_lshlrev_b32 v{v+4}, {4 if x4 else sh}, v{v+4}","s_mov_b32 s87, 0x40000",f"s_mov_b32 s86, {hex(expect)}")
    if hi: k(f"v_and_b32 v{v+4}, 31, v0",f"v_lshlrev_b32 v{v+4}, 7, v{v+4}",f"v_mov_b32 v{v}, s{hi[0]}",f"v_mov_b32 v{v+1}, s{hi[1]}","v_cmp_gt_u32 vcc, 32, v0","s_nop 1",f"v_cndmask_b32 v{v}, v{v+1}, v{v}, vcc",f"v_add_u32 v{v+4}, v{v}, v{v+4}")
    k.label("pl"+tag)
    if x4: k(f"buffer_load_dwordx4 {vr(v,4)}, v{v+4}, s[{SF}:{SF+3}], s{soff} offen sc1","s_waitcnt vmcnt(0)",f"v_and_b32 v{v}, v{v}, v{v+1}",f"v_and_b32 v{v+2}, v{v+2}, v{v+3}",f"v_and_b32 v{v}, v{v}, v{v+2}")
    else: k(f"buffer_load_dword v{v}, v{v+4}, s[{SF}:{SF+3}], s{soff} offen sc1","s_waitcnt vmcnt(0)")
    k(f"v_cmp_ne_u32 vcc, s86, v{v}","s_sub_u32 s87, s87, 1","s_nop 3",f"s_cbranch_vccz {k.lab('pd'+tag)}",f"s_sleep {SLP}","s_cmp_lg_u32 s87, 0",f"s_cbranch_scc1 {k.lab('pl'+tag)}")
    k.label("pd"+tag)
def signal(k,soff,n=1,v=240,byte=False):
    k(f"v_lshlrev_b32 v{v}, 7, v0",f"v_mov_b32 v{v+1}, 1","s_waitcnt vmcnt(0)",f"s_mov_b64 exec, {(1<<n)-1}",
      f"buffer_store_{'byte' if byte else 'dword'} v{v+1}, v{v}, s[{SF}:{SF+3}], s{soff} offen sc1","s_mov_b64 exec, -1")

def wgmap(k,kind):
    if kind=="8x4":
        k(f"s_and_b32 s{S_MI}, s{S_T}, 1",f"s_lshl_b32 s{S_MI}, s{S_MI}, 3",f"s_and_b32 s3, s{S_T2}, 7",f"s_add_u32 s{S_MI}, s{S_MI}, s3",
          f"s_lshr_b32 s{S_NI}, s{S_T}, 1",f"s_lshl_b32 s{S_NI}, s{S_NI}, 2",f"s_lshr_b32 s3, s{S_T2}, 3",f"s_add_u32 s{S_NI}, s{S_NI}, s3")
    else:
        k(f"s_and_b32 s{S_MI}, s{S_T}, 3",f"s_lshl_b32 s{S_MI}, s{S_MI}, 2",f"s_and_b32 s3, s{S_T2}, 3",f"s_add_u32 s{S_MI}, s{S_MI}, s3",
          f"s_lshr_b32 s{S_NI}, s{S_T}, 2",f"s_lshl_b32 s{S_NI}, s{S_NI}, 3",f"s_lshr_b32 s3, s{S_T2}, 2",f"s_add_u32 s{S_NI}, s{S_NI}, s3")
def gemm(name, c, km=None):
    TM,TN,WM,WN,NS,KD=c.TM,c.TN,c.WM,c.WN,c.NS,c.K
    R=c.R; NT=TN*WN; WB=NT*2048; SG1=16384+WB; STG=SG1*R; S1=KD//64; S=S1//R; NWL=NT//2; LW=(4+NWL)*R
    XTRA=147456; mega=km is not None
    k=begin(km,name,max(NS*STG,XTRA+c.lds_extra if c.lds_extra else 0))
    if c.aarg is not None: k(f"s_load_dwordx2 s[{P_A}:{P_A+1}], s[0:1], {c.aarg}")
    if c.barg is not None: k(f"s_load_dwordx2 s[{P_B}:{P_B+1}], s[0:1], {c.barg}")
    k(f"s_and_b32 s{S_T}, s2, 7",f"s_lshr_b32 s{S_T2}, s2, 3")
    wgmap(k,c.map)
    k("v_lshlrev_b32 v2, 4, v0",f"s_cmp_lt_u32 s{S_WAVE}, 4",f"s_cbranch_scc1 {k.lab('cons')}")
    k(f"s_sub_u32 s{S_WAVE}, s{S_WAVE}, 4",f"s_lshl_b32 s41, s{S_WAVE}, 12",f"s_mul_i32 s42, s{S_WAVE}, {NWL*1024}",
      f"s_mul_i32 s{S_XO}, s{S_MI}, {KD*256}",f"s_add_u32 s{S_XO}, s{S_XO}, s41",
      f"s_mul_i32 s{S_WO}, s{S_NI}, {S1*WB}",f"s_add_u32 s{S_WO}, s{S_WO}, s42","s_add_u32 s42, s42, 16384",f"s_mov_b32 s{S_SLOT}, 0",
      "s_waitcnt lgkmcnt(0)",srd(SX,P_WS,c.xoff,2048*KD*2),srd(SW,P_WS,c.woff,16*S1*WB))
    dep=mega and c.xflag is not None
    P=LDP if dep else ''
    def issue(w=True,x=True): return [issue1(w,x) for r in range(R)]
    def issue1(w,x):
        o=[]
        if w:
            o+=[f"s_add_u32 m0, s{S_SLOT}, s42",f"s_add_u32 s{S_T2}, s{S_WO}, 4096"]
            for j in range(NWL):
                if j==4: o+=["s_add_u32 m0, m0, 4096","s_nop 0"]
                o+=[f"buffer_load_dwordx4 v2, s[{SW}:{SW+3}], s{S_WO if j<4 else S_T2} offen offset:{(j%4)*1024}{P} lds"]
            o+=[f"s_add_u32 s{S_WO}, s{S_WO}, {WB}"]
        if x:
            o+=[f"s_add_u32 m0, s{S_SLOT}, s41","s_nop 0"]
            for u in range(4): o+=[f"buffer_load_dwordx4 v2, s[{SX}:{SX+3}], s{S_XO} offen offset:{u*1024}{P} lds"]
            o+=[f"s_add_u32 s{S_XO}, s{S_XO}, 16384"]
        o+=[f"s_add_u32 s{S_SLOT}, s{S_SLOT}, {SG1}",f"s_cmp_ge_u32 s{S_SLOT}, {NS*STG}",f"s_cselect_b32 s{S_SLOT}, 0, s{S_SLOT}"]
        return o
    def rep(tag,n,code): k(f"s_mov_b32 s{S_CNT}, {n}"); k.label(tag); k(code,f"s_sub_u32 s{S_CNT}, s{S_CNT}, 1",f"s_cmp_lg_u32 s{S_CNT}, 0",f"s_cbranch_scc1 {k.lab(tag)}")
    if STAMP: k("s_memtime s[70:71]")
    if dep:
        fsrd(k)
        if c.wflag: k(f"s_mov_b32 s43, {c.wflag[0]}"); poll(k,"w",43,c.wflag[1],1,c.wflag[2])
        if not c.wlate: rep("lpw",(NS-1)*R,issue1(True,False))
        k(f"s_lshl_b32 s43, s{S_MI}, 2",f"s_add_u32 s43, s43, s{S_WAVE}",f"s_lshr_b32 s43, s43, {c.xflag[2]}",f"s_mul_i32 s43, s43, {c.xflag[1]*128}",f"s_add_u32 s43, s43, {c.xflag[0]}",f"s_mov_b32 s{S_SLOT}, 0")
        if c.gate: k("s_barrier")
        if c.wlate: k(f"s_mov_b32 s44, {F6}","s_mov_b32 s45, 0"); poll(k,"x",45,64,1,hi=(43,44))
        else: poll(k,"x",43,c.xflag[1],1)
        if STAMP: k("s_memtime s[72:73]")
        rep("lpx",(NS-1)*R,issue1(c.wlate,True))
        if STAMP: k("s_memtime s[74:75]")
        for j in range(NS-1): k(f"s_waitcnt vmcnt({(NS-2-j)*(LW if c.wlate else 4*R)+j*LW})","s_barrier",issue())
        P0=0
    else:
        P0=min(c.P0,NS-1)
        rep("lpro",P0,issue())
        if STAMP: k("s_memtime s[72:73]",f"s_waitcnt vmcnt({(P0-1)*LW})","s_memtime s[74:75]")
        for j in range(NS-1-P0): k(f"s_waitcnt vmcnt({(P0-1+j)*LW})","s_barrier",issue(),issue())
    k(f"s_mov_b32 s{S_CNT}, {S-(NS-1)-(NS-1-P0)}"); k.label("lloop")
    k(f"s_waitcnt vmcnt({(NS-2)*LW})","s_barrier",issue(),f"s_sub_u32 s{S_CNT}, s{S_CNT}, 1",f"s_cmp_lg_u32 s{S_CNT}, 0",f"s_cbranch_scc1 {k.lab('lloop')}")
    nh=c.loader_head(k) if c.loader_head else 0
    for j in range(NS-1): k(f"s_waitcnt vmcnt({(NS-2-j)*LW+nh})","s_barrier")
    if nh: k("s_waitcnt vmcnt(0)")
    if c.loader_tail: c.loader_tail(k,XTRA)
    if STAMP:
        k("s_lshl_b32 s62, s2, 7",f"s_add_u32 s62, s62, {0x2f00000+KID[k.pre]*65536+64+20}","s_waitcnt lgkmcnt(0)","v_mov_b32 v255, s62")
        for j,r in enumerate((68,70,72,74)): k(f"v_mov_b32 v254, s{r}",f"global_store_dword v255, v254, s[4:5] offset:{4*j}")
    k("s_barrier",f"s_branch {k.lab('end')}" if mega and c.sig else "s_endpgm")
    k.label("cons")
    ACC=c.acc0; FR=ACC+4*TM*TN; FSZ=4*(TM+TN)
    VX,VW,VX0,VW0=6,3,4,5
    assert FR+2*FSZ<=c.vmax,(FR+2*FSZ)
    if WN==2: k(f"s_lshr_b32 s{S_WM}, s{S_WAVE}, 1",f"s_and_b32 s{S_WN}, s{S_WAVE}, 1")
    else: k(f"s_mov_b32 s{S_WM}, s{S_WAVE}",f"s_mov_b32 s{S_WN}, 0")
    k(f"s_mul_i32 s{S_T}, s{S_WM}, {TM*2048}",f"v_add_u32 v{VX0}, s{S_T}, v2",
      f"s_mul_i32 s{S_T}, s{S_WN}, {TN*2048}",f"s_add_u32 s{S_T}, s{S_T}, 16384",f"v_add_u32 v{VW0}, s{S_T}, v2",
      f"v_mov_b32 v{VX}, v{VX0}",f"v_mov_b32 v{VW}, v{VW0}",f"s_mov_b32 s{S_SLOT}, 0",f"s_mov_b32 s{S_CNT}, {S}","s_waitcnt lgkmcnt(0)")
    if dep and c.gate: k("s_barrier")
    stamp(k,1,True)
    c.prologue(k,ACC,FR)
    def xf(b,tm): return FR+b*FSZ+4*tm
    def wf(b,tn): return FR+b*FSZ+4*TM+4*tn
    def reads(h):
        b=h%2; so=(h//2)*SG1
        X=[(f"ds_read_b128 {vr(xf(b,tm),4)}, v{VX} offset:{so+tm*2048+b*1024}",xf(b,tm)) for tm in range(TM)]
        W=[(f"ds_read_b128 {vr(wf(b,tn),4)}, v{VW} offset:{so+tn*2048+b*1024}",wf(b,tn)) for tn in range(TN)]
        return W[:1]+X+W[1:]
    def mfmas(b):
        o=[]
        for tn in range(TN):
            for tm in range(TM):
                a=ACC+4*(tm*TN+tn); x,w=xf(b,tm),wf(b,tn)
                A,B=(x,w) if c.swap(tn) else (w,x)
                o.append((f"v_mfma_f32_16x16x32_bf16 {vr(a,4)}, {vr(A,4)}, {vr(B,4)}, {vr(a,4)}",(x,w)))
        return o
    k("s_barrier"); stamp(k,2)
    q=[]
    for ins,d in reads(0): k(ins); q.append(d)
    k(f".p2align {ALN}"); k.label("cloop")
    if c.aux: k(f"s_cmp_eq_u32 s{S_CNT}, {c.auxat}",f"s_cbranch_scc1 {k.lab('aux')}"); k.label("auxd")
    done=[0]
    def need(regs):
        idx=max([i for i,d in enumerate(q) if d in regs],default=-1)
        if idx>=done[0]:
            n=min(15,len(q)-1-idx); k(f"s_waitcnt lgkmcnt({n})"); done[0]=len(q)-n
    for hh in range(2*R*c.UNR):
        h=hh%(2*R); last=h==2*R-1
        M=mfmas(h%2); RD=reads((h+1)%(2*R)); p=0
        bar=c.barpos if last else -1
        first=bar if last else 0
        for j,(ins,regs) in enumerate(M):
            need(regs); k(ins)
            if last and j==0 : k(f"s_add_u32 s{S_SLOT}, s{S_SLOT}, {STG}",f"s_cmp_ge_u32 s{S_SLOT}, {NS*STG}",f"s_cselect_b32 s{S_SLOT}, 0, s{S_SLOT}")
            if j==bar:
                k("s_waitcnt lgkmcnt(0)",f"v_add_u32 v{VX}, s{S_SLOT}, v{VX0}",f"v_add_u32 v{VW}, s{S_SLOT}, v{VW0}","s_barrier"); done[0]=len(q)
            if hh==2*R*c.UNR-1 and j==len(M)-2: k(f"s_sub_u32 s{S_CNT}, s{S_CNT}, {c.UNR}",f"s_cmp_lg_u32 s{S_CNT}, 0")
            if j>=first and (j-first)%c.rstep==0 and p<len(RD):
                k(RD[p][0]); q.append(RD[p][1]); p+=1
        for ins2,d in RD[p:]: k(ins2); q.append(d)
    k(f"s_cbranch_scc1 {k.lab('cloop')}")
    k("s_waitcnt lgkmcnt(0)","s_nop 7"); stamp(k,3)
    c.epilogue(k,ACC,FR,XTRA)
    if mega and c.sig: fsrd(k); c.sig(k)
    if STAMP and not (mega and c.sig): k("s_waitcnt vmcnt(0)")
    stamp(k,4)
    k.label("end")
    if c.aux:
        L=k.L; k.L=k.ool; k.label("aux"); c.aux(k); k(f"s_branch {k.lab('auxd')}"); k.L=L
    return k if mega else finish(k)
def zero_acc(n):
    def f(k,ACC,FR):
        for i in range(n): k(f"v_mov_b32 v{ACC+i}, 0")
    return f
def pack(k,dst,src,n=16):
    for i in range(n//2): k(f"v_cvt_pk_bf16_f32 v{dst+i}, v{src+2*i}, v{src+2*i+1}")
def relayout_addr(k,vsrc,vtr,sstride,g1,g2,vt=7):
    k(f"v_lshrrev_b32 v{vsrc}, 2, v0",f"v_mul_lo_u32 v{vsrc}, s{sstride}, v{vsrc}",f"v_and_b32 v{vt}, 3, v0",f"v_lshl_add_u32 v{vsrc}, v{vt}, 4, v{vsrc}",
      f"v_lshlrev_b32 v{vtr}, 4, v{vt}",f"v_bfe_u32 v{vt}, v0, 2, 2",f"v_lshl_add_u32 v{vtr}, v{vt}, 6, v{vtr}")
```

```python
from lib import *
from gemm import *
import gemm as G
def k_attn(km=None):
    mega=km is not None; P=G.LDP if mega else ''
    k=begin(km,"attn",163840)
    Q=8; NM=24; SB_=56; O=120; L=152; KF=160; VF=176; SEL=192; IDX=196; VC,VN,VL,VP=2,3,4,201
    S_HEAD,S_QT,S_KH,S_QG,S_NMAX,S_GO,S_M0,S_CUR,S_NXT=31,32,33,35,36,39,40,41,42
    k(
      f"s_load_dwordx2 s[6:7], s[0:1], {A_WO}",f"s_load_dwordx2 s[52:53], s[0:1], {A_B1}",f"s_load_dwordx2 s[54:55], s[0:1], {A_B2}",f"s_load_dwordx2 s[48:49], s[0:1], {A_W1}",f"s_load_dwordx2 s[50:51], s[0:1], {A_W2}",
      "s_and_b32 s3, s2, 7","s_lshr_b32 s37, s2, 3",
      f"s_lshl_b32 s{S_HEAD}, s3, 2","s_lshr_b32 s3, s37, 3",f"s_add_u32 s{S_HEAD}, s{S_HEAD}, s3",
      f"s_and_b32 s{S_QG}, s{S_WAVE}, 3",f"s_lshr_b32 s{S_KH}, s{S_WAVE}, 2",
      f"s_and_b32 s{S_QT}, s37, 7",f"s_lshl_b32 s{S_QT}, s{S_QT}, 2",f"s_add_u32 s{S_QT}, s{S_QT}, s{S_QG}",f"s_lshl_b32 s{S_QT}, s{S_QT}, 1",
      f"v_lshlrev_b32 v{VL}, 4, v0",
      f"v_and_b32 v{VP}, 0x23, v0","v_bfe_u32 v5, v0, 2, 1",f"v_lshl_or_b32 v{VP}, v5, 4, v{VP}","v_bfe_u32 v5, v0, 3, 2",f"v_lshl_or_b32 v{VP}, v5, 2, v{VP}",f"v_lshlrev_b32 v{VP}, 4, v{VP}",f"s_mov_b32 s{S_NMAX}, 1","s_waitcnt lgkmcnt(0)",
      srd(8,4,WS_QF,0x400000),srd(12,4,WS_KV,0x800000),srd(16,4,WS_OF,0x400000))
    stamp(k,1,True)
    k.label("retry")
    SJ_SRC,SJ_STEP,SJ_DST,SJ_DA,SJ_DB,SJ_DT,SJ_RS,SJ_LDS=70,71,72,73,74,75,76,77
    VS,VT1,VT2,WF,CSA,ONE=198,199,200,204,212,220
    k("s_cmp_lt_u32 s2, 112",f"s_cbranch_scc0 {k.lab('sj2')}",
      srd(20,48,0,1024*7168),srd(24,4,WS_W1,1024*7168),
      f"s_mul_i32 s37, s2, 2341","s_lshr_b32 s37, s37, 16","s_mul_i32 s43, s37, 28","s_sub_u32 s43, s2, s43","s_lshl_b32 s43, s43, 2",f"s_add_u32 s43, s43, s{S_QG}",
      f"s_mul_i32 s{SJ_SRC}, s37, {256*7168}","s_lshl_b32 s44, s43, 6",f"s_add_u32 s{SJ_SRC}, s{SJ_SRC}, s44",f"s_mov_b32 s{SJ_STEP}, {32*7168}",f"s_mov_b32 s{SJ_RS}, 7168",
      f"s_mul_i32 s78, s37, {3584*4}","s_lshl_b32 s44, s43, 7","s_add_u32 s78, s78, s44",
      "s_mul_i32 s44, s43, 9363","s_lshr_b32 s44, s44, 16","s_mul_i32 s45, s44, 7","s_sub_u32 s45, s43, s45",
      f"s_mul_i32 s{SJ_DST}, s44, {16*28672}",f"s_mul_i32 s44, s37, {4*28672}",f"s_add_u32 s{SJ_DST}, s{SJ_DST}, s44",
      "s_lshl_b32 s44, s45, 1","s_cmp_gt_u32 s45, 3","s_cselect_b32 s46, 1, 0","s_sub_u32 s44, s44, s46","s_lshl_b32 s44, s44, 11",f"s_add_u32 s{SJ_DST}, s{SJ_DST}, s44",
      "s_cmp_eq_u32 s45, 3",f"s_cselect_b32 s{SJ_DT}, 7, 1","s_cselect_b32 s47, 1, 0",f"s_lshl_b32 s{SJ_DT}, s{SJ_DT}, 11",f"s_mov_b32 s{SJ_DA}, 1024",f"s_mov_b32 s{SJ_DB}, {28672-1024}","s_mov_b32 s44, 0",f"s_branch {k.lab('sjd')}")
    k.label("sj2")
    k("s_cmp_lt_u32 s2, 224",f"s_cbranch_scc0 {k.lab('sj3')}",srd(20,50,0,3584*2048),srd(24,4,WS_W2,3584*2048),"s_sub_u32 s37, s2, 112",f"s_mov_b32 s45, {56*8192}",f"s_branch {k.lab('sj4')}")
    k.label("sj3")
    k(srd(20,6,0,1024*2048),srd(24,4,WS_WO,1024*2048),"s_sub_u32 s37, s2, 224",f"s_mov_b32 s45, {16*8192}")
    k.label("sj4"); k("s_mov_b32 s44, 0")
    k(f"s_lshl_b32 s{SJ_SRC}, s37, 16",f"s_lshl_b32 s43, s{S_QG}, 9",f"s_add_u32 s{SJ_SRC}, s{SJ_SRC}, s43",f"s_mov_b32 s{SJ_STEP}, 64",f"s_mov_b32 s{SJ_RS}, 2048",
      f"s_lshl_b32 s43, s{S_QG}, 2",f"s_mul_i32 s{SJ_DST}, s43, s45","s_lshr_b32 s43, s37, 1","s_lshl_b32 s43, s43, 13",f"s_add_u32 s{SJ_DST}, s{SJ_DST}, s43",
      "s_and_b32 s43, s37, 1","s_lshl_b32 s43, s43, 10",f"s_add_u32 s{SJ_DST}, s{SJ_DST}, s43",f"s_mov_b32 s{SJ_DT}, 2048",f"s_mov_b32 s{SJ_DA}, 4096",f"s_sub_u32 s{SJ_DB}, s45, 4096","s_mov_b32 s78, 0","s_mov_b32 s47, 0")
    k.label("sjd")
    relayout_addr(k,VS,VT1,SJ_RS,None,None)
    k(f"s_lshl_b32 s{SJ_LDS}, s{S_QG}, 14",f"s_add_u32 s{SJ_LDS}, s{SJ_LDS}, 98304","s_lshr_b32 s45, 512, s44","s_lshl_b32 s46, 256, s44",
      "v_lshrrev_b32 v7, 5, v0",f"v_lshl_add_u32 v{VT1}, v7, 10, v{VT1}","v_bfe_u32 v7, v0, 4, 1","v_mul_lo_u32 v7, s45, v7",f"v_add3_u32 v{VT1}, v{VT1}, v7, s{SJ_LDS}","v_and_b32 v7, 3, v0","v_lshlrev_b32 v7, 3, v7","v_mul_lo_u32 v7, s47, v7",f"v_sub_u32 v{VT1}, v{VT1}, v7",f"v_add_u32 v{VT2}, s46, v{VT1}",
      "s_lshl_b32 s85, s47, 1","s_lshl_b32 s85, 8, s85",f"v_add_u32 v{VT1+3}, s85, v{VT1}",f"v_add_u32 v{VT2+3}, s85, v{VT2}",
      f"s_lshl_b32 s{SJ_RS}, s{SJ_RS}, 4",srd(80,4,WS_CS,4*3584*4))
    for i in range(8): k(f"v_mov_b32 v{CSA+i}, 0")
    for i in range(4): k(f"v_mov_b32 v{ONE+i}, 0x3f803f80")
    def sj_rd(off):
        o=[]
        for t in range(2): o+=[f"ds_read_b64_tr_b16 {vr(WF+4*t,2)}, v{VT1+3*t} offset:{off}",f"ds_read_b64_tr_b16 {vr(WF+4*t+2,2)}, v{VT2+3*t} offset:{off}"]
        return o
    def sj_st(adv):
        o=[f"s_add_u32 s37, s{SJ_DST}, s{SJ_DT}",f"buffer_store_dwordx4 {vr(WF,4)}, v{VL}, s[24:27], s{SJ_DST} offen{G.STW}",f"buffer_store_dwordx4 {vr(WF+4,4)}, v{VL}, s[24:27], s37 offen{G.STW}"]
        for t in range(2): o+=[f"v_mfma_f32_16x16x32_bf16 {vr(CSA+4*t,4)}, {vr(WF+4*t,4)}, {vr(ONE,4)}, {vr(CSA+4*t,4)}"]
        o+=[f"s_add_u32 s{SJ_DST}, s{SJ_DST}, s{SJ_DA}",f"s_mov_b32 s37, s{SJ_DA}",f"s_mov_b32 s{SJ_DA}, s{SJ_DB}",f"s_mov_b32 s{SJ_DB}, s37"]
        if adv: o+=[f"v_add_u32 v{r}, 4096, v{r}" for r in (VT1,VT2,VT1+3,VT2+3)]
        return o
    def sj_load():
        return [f"s_mov_b32 m0, s{SJ_LDS}",f"s_add_u32 s37, s{SJ_SRC}, s{SJ_RS}",f"buffer_load_dwordx4 v{VS}, s[20:23], s{SJ_SRC} offen{G.SJP} lds",f"s_add_u32 m0, s{SJ_LDS}, 1024",
                f"s_add_u32 s{SJ_SRC}, s{SJ_SRC}, s{SJ_STEP}",f"buffer_load_dwordx4 v{VS}, s[20:23], s37 offen{G.SJP} lds",f"s_add_u32 s{SJ_LDS}, s{SJ_LDS}, 2048"]
    S_MODE,S_MT=79,84
    def site(n,mode,code):
        l=k.lab(f"h{n}_{mode}")
        return [f"s_cmp_eq_u32 s{S_MODE}, {mode}",f"s_cbranch_scc0 {l}"]+code+[l+":"]
    k(f"v_mov_b32 v{IDX}, 0xdddddddd","v_bfe_u32 v5, v0, 2, 1","v_cmp_eq_u32 vcc, 0, v5","v_mov_b32 v6, 0x3f803f80","s_nop 0",
      f"v_cndmask_b32 v{SEL}, 0, v6, vcc",f"v_cndmask_b32 v{SEL+1}, 0, v6, vcc",f"v_sub_u32 v{SEL+2}, v6, v{SEL}",f"v_sub_u32 v{SEL+3}, v6, v{SEL}",
      f"s_lshl_b32 s37, s{S_KH}, 14",f"v_add_u32 v5, s37, v{VP}",f"v_mov_b32 v{VC}, v5",f"v_add_u32 v{VN}, 32768, v5",f"s_mov_b32 s{S_CUR}, 0",
      "v_mov_b32 v6, 0xff800000","v_mov_b32 v7, 0xff800000")
    for i in range(40): k(f"v_mov_b32 v{O+i}, 0")
    for i in range(16): k(f"v_mov_b32 v{SB_+48+i}, 0")
    for i in range(16): k(f"v_mov_b32 v{VF+i}, 0")
    k(f"s_cmp_lg_u32 s{S_NMAX}, 1",f"s_cbranch_scc1 {k.lab('go')}")
    fsrd(k)
    k(f"s_cmp_lt_u32 s{S_WAVE}, 4",f"s_cbranch_scc0 {k.lab('ns')}"); signal(k,92); k(f"s_branch {k.lab('pdx')}"); k.label("ns")
    k("s_lshl_b32 s43, s2, 3",f"s_add_u32 s43, s43, s{S_WAVE}","s_cmp_lg_u32 s43, 5",f"s_cbranch_scc1 {k.lab('nb')}",srd(56,52,0,7168),"v_lshlrev_b32 v240, 7, v0",
      "buffer_load_dword v241, v240, s[56:59], 0 offen",srd(56,54,0,2048),"buffer_load_dword v242, v240, s[56:59], 0 offen","s_waitcnt vmcnt(0)"); k.label("nb")
    k(f"s_cmp_lg_u32 s{S_WAVE}, 4",f"s_cbranch_scc1 {k.lab('pdx')}",f"s_lshl_b32 s43, s{S_HEAD}, 12")
    poll(k,"x",43,32,1)
    k("s_barrier"); k.label("go")
    k(f"s_lshl_b32 s37, s{S_HEAD}, 6",f"s_add_u32 s37, s37, s{S_QT}","s_lshl_b32 s37, s37, 11")
    for j in range(4): k(f"buffer_load_dwordx4 {vr(Q+4*j,4)}, v{VL}, s[8:11], s37 offen offset:{1024*j}{P}")
    k(f"s_lshl_b32 s38, s{S_HEAD}, 18")
    for j in range(2): k(f"buffer_load_dwordx4 {vr(KF+4*j,4)}, v{VL}, s[12:15], s38 offen offset:{1024*j}{P}")
    k(f"s_lshl_b32 s{S_GO}, s{S_KH}, 5",f"s_add_u32 s{S_GO}, s{S_GO}, s{S_QG}",f"s_lshl_b32 s{S_GO}, s{S_GO}, 12",f"s_add_u32 s{S_GO}, s{S_GO}, s38",
      f"s_lshl_b32 s{S_M0}, s{S_WAVE}, 12")
    def dma():
        return [f"buffer_load_dwordx4 v{VL}, s[12:15], s{S_GO} offen offset:{1024*j}{P} lds" for j in range(4)]+[f"s_add_u32 s{S_GO}, s{S_GO}, 16384"]
    k(f"s_mov_b32 m0, s{S_M0}","s_nop 0",dma(),f"s_add_u32 m0, s{S_M0}, 32768","s_nop 0",dma())
    k(f"s_mov_b32 s{S_CNT}, s{S_NMAX}","s_waitcnt vmcnt(8)")
    k.label("mx")
    for u in range(2):
        k(f"v_mfma_f32_32x32x16_bf16 {vr(SB_+16*u,16)}, {vr(KF,4)}, {vr(Q+8*u,4)}, 0",f"v_mfma_f32_32x32x16_bf16 {vr(SB_+16*u,16)}, {vr(KF+4,4)}, {vr(Q+8*u+4,4)}, {vr(SB_+16*u,16)}")
    k("s_nop 15")
    for u in range(2):
        for i in range(8): k(f"v_max3_f32 v{6+u}, v{SB_+16*u+2*i}, v{SB_+16*u+2*i+1}, v{6+u}")
    k(f"s_sub_u32 s{S_CNT}, s{S_CNT}, 1",f"s_cmp_eq_u32 s{S_CNT}, 0",f"s_cbranch_scc1 {k.lab('mxd')}","s_add_u32 s38, s38, 4096")
    for j in range(2): k(f"buffer_load_dwordx4 {vr(KF+4*j,4)}, v{VL}, s[12:15], s38 offen offset:{1024*j}{P}")
    k("s_waitcnt vmcnt(0)",f"s_branch {k.lab('mx')}")
    k.label("mxd")
    k(f"v_mov_b32 v{NM}, v6",f"v_mov_b32 v{NM+16}, v7","s_nop 1",f"v_permlane32_swap_b32 v6, v{NM}",f"v_permlane32_swap_b32 v7, v{NM+16}","s_nop 1",
      f"v_max_f32 v6, v6, v{NM}",f"v_max_f32 v7, v7, v{NM+16}")
    for u in range(2):
        for i in range(16): k(f"v_sub_f32 v{NM+16*u+i}, 0, v{6+u}")
    k(f"s_cmp_eq_u32 s{S_KH}, 0",f"s_cbranch_scc1 {k.lab('w4')}","s_waitcnt vmcnt(0)"); k.label("w4")
    k("s_waitcnt vmcnt(4)","s_barrier"); stamp(k,2)
    def rdK(t):
        a,o=(VC,t*4096) if t<4 else (VN,(t-4)*4096)
        return [f"ds_read_b128 {vr(KF+8*(t%2)+4*j,4)}, v{a} offset:{o+1024*j}" for j in range(2)]
    def rdV(t): return [f"ds_read_b128 {vr(VF+8*(t%2)+4*j,4)}, v{VC} offset:{t*4096+2048+1024*j}" for j in range(2)]
    def qk(n):
        t,u=n//2,n%2; b=SB_+16*(n%4); kf=KF+8*(t%2)
        return [f"v_mfma_f32_32x32x16_bf16 {vr(b,16)}, {vr(kf,4)}, {vr(Q+8*u,4)}, {vr(NM+16*u,16)}",
                f"v_mfma_f32_32x32x16_bf16 {vr(b,16)}, {vr(kf+4,4)}, {vr(Q+8*u+4,4)}, {vr(b,16)}"]
    def pv(n):
        t,u=n//2,n%2; b=SB_+16*(n%4); vf=VF+8*(t%2)
        return [f"v_smfmac_f32_32x32x32_bf16 {vr(O+16*u,16)}, {vr(vf+4*j,4)}, {vr(b+8*j,8)}, v{IDX}" for j in range(2)]
    def sm(n):
        u=n%2; b=SB_+16*(n%4)
        return [f"v_smfmac_f32_16x16x64_bf16 {vr(L+4*u,4)}, {vr(SEL,4)}, {vr(b+8*j,8)}, v{IDX}" for j in range(2)]
    k(rdK(0),rdK(1),"s_waitcnt lgkmcnt(2)",qk(0),qk(1),f"s_mov_b32 s{S_CNT}, 0","s_nop 7","s_nop 1")
    k(f"s_mov_b32 s{S_MT}, 0x00111111",f"s_cmp_eq_u32 s{S_KH}, 0",f"s_cbranch_scc1 {k.lab('mt')}",f"s_mov_b32 s{S_MT}, 0x33332222"); k.label("mt")
    if G.APRIO: k(f"s_cmp_eq_u32 s{S_KH}, {G.APRIO-1}",f"s_cbranch_scc0 {k.lab('np')}","s_setprio 1"); k.label("np")
    k(".p2align 3"); k.label("loop")
    for n in range(8):
        b=SB_+16*(n%4); e=[f"v_exp_f32 v{b+i}, v{b+i}" for i in range(16)]
        a,p,s=qk(n+2),pv(n-1),sm(n-1)
        rd=rdV(n//2) if n%2==0 else rdK(n//2+2)
        hk=[]
        if n==0: k(f"s_and_b32 s{S_MODE}, s{S_MT}, 15",f"s_lshr_b32 s{S_MT}, s{S_MT}, 4")
        if n==4 and not G.XNB:
            l=k.lab("nw")
            k(f"s_cmp_ge_u32 s{S_MODE}, 2",f"s_cbranch_scc1 {l}","s_waitcnt vmcnt(0)",l+":","s_barrier")
        if n in (4,5) and not G.XND:
            if n==4: pre=[f"s_add_u32 s37, s{S_CUR}, 65536","s_sub_u32 s38, s37, 98304","s_cmp_ge_u32 s37, 98304","s_cselect_b32 s37, s38, s37",f"s_add_u32 m0, s37, s{S_M0}","s_nop 0"]
            if n==5: pre=["s_add_u32 m0, m0, 16384",f"s_add_u32 s{S_GO}, s{S_GO}, 131072"]
            ld=[f"buffer_load_dwordx4 v{VL}, s[12:15], s{S_GO} offen offset:{1024*j}{P} lds" for j in range(4)]
            rd[0]=[rd[0]]+site(n+10,1,pre+ld[:2])
            hk+=site(n,1,ld[2:]+([f"s_sub_u32 s{S_GO}, s{S_GO}, {131072-16384}"] if n==5 else []))
        if G.SJ:
            if n in G.SJL and G.SJ&1: hk+=site(n,2,sj_load())
            if n%4==0: hk+=site(n,3,(["s_waitcnt vmcnt(12)"] if n==0 else [])+sj_rd(2048*(n//4)))
            if n%4==2 and G.SJ&2: hk+=site(n,3,sj_st(n==6))
        rd=[rd[0],[rd[1]]+hk]
        if G.XNR: rd=[[],[]]
        W="s_waitcnt lgkmcnt(0)"
        if G.AORD==0: k(e[0:2],W,a[0],rd,e[2:5],p[0],e[5:7],s[0],e[7:10],a[1],e[10:12],p[1],e[12:15],s[1],e[15])
        if G.AORD==1: k(e[0:2],W,a[0],rd,e[2:5],p[0],e[5:8],s[0],e[8:9],a[1],e[9:12],p[1],e[12:15],s[1],e[15])
        if G.AORD==2: k(W,a[0],e[0:3],a[1],rd,e[3:6],p[0],e[6:9],s[0],e[9:11],p[1],e[11:14],s[1],e[14:16])
        if G.AORD==3: k(W,s[0],a[0],rd[0],e[0:4],p[0],e[4:8],s[1],a[1],rd[1],e[8:12],p[1],e[12:16])
        if G.AORD==4: k(W,a[0],e[0:4],p[0],rd[0],e[4:7],s[0],e[7:8],a[1],e[8:12],p[1],rd[1],e[12:15],s[1],e[15:16])
    k(f"s_add_u32 s{S_CUR}, s{S_CUR}, 32768",f"s_cmp_ge_u32 s{S_CUR}, 98304",f"s_cselect_b32 s{S_CUR}, 0, s{S_CUR}",
      f"s_add_u32 s37, s{S_CUR}, 32768","s_cmp_ge_u32 s37, 98304","s_cselect_b32 s37, 0, s37",
      f"v_mov_b32 v{VC}, v{VN}",f"v_add_u32 v{VN}, s37, v5",
      f"s_add_u32 s{S_CNT}, s{S_CNT}, 1",f"s_cmp_lt_u32 s{S_CNT}, 8",f"s_cbranch_scc1 {k.lab('loop')}")
    k(pv(7),sm(7),"s_waitcnt lgkmcnt(0)","s_barrier"); stamp(k,3)
    k("s_cmp_lt_u32 s2, 112",f"s_cbranch_scc0 {k.lab('nocs')}",f"s_cmp_eq_u32 s{S_KH}, 1",f"s_cbranch_scc0 {k.lab('nocs')}","v_lshrrev_b32 v7, 4, v0","s_sub_u32 s37, 5, s47","v_lshlrev_b32 v7, s37, v7","s_lshl_b32 s85, s85, 1","v_and_b32 v6, 1, v0","v_cmp_eq_u32 vcc, 1, v6","v_mul_lo_u32 v6, s85, v6","v_add_u32 v7, v6, v7",
      [f"v_cndmask_b32 v{WF+r}, v{CSA+r}, v{CSA+4+r}, vcc" for r in range(4)],"s_mov_b32 exec_lo, 0x30003","s_mov_b32 exec_hi, 0x30003",
      f"buffer_store_dwordx4 {vr(WF,4)}, v7, s[80:83], s78 offen sc1","s_mov_b64 exec, -1")
    k.label("nocs")
    k(f"s_mul_i32 s37, s{S_WAVE}, 5120",f"s_xor_b32 s38, s{S_WAVE}, 4","s_mul_i32 s38, s38, 5120",f"v_add_u32 v6, s37, v{VL}",f"v_add_u32 v7, s38, v{VL}","s_nop 7",
      f"s_cmp_eq_u32 s{S_KH}, 0",f"s_cbranch_scc1 {k.lab('kh0')}")
    for j in range(4): k(f"ds_write_b128 v6, {vr(O+4*j,4)} offset:{1024*j}")
    k(f"ds_write_b128 v6, {vr(L,4)} offset:4096")
    k("s_nop 1")
    for i in range(16): k(f"v_mov_b32 v{O+i}, v{O+16+i}")
    k(f"v_mov_b32 v{L}, v{L+4}",f"s_branch {k.lab('khd')}")
    k.label("kh0")
    for j in range(4): k(f"ds_write_b128 v6, {vr(O+16+4*j,4)} offset:{1024*j}")
    k(f"ds_write_b128 v6, {vr(L+4,4)} offset:4096")
    k.label("khd")
    k("v_mov_b32 v1, 0","v_mov_b32 v197, 163776","ds_write_b32 v197, v1","s_waitcnt lgkmcnt(0)","s_barrier")
    for j in range(4): k(f"ds_read_b128 {vr(SB_+4*j,4)}, v7 offset:{1024*j}")
    k(f"ds_read_b128 {vr(SB_+16,4)}, v7 offset:4096","s_waitcnt lgkmcnt(0)",f"v_add_f32 v{L}, v{L}, v{SB_+16}",f"v_rcp_f32 v{L+2}, v{L}")
    for i in range(8): k(f"v_pk_add_f32 {vr(O+2*i,2)}, {vr(O+2*i,2)}, {vr(SB_+2*i,2)}")
    k(f"v_mov_b32 v{L+3}, v{L+2}")
    for i in range(8): k(f"v_pk_mul_f32 {vr(O+2*i,2)}, {vr(O+2*i,2)}, {vr(L+2,2)}")
    pack(k,SB_,O)
    k(f"s_add_u32 s37, s{S_QT}, s{S_KH}","s_lshr_b32 s38, s37, 2","s_lshl_b32 s38, s38, 18","s_and_b32 s37, s37, 3","s_lshl_b32 s37, s37, 12","s_add_u32 s37, s37, s38",
      f"s_lshr_b32 s38, s{S_HEAD}, 1","s_lshl_b32 s38, s38, 14","s_add_u32 s37, s37, s38",f"s_and_b32 s38, s{S_HEAD}, 1","s_lshl_b32 s38, s38, 10","s_add_u32 s37, s37, s38",
      "v_and_b32 v6, 15, v0","v_lshlrev_b32 v6, 4, v6","v_bfe_u32 v7, v0, 4, 1","v_lshl_add_u32 v6, v7, 11, v6","v_lshrrev_b32 v7, 5, v0","v_lshl_add_u32 v6, v7, 9, v6")
    for j in range(2): k(f"buffer_store_dwordx4 {vr(SB_+4*j,4)}, v6, s[16:19], s37 offen offset:{256*j}{G.STF}")
    k(f"s_cmp_lg_u32 s{S_NMAX}, 1",f"s_cbranch_scc1 {k.lab('ok')}")
    for i in range(16): k(f"v_fma_f32 v{L}, v{O+i}, 0, v{L}")
    k(f"v_mov_b32 v7, {f2u(2.0**60)}",f"v_cmp_nlt_f32 vcc, v{L}, v7","s_nop 4","s_cmp_eq_u64 vcc, 0",f"s_cbranch_scc1 {k.lab('ok')}",
      "v_mov_b32 v1, 1","ds_write_b32 v197, v1")
    k.label("ok")
    k("s_waitcnt vmcnt(0) lgkmcnt(0)","s_barrier","ds_read_b32 v1, v197","s_waitcnt lgkmcnt(0)","v_readfirstlane_b32 s37, v1","s_nop 3","s_cmp_eq_u32 s37, 0",f"s_cbranch_scc1 {k.lab('store')}",
      f"s_mov_b32 s{S_NMAX}, 64","s_barrier",f"s_branch {k.lab('retry')}")
    k.label("store")
    if mega:
        k("s_setprio 0",f"s_add_u32 s43, s{S_QT}, s{S_KH}","s_lshl_b32 s43, s43, 5",f"s_add_u32 s43, s43, s{S_HEAD}","s_lshl_b32 s43, s43, 7",f"s_add_u32 s43, s43, {F2}"); signal(k,43)
        k(f"s_cmp_eq_u32 s{S_WAVE}, 0",f"s_cbranch_scc0 {k.lab('nsj')}","s_lshl_b32 s43, s2, 2",f"s_add_u32 s43, s43, {F5}","s_lshl_b32 s44, s2, 7",f"s_add_u32 s44, s44, {F6-224*128}","s_cmp_lt_u32 s2, 224","s_cselect_b32 s43, s43, s44",
          "s_mov_b64 exec, 1",f"buffer_store_dword v241, v240, s[{SF}:{SF+3}], s43 offen sc1","s_mov_b64 exec, -1")
        k.label("nsj")
    if G.STAMP and not mega: k("s_waitcnt vmcnt(0)")
    stamp(k,4)
    return k if mega else finish(k)
```

```python
from lib import *
import gemm as G
from gemm import *
import math
def mkcfg(**kw):
    c=Cfg(); c.aarg=None; c.barg=None; c.loader_head=None; c.loader_tail=None; c.lds_extra=0; c.swap=lambda tn:False; c.acc0=8; c.vmax=252; c.barpos=G.BP; c.rstep=G.RS; c.UNR=G.UNR; c.aux=None; c.auxat=0; c.P0=G.P0; c.R=1; c.xflag=None; c.wflag=None; c.sig=None; c.wlate=False; c.gate=G.GATE
    c.__dict__.update(kw); return c
def unpack(k,dst,src,n):
    for i in range(n): k(f"v_lshlrev_b32 v{dst+2*i}, 16, v{src+i}",f"v_and_b32 v{dst+2*i+1}, 0xffff0000, v{src+i}")
def rstd_from(k,s,q,out):
    k(f"v_mul_f32 v{s}, {f2u(-1/1024)}, v{s}",f"v_mul_f32 v{q}, {f2u(1/1024)}, v{q}",f"v_fma_f32 v{q}, -v{s}, v{s}, v{q}",f"v_max_f32 v{q}, 0, v{q}",
      f"v_add_f32 v{q}, {f2u(1e-5)}, v{q}",f"v_rsq_f32 v{out}, v{q}")
def k_qkv(km=None):
    def epi(k,ACC,FR,X):
        k(srd(SO,P_WS,WS_QF,0x400000),srd(SA,P_WS,WS_KV,0x800000))
        k(f"s_lshl_b32 s{S_T}, s{S_MI}, 2",f"s_lshl_b32 s3, s{S_WM}, 1",f"s_add_u32 s{S_T}, s{S_T}, s3",
          f"s_lshl_b32 s{S_T2}, s{S_NI}, 1",f"s_add_u32 s{S_T2}, s{S_T2}, s{S_WN}",f"s_lshl_b32 s{S_T2}, s{S_T2}, 6",f"s_add_u32 s{S_T}, s{S_T}, s{S_T2}",
          f"s_lshl_b32 s41, s{S_T}, 11",f"s_lshl_b32 s42, s{S_T}, 12","s_add_u32 s43, s42, 4096",
          f"s_mov_b32 s52, {f2u(math.log2(math.e)/math.sqrt(32))}",f"s_mov_b32 s53, s52",
          "v_lshrrev_b32 v4, 4, v0","v_lshlrev_b32 v4, 9, v4","v_and_b32 v5, 15, v0","v_lshl_add_u32 v2, v5, 4, v4",
          )
        d=FR
        for tm in range(4):
            a=ACC+24*tm; sk=42+tm//2
            pack(k,d,a+8,8); k(f"buffer_store_dwordx4 {vr(d,4)}, v2, s[{SA}:{SA+3}], s{sk} offen offset:{256*(tm%2)}{G.STF}"); d+=4
            if tm%2:
                for t in range(2):
                    pack(k,d,a-24+16+4*t,4); pack(k,d+2,a+16+4*t,4)
                    k(f"buffer_store_dwordx4 {vr(d,4)}, v2, s[{SA}:{SA+3}], s{sk} offen offset:{2048+256*t}{G.STF}"); d+=4
            for i in range(4): k(f"v_pk_mul_f32 {vr(a+2*i,2)}, {vr(a+2*i,2)}, s[52:53]")
            pack(k,d,a,8); k(f"buffer_store_dwordx4 {vr(d,4)}, v2, s[{SO}:{SO+3}], s41 offen offset:{2048*(tm//2)+256*(tm%2)}{G.STF}"); d+=4
    def sig(k):
        k(f"s_lshl_b32 s43, s{S_NI}, 1",f"s_add_u32 s43, s43, s{S_WN}","s_lshl_b32 s43, s43, 5",f"s_lshl_b32 s3, s{S_MI}, 1","s_add_u32 s43, s43, s3",f"s_add_u32 s43, s43, s{S_WM}","s_lshl_b32 s43, s43, 7"); signal(k,43)
    c=mkcfg(sig=sig,TM=4,TN=6,WM=2,WN=2,NS=4,K=1024,woff=WS_WQ,xoff=WS_XN,map="8x4",swap=lambda tn:tn>=4,prologue=zero_acc(96),epilogue=epi)
    return gemm("qkv",c,km)
def rowmajor_addr(k,v,sdst):
    k(f"s_lshl_b32 s{sdst}, s{S_MI}, 2",f"s_add_u32 s{sdst}, s{sdst}, s{S_WM}",f"s_lshl_b32 s{sdst}, s{sdst}, 16",f"s_lshl_b32 s3, s{S_NI}, 7",f"s_add_u32 s{sdst}, s{sdst}, s3",
      f"s_add_u32 s{sdst+1}, s{sdst}, 32768",f"v_and_b32 v{v}, 15, v0",f"v_lshlrev_b32 v{v}, 11, v{v}","v_lshrrev_b32 v1, 4, v0",f"v_lshl_add_u32 v{v}, v1, 4, v{v}")
def hunit_addr(k,sdst):
    k(f"s_lshl_b32 s{sdst}, s{S_MI}, 18",f"s_lshl_b32 s3, s{S_NI}, 14",f"s_add_u32 s{sdst}, s{sdst}, s3",f"s_lshl_b32 s3, s{S_WM}, 12",f"s_add_u32 s{sdst}, s{sdst}, s3")
def k_oproj(km=None):
    def pro(k):
        k(srd(SA,P_A,0,0x400000)); rowmajor_addr(k,7,41)
        for j in range(4): k(f"buffer_load_dwordx4 {vr(100+4*j,4)}, v7, s[{SA}:{SA+3}], s{41+j//2} offen offset:{64*(j%2)}")
    def epi(k,ACC,FR,X):
        k(srd(SO,P_WS,WS_HF,0x400000),srd(SB,P_WS,WS_ST,2048*128)); hunit_addr(k,41)
        k("s_waitcnt vmcnt(0)"); unpack(k,120,100,16)
        for i in range(16): k(f"v_pk_add_f32 {vr(ACC+2*i,2)}, {vr(ACC+2*i,2)}, {vr(120+2*i,2)}")
        pack(k,FR,ACC,32)
        for j in range(4): k(f"buffer_store_dwordx4 {vr(FR+4*j,4)}, v2, s[{SO}:{SO+3}], s41 offen offset:{1024*j}{G.STF}")
        for tm in range(2):
            a=ACC+16*tm; s_,q_=100+4*tm,102+4*tm
            k(f"v_pk_add_f32 {vr(s_,2)}, {vr(a,2)}, {vr(a+2,2)}",f"v_pk_mul_f32 {vr(q_,2)}, {vr(a,2)}, {vr(a,2)}",f"v_pk_fma_f32 {vr(q_,2)}, {vr(a+2,2)}, {vr(a+2,2)}, {vr(q_,2)}")
            for i in range(2,8): k(f"v_pk_add_f32 {vr(s_,2)}, {vr(s_,2)}, {vr(a+2*i,2)}",f"v_pk_fma_f32 {vr(q_,2)}, {vr(a+2*i,2)}, {vr(a+2*i,2)}, {vr(q_,2)}")
            k(f"v_add_f32 v{s_}, v{s_}, v{s_+1}",f"v_add_f32 v{q_}, v{q_}, v{q_+1}")
        k(f"s_lshl_b32 s42, s{S_MI}, 2",f"s_add_u32 s42, s42, s{S_WM}","s_lshl_b32 s42, s42, 12",f"s_lshl_b32 s3, s{S_NI}, 8","s_add_u32 s42, s42, s3",
          "v_permlane32_swap_b32 v100, v104","v_permlane32_swap_b32 v102, v106","v_and_b32 v3, 15, v0","v_lshlrev_b32 v3, 3, v3",
          "v_add_f32 v100, v100, v104","v_add_f32 v102, v102, v106","v_lshrrev_b32 v4, 5, v0","v_lshl_add_u32 v3, v4, 7, v3",
          "v_permlane16_swap_b32 v100, v102","v_bfe_u32 v4, v0, 4, 1","v_lshl_add_u32 v3, v4, 2, v3","v_add_f32 v100, v100, v102",
          f"buffer_store_dword v100, v3, s[{SB}:{SB+3}], s42 offen sc1")
    def sig(k):
        k(f"s_lshl_b32 s43, s{S_MI}, 2",f"s_add_u32 s43, s43, s{S_WM}","s_lshl_b32 s43, s43, 4",f"s_add_u32 s43, s43, s{S_NI}","s_lshl_b32 s43, s43, 7",f"s_add_u32 s43, s43, {F3}"); signal(k,43)
    c=mkcfg(sig=sig,xflag=(F2,32,0),gate=0,wlate=bool(G.NOPREP),TM=2,TN=4,WM=4,WN=1,NS=6//G.R6,R=G.R6,K=1024,aarg=A_X,woff=WS_WO,xoff=WS_OF,map="4x8",prologue=zero_acc(32),aux=pro,auxat=G.AUX6//G.R6,epilogue=epi,barpos=1,rstep=1,UNR=G.UNR6,vmax=100)
    return gemm("oproj",c,km)
def k_ffn1(km=None):
    def lhead(k):
        k(srd(SA,P_WS,WS_CS,4*3584*4),srd(SB,P_A,0,3584*2),f"s_lshl_b32 s{S_T}, s{S_WAVE}, 6",f"v_add_u32 v20, s{S_T}, v0",
          f"s_mul_i32 s{S_T}, s{S_NI}, 224",f"v_add_u32 v21, s{S_T}, v20","v_lshlrev_b32 v22, 2, v21","v_lshlrev_b32 v21, 1, v21",
          f"buffer_load_ushort v40, v21, s[{SB}:{SB+3}], 0 offen")
        for p in range(4): k(f"s_mov_b32 s{S_T}, {p*3584*4}",f"buffer_load_dword v{24+p}, v22, s[{SA}:{SA+3}], s{S_T} offen sc1")
        return 5
    def ltail(k,X):
        for p in range(1,4): k(f"v_add_f32 v24, v24, v{24+p}")
        k("v_lshlrev_b32 v40, 16, v40","v_lshrrev_b32 v21, 5, v20","v_bfe_u32 v22, v20, 2, 1","v_lshl_add_u32 v25, v21, 1, v22",
          "v_bfe_u32 v28, v20, 3, 2","v_bfe_u32 v29, v20, 2, 2","v_bfe_u32 v22, v20, 4, 1",
          "v_cmp_lt_u32 vcc, 3, v21","v_subrev_u32 v26, 1, v25","v_mul_u32_u24 v27, 7, v22","v_cndmask_b32 v25, v25, v26, vcc","v_cmp_eq_u32 vcc, 3, v21","v_add_u32 v27, 6, v27","s_nop 0","v_cndmask_b32 v25, v25, v27, vcc","v_cndmask_b32 v28, v28, v29, vcc",
          "v_cmp_eq_u32 vcc, 7, v21","v_mov_b32 v27, 15","s_nop 0","v_cndmask_b32 v25, v25, v27, vcc",
          "v_lshlrev_b32 v25, 6, v25","v_lshl_add_u32 v25, v28, 4, v25","v_and_b32 v26, 3, v20","v_lshl_add_u32 v25, v26, 2, v25",
          f"v_add_u32 v25, {X}, v25","ds_write_b32 v25, v24","ds_write_b32 v25, v40 offset:1024","s_waitcnt lgkmcnt(0)")
    ST=208
    def pro(k):
        k(srd(SB,P_WS,WS_ST,2048*128),f"s_lshl_b32 s{S_T}, s{S_MI}, 1",f"s_add_u32 s{S_T}, s{S_T}, s{S_WM}",f"s_lshl_b32 s{S_T}, s{S_T}, 13",
          "v_and_b32 v7, 15, v0","v_lshlrev_b32 v7, 3, v7","v_lshrrev_b32 v1, 4, v0","v_lshl_add_u32 v7, v1, 10, v7")
        for tm in range(4):
            if tm==2: k(f"s_add_u32 s{S_T}, s{S_T}, 4096")
            for j in range(4): k(f"buffer_load_dwordx2 {vr(ST+8*tm+2*j,2)}, v7, s[{SB}:{SB+3}], s{S_T} offen offset:{128*(tm%2)+256*j} sc1")
    def epi(k,ACC,FR,X):
        k(srd(SO,P_WS,WS_GF,2048*3584*2))
        CSR=FR; BR=FR+28; T=FR+56
        k(f"s_mul_i32 s3, s{S_WN}, 448",f"s_add_u32 s3, s3, {X}","v_lshrrev_b32 v3, 4, v0","v_lshlrev_b32 v3, 4, v3","v_add_u32 v3, s3, v3")
        for tn in range(7): k(f"ds_read_b128 {vr(CSR+4*tn,4)}, v3 offset:{64*tn}",f"ds_read_b128 {vr(BR+4*tn,4)}, v3 offset:{1024+64*tn}")
        k(f"s_mul_i32 s41, s{S_MI}, {3584*256}",f"s_lshl_b32 s3, s{S_WM}, 13","s_add_u32 s41, s41, s3",f"s_mul_i32 s42, s{S_NI}, 7",f"s_lshl_b32 s43, s{S_WN}, 2")
        for p in range(4):
            if p<3: k(f"s_add_u32 s3, s42, s43",f"s_add_u32 s3, s3, {p}")
            else: k("s_add_u32 s3, s42, 3")
            k(f"s_lshr_b32 s{54+p}, s3, 1",f"s_lshl_b32 s{54+p}, s{54+p}, 14","s_and_b32 s3, s3, 1","s_lshl_b32 s3, s3, 10",f"s_add_u32 s{54+p}, s{54+p}, s3",f"s_add_u32 s{54+p}, s{54+p}, s41")
        k(f"s_lshl_b32 s3, s{S_WN}, 9","s_add_u32 s57, s57, s3","v_add_u32 v7, 4096, v2",
          "v_and_b32 v6, 15, v0","v_lshlrev_b32 v6, 4, v6","v_bfe_u32 v1, v0, 4, 1","v_lshl_add_u32 v6, v1, 11, v6","v_lshrrev_b32 v1, 5, v0","v_lshl_add_u32 v6, v1, 8, v6","s_waitcnt vmcnt(0)")
        for tm in range(4):
            r=ST+8*tm
            k(f"v_pk_add_f32 {vr(r,2)}, {vr(r,2)}, {vr(r+2,2)}",f"v_pk_add_f32 {vr(r+4,2)}, {vr(r+4,2)}, {vr(r+6,2)}",f"v_pk_add_f32 {vr(r,2)}, {vr(r,2)}, {vr(r+4,2)}")
        for op in ("v_permlane16_swap_b32","v_permlane32_swap_b32"):
            for tm in range(4): r=ST+8*tm; k(f"v_mov_b32 v{r+2}, v{r}",f"v_mov_b32 v{r+3}, v{r+1}")
            k("s_nop 1")
            for tm in range(4): r=ST+8*tm; k(f"{op} v{r}, v{r+2}",f"{op} v{r+1}, v{r+3}")
            k("s_nop 1")
            for tm in range(4): r=ST+8*tm; k(f"v_pk_add_f32 {vr(r,2)}, {vr(r,2)}, {vr(r+2,2)}")
        for tm in range(4): r=ST+8*tm; rstd_from(k,r,r+1,r+2); k(f"v_mov_b32 v{r+1}, v{r}",f"v_mov_b32 v{r+3}, v{r+2}")
        a_=-2*0.7978845608028654*math.log2(math.e); b_=a_*0.044715
        k(f"s_mov_b32 s52, {f2u(b_)}",f"s_mov_b32 s53, {f2u(b_)}",f"v_mov_b32 v4, {f2u(a_)}",f"v_mov_b32 v5, {f2u(a_)}","s_waitcnt lgkmcnt(0)")
        P=lambda r,i:vr(r+2*i,2)
        for tm in range(4):
            a=ACC+28*tm; r=ST+8*tm
            for i in range(14): k(f"v_pk_fma_f32 {P(a,i)}, {P(CSR,i)}, {vr(r,2)}, {P(a,i)}")
            for i in range(14): k(f"v_pk_fma_f32 {P(a,i)}, {P(a,i)}, {vr(r+2,2)}, {P(BR,i)}")
            for i in range(14): k(f"v_pk_mul_f32 {P(T,i)}, {P(a,i)}, {P(a,i)}")
            for i in range(14): k(f"v_pk_fma_f32 {P(T,i)}, {P(T,i)}, s[52:53], v[4:5]")
            for i in range(14): k(f"v_pk_mul_f32 {P(T,i)}, {P(T,i)}, {P(a,i)}")
            for i in range(28): k(f"v_exp_f32 v{T+i}, v{T+i}")
            for i in range(14): k(f"v_pk_add_f32 {P(T,i)}, {P(T,i)}, 1.0 op_sel_hi:[1,0]")
            for i in range(28): k(f"v_rcp_f32 v{T+i}, v{T+i}")
            for i in range(14): k(f"v_pk_mul_f32 {P(T,i)}, {P(T,i)}, {P(a,i)}")
            pack(k,a,T,24); sg=ACC+28*(tm&~1)+12; pack(k,sg+2*(tm%2),T+24,4)
            va=2 if tm<2 else 7
            for p in range(3): k(f"buffer_store_dwordx4 {vr(a+4*p,4)}, v{va}, s[{SO}:{SO+3}], s{54+p} offen offset:{2048*(tm%2)}{G.STF}")
            if tm%2:
                k(f"v_permlane16_swap_b32 v{sg}, v{sg+2}",f"v_permlane16_swap_b32 v{sg+1}, v{sg+3}",f"buffer_store_dwordx4 {vr(sg,4)}, v6, s[{SO}:{SO+3}], s57 offen{G.STF}","s_add_u32 s57, s57, 4096")
    def sig(k):
        k(f"s_lshl_b32 s43, s{S_MI}, 1",f"s_add_u32 s43, s43, s{S_WM}","s_lshl_b32 s43, s43, 5",f"s_lshl_b32 s3, s{S_NI}, 1","s_add_u32 s43, s43, s3",f"s_add_u32 s43, s43, s{S_WN}","s_lshl_b32 s43, s43, 7",f"s_add_u32 s43, s43, {F4}"); signal(k,43)
    c=mkcfg(sig=sig,xflag=(F3,16,0),wflag=(F5,56,True),TM=4,TN=7,WM=2,WN=2,NS=3,K=1024,aarg=A_B1,woff=WS_W1,xoff=WS_HF,map="8x4",prologue=zero_acc(112),aux=pro,auxat=max(2,G.UNR),epilogue=epi,loader_head=lhead,loader_tail=ltail,lds_extra=2048,vmax=208)
    return gemm("ffn1",c,km)
def k_ffn2(km=None):
    def pro(k):
        k(srd(SA,P_WS,WS_HF,0x400000),srd(SB,P_A,0,2048)); hunit_addr(k,41)
        k(f"s_lshl_b32 s42, s{S_NI}, 7","v_lshrrev_b32 v7, 4, v0","v_lshlrev_b32 v7, 4, v7")
        for j in range(4): k(f"buffer_load_dwordx4 {vr(100+4*j,4)}, v2, s[{SA}:{SA+3}], s41 offen offset:{1024*j} sc1")
        for j in range(2): k(f"buffer_load_dwordx4 {vr(116+4*j,4)}, v7, s[{SB}:{SB+3}], s42 offen offset:{64*j}")
    def epi(k,ACC,FR,X):
        k(srd(SO,P_B,0,0x400000)); rowmajor_addr(k,7,41)
        k("s_waitcnt vmcnt(0)"); unpack(k,130,100,24)
        for i in range(16): k(f"v_pk_add_f32 {vr(ACC+2*i,2)}, {vr(ACC+2*i,2)}, {vr(162+2*(i%8),2)}")
        for i in range(16): k(f"v_pk_add_f32 {vr(ACC+2*i,2)}, {vr(ACC+2*i,2)}, {vr(130+2*i,2)}")
        pack(k,FR,ACC,32)
        for j in range(4): k(f"buffer_store_dwordx4 {vr(FR+4*j,4)}, v7, s[{SO}:{SO+3}], s{41+j//2} offen offset:{64*(j%2)}{G.OUTP}")
    c=mkcfg(xflag=(F4,32,1),TM=2,TN=4,WM=4,WN=1,NS=6//G.R6,R=G.R6,K=3584,aarg=A_B2,barg=A_OUT,woff=WS_W2,xoff=WS_GF,map="4x8",prologue=zero_acc(32),aux=pro,auxat=G.AUX6//G.R6,epilogue=epi,barpos=1,rstep=1,UNR=G.UNR6,vmax=100)
    return gemm("ffn2",c,km)
def k_prep():
    k=K("prep_kernel",256,512,256+4*8192,nv=256 if G.STAMP else 64)
    stamp0(k)
    k("s_cmp_ge_u32 s2, 256",f"s_cbranch_scc1 {k.lab('end')}",f"s_load_dwordx2 s[4:5], s[0:1], {A_WS}",f"s_load_dwordx4 s[48:51], s[0:1], {A_X}",f"s_load_dwordx2 s[56:57], s[0:1], {A_WO}",f"s_load_dwordx2 s[52:53], s[0:1], {A_B1}",f"s_load_dwordx2 s[54:55], s[0:1], {A_B2}",
      "v_lshrrev_b32 v1, 6, v0","v_and_b32 v0, 63, v0","s_nop 0",f"v_readfirstlane_b32 s30, v1","s_nop 1","s_cmp_ge_u32 s30, 4",f"s_cbranch_scc1 {k.lab('w')}")
    k("v_and_b32 v2, 7, v0","v_lshrrev_b32 v3, 3, v0","v_lshlrev_b32 v4, 11, v2","v_lshl_add_u32 v4, v3, 4, v4","s_lshl_b32 s31, s2, 14","s_lshl_b32 s32, s30, 9","s_add_u32 s31, s31, s32",
      "s_waitcnt lgkmcnt(0)",srd(8,48,0,0x400000))
    for i in range(4): k(f"buffer_load_dwordx4 {vr(8+4*i,4)}, v4, s[8:11], s31 offen offset:{128*i}")
    k(srd(16,4,WS_FL,FLN),"s_lshl_b32 s35, s2, 2","s_add_u32 s35, s35, s30","s_lshl_b32 s35, s35, 10","v_lshlrev_b32 v6, 4, v0","v_mov_b32 v28, 0","v_mov_b32 v29, 0","v_mov_b32 v30, 0","v_mov_b32 v31, 0",
      f"buffer_store_dwordx4 v[28:31], v6, s[16:19], s35 offen{G.STF}")
    stamp(k,1,True)
    k(srd(12,4,WS_XN,0x400000),"s_lshr_b32 s33, s2, 4","s_lshl_b32 s33, s33, 18","s_bfe_u32 s34, s2, 0x30001","s_lshl_b32 s34, s34, 11","s_add_u32 s33, s33, s34",
      "s_and_b32 s34, s2, 1","s_lshl_b32 s34, s34, 7","s_add_u32 s33, s33, s34","s_lshl_b32 s34, s30, 16","s_add_u32 s33, s33, s34",
      "v_lshlrev_b32 v5, 8, v3","v_lshl_add_u32 v5, v2, 4, v5","s_waitcnt vmcnt(1)")
    stamp(k,2)
    unpack(k,32,8,16)
    k("v_pk_add_f32 v[24:25], v[32:33], v[34:35]","v_pk_mul_f32 v[26:27], v[32:33], v[32:33]","v_pk_fma_f32 v[26:27], v[34:35], v[34:35], v[26:27]")
    for i in range(2,16): k(f"v_pk_add_f32 v[24:25], v[24:25], {vr(32+2*i,2)}",f"v_pk_fma_f32 v[26:27], {vr(32+2*i,2)}, {vr(32+2*i,2)}, v[26:27]")
    k("v_add_f32 v24, v24, v25","v_add_f32 v25, v26, v27","s_nop 1","v_add_f32_dpp v24, v24, v24 row_ror:8 row_mask:0xf bank_mask:0xf","v_add_f32_dpp v25, v25, v25 row_ror:8 row_mask:0xf bank_mask:0xf")
    for op in ("v_permlane16_swap_b32","v_permlane32_swap_b32"):
        k("v_mov_b32 v26, v24","v_mov_b32 v27, v25","s_nop 1",f"{op} v24, v26",f"{op} v25, v27","s_nop 1","v_add_f32 v24, v24, v26","v_add_f32 v25, v25, v27")
    k("s_lshl_b32 s34, s30, 6","v_lshlrev_b32 v6, 3, v2","v_add_u32 v7, s34, v6","ds_write_b64 v7, v[24:25]","s_waitcnt lgkmcnt(0)","s_barrier")
    for w in range(4): k(f"ds_read_b64 {vr(8+2*w,2)}, v6 offset:{64*w}")
    k("s_waitcnt lgkmcnt(0)","v_pk_add_f32 v[8:9], v[8:9], v[10:11]","v_pk_add_f32 v[12:13], v[12:13], v[14:15]","v_pk_add_f32 v[24:25], v[8:9], v[12:13]")
    rstd_from(k,24,25,26); k("v_mov_b32 v25, v24","v_mov_b32 v27, v26")
    for i in range(16): k(f"v_pk_add_f32 {vr(32+2*i,2)}, {vr(32+2*i,2)}, v[24:25]")
    for i in range(16): k(f"v_pk_mul_f32 {vr(32+2*i,2)}, {vr(32+2*i,2)}, v[26:27]")
    pack(k,8,32,32)
    for i in range(4): k(f"buffer_store_dwordx4 {vr(8+4*i,4)}, v5, s[12:15], s33 offen{G.STF}","s_add_u32 s33, s33, 16384")
    stamp(k,3)
    if G.STAMP: k("s_waitcnt vmcnt(0)")
    stamp(k,4)
    k("s_endpgm")
    k.label("w")
    k("s_sub_u32 s30, s30, 4","s_mov_b32 s35, 6144"); relayout_addr(k,2,3,35,None,None)
    k("v_lshrrev_b32 v7, 4, v0","v_lshl_add_u32 v3, v7, 9, v3","s_lshl_b32 s36, s30, 13","s_add_u32 s36, s36, 256","v_add_u32 v3, s36, v3","v_lshlrev_b32 v4, 4, v0",
      "s_lshr_b32 s31, s2, 3","s_and_b32 s32, s2, 7","s_mul_i32 s32, s32, 12","s_mul_i32 s33, s30, 3","s_add_u32 s32, s32, s33",
      f"s_mul_i32 s33, s31, {32*6144}","s_lshl_b32 s34, s32, 6","s_add_u32 s33, s33, s34",f"s_add_u32 s34, s33, {16*6144}",
      "s_waitcnt lgkmcnt(0)",srd(8,50,0,1024*6144),srd(12,4,WS_WQ,1024*6144))
    for it in range(3):
        k(f"s_add_u32 m0, s36, {2048*it}","s_nop 0","buffer_load_dwordx4 v2, s[8:11], s33 offen lds",f"s_add_u32 m0, s36, {2048*it+1024}","s_add_u32 s33, s33, 64",
          "buffer_load_dwordx4 v2, s[8:11], s34 offen lds","s_add_u32 s34, s34, 64")
    k(srd(16,56,0,1024*2048),srd(20,4,WS_WO,1024*2048),"s_mov_b32 s35, 2048"); relayout_addr(k,40,41,35,None,None)
    k("s_and_b32 s42, s2, 7","s_lshl_b32 s42, s42, 2","s_add_u32 s42, s42, s30","s_lshl_b32 s33, s31, 16","s_lshl_b32 s34, s42, 6","s_add_u32 s33, s33, s34","s_add_u32 s34, s33, 32768",
      "s_add_u32 m0, s36, 6144","v_lshrrev_b32 v7, 5, v0","buffer_load_dwordx4 v40, s[16:19], s33 offen lds","s_add_u32 m0, s36, 7168","v_lshl_add_u32 v41, v7, 10, v41","buffer_load_dwordx4 v40, s[16:19], s34 offen lds",
      "v_bfe_u32 v7, v0, 4, 1","v_lshl_add_u32 v41, v7, 8, v41","v_add_u32 v41, s36, v41",
      "s_lshr_b32 s43, s42, 1","s_lshl_b32 s43, s43, 17","s_and_b32 s42, s42, 1","s_lshl_b32 s42, s42, 12","s_add_u32 s43, s43, s42","s_lshr_b32 s42, s31, 1","s_lshl_b32 s42, s42, 13","s_add_u32 s43, s43, s42",
      "s_and_b32 s42, s31, 1","s_lshl_b32 s42, s42, 10","s_add_u32 s43, s43, s42")
    k("s_barrier","s_lshr_b32 s37, s31, 1","s_mul_i32 s37, s37, 24576","s_and_b32 s31, s31, 1","s_lshl_b32 s31, s31, 10","s_add_u32 s37, s37, s31")
    for it in range(3):
        k("s_waitcnt vmcnt(6)")
        for t in range(2):
            k(f"ds_read_b64_tr_b16 {vr(8+8*it+4*t,2)}, v3 offset:{2048*it+8*t}",f"ds_read_b64_tr_b16 {vr(10+8*it+4*t,2)}, v3 offset:{2048*it+8*t+256}")
        k("s_lshr_b32 s39, s32, 5","s_bfe_u32 s40, s32, 0x40001",f"s_mul_i32 s40, s40, {16*24576}","s_and_b32 s41, s32, 1","s_mul_i32 s41, s41, 3","s_add_u32 s39, s39, s41","s_lshl_b32 s39, s39, 12",
          "s_add_u32 s39, s39, s40","s_add_u32 s39, s39, s37","s_add_u32 s32, s32, 1","s_waitcnt lgkmcnt(0)")
        for t in range(2): k(f"buffer_store_dwordx4 {vr(8+8*it+4*t,4)}, v4, s[12:15], s39 offen offset:{2048*t}{G.STF}")
    k("s_waitcnt vmcnt(6)")
    for t in range(2): k(f"ds_read_b64_tr_b16 {vr(32+4*t,2)}, v41 offset:{6144+8*t}",f"ds_read_b64_tr_b16 {vr(34+4*t,2)}, v41 offset:{6144+8*t+512}")
    k("s_waitcnt lgkmcnt(0)")
    for t in range(2): k(f"buffer_store_dwordx4 {vr(32+4*t,4)}, v4, s[20:23], s43 offen offset:{2048*t}{G.STF}")
    k("s_cmp_lg_u32 s2, 0",f"s_cbranch_scc1 {k.lab('end')}",srd(8,52,0,7168),srd(12,54,0,2048),"v_lshlrev_b32 v4, 7, v0",
      "buffer_load_dword v5, v4, s[8:11], 0 offen","buffer_load_dword v6, v4, s[12:15], 0 offen","s_waitcnt vmcnt(0)")
    k.label("end"); k("s_endpgm")
    return k
```

```python
from lib import *
import gemm as G
from gemm import *
from kern import rstd_from
import math
WS_RP=0x0; WS_CP=0x100000
def k_qkvd(km):
    k=begin(km,"qkv",163840); NS=4; STG=40960; LW=10; S=16; PSH=G.PSH
    k(f"s_load_dwordx4 s[48:51], s[0:1], {A_X}",f"s_load_dwordx2 s[52:53], s[0:1], {A_DBG}",f"s_and_b32 s{S_T}, s2, 7",f"s_lshr_b32 s{S_T2}, s2, 3")
    wgmap(k,"8x4")
    if G.LAT: k(f"s_and_b32 s58, s{S_MI}, 7","s_lshl_b32 s58, s58, 1",f"s_lshr_b32 s3, s{S_MI}, 3","s_add_u32 s58, s58, s3")
    else: k(f"s_mov_b32 s58, s{S_MI}")
    k(f"s_add_u32 s58, s58, s{S_NI}","s_and_b32 s58, s58, 15",
      f"s_cmp_lt_u32 s{S_WAVE}, 4",f"s_cbranch_scc1 {k.lab('cons')}")
    k(f"s_sub_u32 s{S_WAVE}, s{S_WAVE}, 4","v_lshrrev_b32 v3, 3, v0","v_and_b32 v4, 7, v0","v_lshrrev_b32 v5, 1, v3","v_xor_b32 v6, v4, v5","v_lshlrev_b32 v7, 11, v3")
    for u in range(4): k(f"v_xor_b32 v1, {4*(u%2)}, v6",f"v_lshl_add_u32 v{8+u}, v1, 4, v7",f"v_add_u32 v{8+u}, {u*(16384-1024)}, v{8+u}")
    k("v_and_b32 v5, 2, v3","v_xor_b32 v6, v4, v5","v_mul_u32_u24 v7, 6144, v3","v_lshl_add_u32 v12, v6, 4, v7","v_xor_b32 v6, 4, v6","v_lshl_add_u32 v13, v6, 4, v7",f"v_add_u32 v13, {8*6144-1024}, v13",
      f"s_lshl_b32 s41, s{S_WAVE}, 12",f"s_lshl_b32 s42, s{S_WAVE}, 11","s_add_u32 s42, s42, 16384",
      f"s_lshl_b32 s43, s{S_MI}, 2",f"s_add_u32 s43, s43, s{S_WAVE}","s_lshl_b32 s43, s43, 16",f"s_mul_i32 s3, s{S_WAVE}, {16*6144}")
    for p in range(3): k(f"s_add_u32 s{44+p}, s{S_NI}, {PSH*p}",f"s_and_b32 s{44+p}, s{44+p}, 15",f"s_lshl_b32 s{44+p}, s{44+p}, 7",f"s_add_u32 s{44+p}, s{44+p}, s3",f"s_add_u32 s{44+p}, s{44+p}, {2048*p}")
    k("s_mov_b32 s47, s58","s_and_b32 s59, s2, 7",f"s_mul_i32 s59, s59, {G.XOF}",f"s_and_b32 s3, s{S_MI}, {G.SKM}",f"s_mul_i32 s3, s3, {G.SK}","s_add_u32 s59, s59, s3","s_and_b32 s59, s59, 15")
    if G.SK<0: k("s_mov_b32 s59, s58")
    k(f"s_mov_b32 s{S_SLOT}, 0","s_waitcnt lgkmcnt(0)",srd(SX,48,0,0x400000),srd(SW,50,0,1024*6144))
    def issue():
        o=[f"s_mul_i32 s{S_WO}, s58, {64*6144}",f"s_lshl_b32 s{S_XO}, s58, 7",f"s_add_u32 s{S_XO}, s{S_XO}, s43",f"s_add_u32 m0, s{S_SLOT}, s41","s_add_u32 s58, s59, 1"]
        o+=[f"s_add_u32 s54, s{S_SLOT}, s41",f"s_add_u32 s55, s{S_SLOT}, s42"]+[f"s_add_u32 s{78+p}, s{S_WO}, s{44+p}" for p in range(3)]
        for it in G.QORD:
            if it[0]=="x": u=int(it[1]); o+=["s_mov_b32 m0, s54","s_nop 0",f"buffer_load_dwordx4 v{8+u}, s[{SX}:{SX+3}], s{S_XO} offen offset:{1024*u}{G.QLP} lds"]
            else: p,h=int(it[0]),int(it[1]); o+=[f"s_add_u32 m0, s55, {8192*p}","s_nop 0",f"buffer_load_dwordx4 v{12+h}, s[{SW}:{SW+3}], s{78+p} offen offset:{1024*h}{G.QLP} lds"]
        o+=["s_and_b32 s58, s58, 15","s_cmp_eq_u32 s59, s47","s_cselect_b32 s58, s58, s59","s_add_u32 s59, s58, 1","s_and_b32 s59, s59, 15",f"s_add_u32 s{S_SLOT}, s{S_SLOT}, {STG}",f"s_cmp_ge_u32 s{S_SLOT}, {NS*STG}",f"s_cselect_b32 s{S_SLOT}, 0, s{S_SLOT}"]
        return o
    def rep(tag,n,code): k(f"s_mov_b32 s{S_CNT}, {n}"); k.label(tag); k(code,f"s_sub_u32 s{S_CNT}, s{S_CNT}, 1",f"s_cmp_lg_u32 s{S_CNT}, 0",f"s_cbranch_scc1 {k.lab(tag)}")
    P0=G.QP0
    rep("lpro",P0,issue())
    for j in range(NS-1-P0): k(f"s_waitcnt vmcnt({(P0-1+j)*LW})","s_barrier",issue(),issue())
    rep("lloop",S-(NS-1)-(NS-1-P0),[f"s_waitcnt vmcnt({(NS-2)*LW})","s_barrier",issue()])
    k(f"s_waitcnt vmcnt({2*LW})","s_barrier",srd(SF,52,0,256),"s_mov_b32 s43, 0")
    if G.STAMP: k("s_memtime s[70:71]")
    poll(k,"d",43,G.NCT,256//G.NCT,sh={2:7,4:6,8:5}[G.NCT])
    if G.STAMP: k("s_memtime s[72:73]")
    k(srd(SA,P_WS,0,0x200000),f"s_and_b32 s3, s{S_WAVE}, 1","s_lshl_b32 s3, s3, 6","v_add_u32 v20, s3, v0",f"s_add_u32 s44, s{S_NI}, {WS_CP>>14}",f"s_cmp_lt_u32 s{S_WAVE}, 2",f"s_cselect_b32 s43, s{S_MI}, s44","s_lshl_b32 s43, s43, 14","v_lshlrev_b32 v21, 3, v20")
    for p in range(16): k(f"buffer_load_dwordx2 {vr(24+2*p,2)}, v21, s[{SA}:{SA+3}], s43 offen sc1","s_add_u32 s43, s43, 1024")
    k("s_barrier","s_barrier","s_waitcnt vmcnt(0)")
    for p in range(1,16): k(f"v_pk_add_f32 v[24:25], v[24:25], {vr(24+2*p,2)}")
    k(f"s_cmp_lt_u32 s{S_WAVE}, 2",f"s_cbranch_scc1 {k.lab('rows2')}","ds_write_b64 v21, v[24:25] offset:1024",f"s_branch {k.lab('rc2')}")
    k.label("rows2"); rstd_from(k,24,25,26); k("v_lshlrev_b32 v21, 2, v20","ds_write_b32 v21, v24","ds_write_b32 v21, v26 offset:512")
    k.label("rc2")
    if G.STAMP:
        k("s_memtime s[74:75]","s_lshl_b32 s62, s2, 7",f"s_add_u32 s62, s62, {0x2f00000+65536+64+20}","s_waitcnt lgkmcnt(0)","v_mov_b32 v255, s62")
        for j,r in enumerate((68,70,72,74)): k(f"v_mov_b32 v254, s{r}",f"global_store_dword v255, v254, s[4:5] offset:{4*j}")
    k("s_waitcnt lgkmcnt(0)","s_barrier","s_barrier",f"s_branch {k.lab('end')}")
    k.label("cons")
    ACC=12; FR=ACC+96; FSZ=40; VX,VW,VX0,VW0=2,4,6,8
    k(f"s_lshr_b32 s{S_WM}, s{S_WAVE}, 1",f"s_and_b32 s{S_WN}, s{S_WAVE}, 1",
      "v_and_b32 v1, 15, v0","v_lshrrev_b32 v10, 4, v0","v_lshrrev_b32 v11, 1, v1","v_xor_b32 v11, v11, v10",f"v_lshlrev_b32 v{VX0}, 7, v1",f"v_lshl_add_u32 v{VX0}, v11, 4, v{VX0}",
      f"s_lshl_b32 s3, s{S_WM}, 13",f"v_add_u32 v{VX0}, s3, v{VX0}",f"v_xor_b32 v{VX0+1}, 64, v{VX0}",
      "v_bfe_u32 v11, v0, 3, 2",f"s_lshl_b32 s3, s{S_WN}, 1","v_xor_b32 v11, s3, v11",f"v_lshlrev_b32 v{VW0}, 5, v11",f"v_lshl_add_u32 v{VW0}, v10, 10, v{VW0}",
      "v_bfe_u32 v11, v0, 2, 2",f"v_lshl_add_u32 v{VW0}, v11, 7, v{VW0}","v_and_b32 v11, 3, v0",f"v_lshl_add_u32 v{VW0}, v11, 3, v{VW0}",f"v_add_u32 v{VW0}, 16384, v{VW0}",f"v_xor_b32 v{VW0+1}, 32, v{VW0}")
    for i in range(2): k(f"v_mov_b32 v{VX+i}, v{VX0+i}",f"v_mov_b32 v{VW+i}, v{VW0+i}")
    for i in range(96): k(f"v_mov_b32 v{ACC+i}, 0")
    k(f"s_mov_b32 s{S_SLOT}, 0",f"s_mov_b32 s{S_CNT}, {S}","s_waitcnt lgkmcnt(0)")
    fsrd(k); k("s_lshl_b32 s3, s2, 2",f"s_add_u32 s3, s3, s{S_WAVE}","s_lshl_b32 s3, s3, 10","v_lshlrev_b32 v11, 4, v0",f"buffer_store_dwordx4 {vr(ACC,4)}, v11, s[{SF}:{SF+3}], s3 offen sc1")
    stamp(k,1,True)
    ONE,T=190,196
    for i in range(4): k(f"v_mov_b32 v{ONE+i}, 0x3f803f80")
    k(srd(SA,P_WS,0,0x200000),srd(SB,52,0,256),f"s_lshl_b32 s3, s{S_WN}, 12",f"v_add_u32 v240, s3, v{VX0}",f"v_add_u32 v241, s3, v{VX0+1}",
      f"s_cmp_eq_u32 s{S_WM}, 0","s_cselect_b64 vcc, -1, 0",f"v_add_u32 v242, 8192, v{VW0+1}",f"v_add_u32 v243, 16384, v{VW0}",f"v_add_u32 v244, 16384, v{VW0+1}",f"v_add_u32 v245, 8192, v{VW0}",
      f"v_cndmask_b32 v242, v242, v{VW0}, vcc",f"v_cndmask_b32 v243, v243, v{VW0+1}, vcc","v_cndmask_b32 v244, v244, v245, vcc",
      f"s_lshl_b32 s41, s{S_MI}, 4","s_add_u32 s41, s41, s58","s_lshl_b32 s41, s41, 10",f"s_lshl_b32 s3, s{S_WAVE}, 8","s_add_u32 s41, s41, s3",
      f"s_lshl_b32 s42, s{S_NI}, 4","s_add_u32 s42, s42, s58","s_lshl_b32 s42, s42, 10",f"s_lshl_b32 s3, s{S_WN}, 9","s_add_u32 s42, s42, s3",f"s_lshl_b32 s3, s{S_WM}, 8","s_add_u32 s42, s42, s3",f"s_add_u32 s42, s42, {WS_CP}",
      "v_lshlrev_b32 v246, 3, v1","v_lshlrev_b32 v247, 4, v10","v_and_b32 v11, 3, v0","v_lshl_add_u32 v247, v11, 6, v247","v_cmp_eq_u32 s[54:55], 1, v11","v_cmp_eq_u32 s[56:57], 2, v11","v_cmp_eq_u32 s[60:61], 3, v11" if not G.STAMP else "v_cmp_eq_u32 s[76:77], 3, v11")
    M3="s[76:77]" if G.STAMP else "s[60:61]"
    k("s_barrier"); stamp(k,2)
    for kk in range(2):
        for t in range(2): k(f"ds_read_b128 {vr(FR+20*kk+4*t,4)}, v{240+kk} offset:{2048*t}")
        for t in range(3): k(f"ds_read_b64_tr_b16 {vr(FR+20*kk+8+4*t,2)}, v{242+t} offset:{4096*kk}",f"ds_read_b64_tr_b16 {vr(FR+20*kk+10+4*t,2)}, v{242+t} offset:{4096*kk+512}")
    for kk in range(2):
        k(f"s_waitcnt lgkmcnt({8-8*kk})")
        c=lambda d:(vr(d,4) if kk else "0")
        for t in range(2):
            x=vr(FR+20*kk+4*t,4)
            k(f"v_mfma_f32_16x16x32_bf16 {vr(T+8*t,4)}, {vr(ONE,4)}, {x}, {c(T+8*t)}",f"v_mfma_f32_16x16x32_bf16 {vr(T+8*t+4,4)}, {x}, {x}, {c(T+8*t+4)}")
        for t in range(3): k(f"v_mfma_f32_16x16x32_bf16 {vr(T+16+4*t,4)}, {vr(FR+20*kk+8+4*t,4)}, {vr(ONE,4)}, {c(T+16+4*t)}")
    def xf(b,tm): return FR+b*FSZ+4*tm
    def wf(b,tn): return FR+b*FSZ+16+4*tn
    def reads(b):
        X=[(f"ds_read_b128 {vr(xf(b,tm),4)}, v{VX+b} offset:{tm*2048}",xf(b,tm)) for tm in range(4)]
        W=[(f"ds_read_b64_tr_b16 {vr(wf(b,tn)+2*j,2)}, v{VW+tn%2} offset:{(tn//2)*8192+b*4096+j*512}",wf(b,tn)) for tn in range(6) for j in range(2)]
        return W[:2]+X+W[2:]
    q=[]
    for ins,d in reads(0): k(ins); q.append(d)
    for t in range(2):
        a=T+8*t
        k(f"v_cndmask_b32 v{a+1}, v{a+4}, v{a+5}, s[54:55]",f"v_cndmask_b32 v{a+1}, v{a+1}, v{a+6}, s[56:57]",f"v_cndmask_b32 v{a+1}, v{a+1}, v{a+7}, {M3}")
    for r in range(4): k(f"v_cndmask_b32 v{T+16+r}, v{T+16+r}, v{T+20+r}, s[54:55]",f"v_cndmask_b32 v{T+16+r}, v{T+16+r}, v{T+24+r}, s[56:57]")
    k("s_mov_b32 exec_lo, 0x00f0000f","s_mov_b32 exec_hi, 0xf0000f00")
    for t in range(2): k(f"buffer_store_dwordx2 {vr(T+8*t,2)}, v246, s[{SA}:{SA+3}], s41 offen offset:{128*t} sc1")
    k(f"buffer_store_dwordx4 {vr(T+16,4)}, v247, s[{SA}:{SA+3}], s42 offen sc1")
    k("s_mov_b64 exec, -1",".p2align 3"); k.label("cloop")
    k(f"s_sub_u32 s3, s{S_CNT}, {G.SGA}","s_cmp_lt_u32 s3, 4",f"s_cbranch_scc1 {k.lab('aux')}"); k.label("auxd")
    done=[0]
    def need(regs):
        idx=max([i for i,d in enumerate(q) if d in regs],default=-1)
        if idx>=done[0]:
            n=min(15,len(q)-1-idx); k(f"s_waitcnt lgkmcnt({n})"); done[0]=len(q)-n
    for hh in range(4):
        b=hh%2; RD=reads(1-b); p=0; j=0; first=G.BP if b else 0
        for tn in range(6):
            for tm in range(4):
                a=ACC+4*(tm*6+tn); x,w=xf(b,tm),wf(b,tn); A,B=(x,w) if tn>=4 else (w,x)
                need((x,w)); k(f"v_mfma_f32_16x16x32_bf16 {vr(a,4)}, {vr(A,4)}, {vr(B,4)}, {vr(a,4)}")
                if b and j==0: k(f"s_add_u32 s{S_SLOT}, s{S_SLOT}, {STG}",f"s_cmp_ge_u32 s{S_SLOT}, {NS*STG}",f"s_cselect_b32 s{S_SLOT}, 0, s{S_SLOT}",f"v_add_u32 v{VX}, s{S_SLOT}, v{VX0}",f"v_add_u32 v{VX+1}, s{S_SLOT}, v{VX0+1}")
                if b and j==first: k(f"v_add_u32 v{VW}, s{S_SLOT}, v{VW0}",f"v_add_u32 v{VW+1}, s{S_SLOT}, v{VW0+1}","s_waitcnt lgkmcnt(0)","s_barrier"); done[0]=len(q)
                if hh==3 and j==22: k(f"s_sub_u32 s{S_CNT}, s{S_CNT}, 2",f"s_cmp_lg_u32 s{S_CNT}, 0")
                if j>=first and p<len(RD): k(RD[p][0]); q.append(RD[p][1]); p+=1
                j+=1
        assert p==len(RD)
    k(f"s_cbranch_scc1 {k.lab('cloop')}","s_waitcnt lgkmcnt(0)"); stamp(k,3)
    L=k.L; k.L=k.ool; k.label("aux")
    k("s_waitcnt vmcnt(0)",f"s_cmp_eq_u32 s{S_CNT}, {G.SGA}",f"s_cbranch_scc0 {k.lab('auxd')}",f"s_cmp_eq_u32 s{S_WAVE}, 0",f"s_cbranch_scc0 {k.lab('auxd')}",
      "v_mov_b32 v240, 0","v_mov_b32 v241, 1",f"s_and_b32 s3, s2, {G.NCT-1}",f"s_mul_i32 s3, s3, {256//G.NCT}","s_mov_b64 exec, 1",f"buffer_atomic_add v241, v240, s[{SB}:{SB+3}], s3 offen sc1","s_mov_b64 exec, -1",f"s_branch {k.lab('auxd')}"); k.L=L
    CS,TK,VC,VT=FR,FR+16,FR+32,FR+36
    k(f"s_lshl_b32 s3, s{S_WN}, 9","v_lshl_add_u32 v2, v10, 4, s3","v_lshl_add_u32 v3, v1, 2, s3",f"s_lshl_b32 s3, s{S_WM}, 8","v_lshl_add_u32 v4, v1, 2, s3","v_lshl_add_u32 v5, v10, 4, s3")
    for tn in range(4): k(f"ds_read_b128 {vr(CS+4*tn,4)}, v2 offset:{1024+256*(tn//3)+64*(tn%3)}")
    for tm in range(4): k(f"ds_read_b32 v{TK+4*tm}, v4 offset:{64*tm}",f"ds_read_b32 v{TK+4*tm+2}, v4 offset:{512+64*tm}")
    k("s_waitcnt lgkmcnt(0)")
    for t in range(2): k(f"ds_read_b32 v{VC+2*t}, v3 offset:{1024+256+64+64*t}")
    for tm in range(4): k(f"ds_read_b128 {vr(VT+8*tm,4)}, v5 offset:{64*tm}",f"ds_read_b128 {vr(VT+8*tm+4,4)}, v5 offset:{512+64*tm}")
    k(srd(SO,P_WS,WS_QF,0x400000),srd(SA,P_WS,WS_KV,0x800000),f"s_lshl_b32 s{S_T}, s{S_MI}, 2",f"s_lshl_b32 s3, s{S_WM}, 1",f"s_add_u32 s{S_T}, s{S_T}, s3")
    for p in range(3): k(f"s_add_u32 s3, s{S_NI}, {PSH*p}","s_and_b32 s3, s3, 15","s_lshl_b32 s3, s3, 1",f"s_add_u32 s3, s3, s{S_WN}","s_lshl_b32 s3, s3, 6",f"s_add_u32 s3, s3, s{S_T}",f"s_lshl_b32 s{41+2*p}, s3, {12 if p else 11}",f"s_add_u32 s{42+2*p}, s{41+2*p}, {4096 if p else 2048}")
    k("v_lshlrev_b32 v2, 9, v10","v_lshl_add_u32 v2, v1, 4, v2","s_waitcnt lgkmcnt(0)","s_barrier")
    B="op_sel_hi:[1,0,1]"; d=FR+68; P=lambda r,i:vr(r+2*i,2)
    for tm in range(4):
        a=ACC+24*tm; m,r=vr(TK+4*tm,2),vr(TK+4*tm+2,2)
        for i in range(8): k(f"v_pk_fma_f32 {P(a,i)}, {P(CS,i)}, {m}, {P(a,i)} {B}")
        for i in range(4): k(f"v_pk_fma_f32 {P(a+16,i)}, {P(VT+8*tm,i%2)}, {vr(VC+2*(i//2),2)}, {P(a+16,i)} {B}")
        for i in range(4,8): k(f"v_pk_mul_f32 {P(a,i)}, {P(a,i)}, {r} op_sel_hi:[1,0]")
        k(f"v_mul_f32 v{TK+4*tm+2}, {f2u(math.log2(math.e)/math.sqrt(32))}, v{TK+4*tm+2}")
        for i in range(4): k(f"v_pk_mul_f32 {P(a+16,i)}, {P(a+16,i)}, {P(VT+8*tm+4,i%2)}")
        for i in range(4): k(f"v_pk_mul_f32 {P(a,i)}, {P(a,i)}, {r} op_sel_hi:[1,0]")
        pack(k,d,a+8,8); k(f"buffer_store_dwordx4 {vr(d,4)}, v2, s[{SA}:{SA+3}], s{43+tm//2} offen offset:{256*(tm%2)}{G.STF}"); d+=4
        if tm%2:
            for t in range(2):
                pack(k,d,a-24+16+4*t,4); pack(k,d+2,a+16+4*t,4)
                k(f"buffer_store_dwordx4 {vr(d,4)}, v2, s[{SA}:{SA+3}], s{45+tm//2} offen offset:{2048+256*t}{G.STF}"); d+=4
        pack(k,d,a,8); k(f"buffer_store_dwordx4 {vr(d,4)}, v2, s[{SO}:{SO+3}], s{41+tm//2} offen offset:{256*(tm%2)}{G.STF}"); d+=4
    k(f"s_lshl_b32 s43, s{S_NI}, 1",f"s_add_u32 s43, s43, s{S_WN}","s_lshl_b32 s43, s43, 5",f"s_lshl_b32 s3, s{S_MI}, 1","s_add_u32 s43, s43, s3",f"s_add_u32 s43, s43, s{S_WM}","s_lshl_b32 s92, s43, 7")
    stamp(k,4)
    k.label("end")
    return k
```

```python
from lib import *
from gemm import *
import gemm as G
def k_attn(km=None):
    mega=km is not None; P=G.LDP if mega else ''
    k=begin(km,"attn",163840)
    Q=8; NM=24; SB_=56; O=120; L=152; KF=160; VF=176; SEL=192; IDX=196; VC,VN,VL,VP=2,3,4,201
    S_HEAD,S_QT,S_KH,S_QG,S_NMAX,S_GO,S_M0,S_CUR,S_NXT=31,32,33,35,36,39,40,41,42
    k(
      f"s_load_dwordx2 s[6:7], s[0:1], {A_WO}",f"s_load_dwordx2 s[48:49], s[0:1], {A_W1}",f"s_load_dwordx2 s[50:51], s[0:1], {A_W2}",
      "s_and_b32 s3, s2, 7","s_lshr_b32 s37, s2, 3",
      f"s_lshl_b32 s{S_HEAD}, s3, 2","s_lshr_b32 s3, s37, 3",f"s_add_u32 s{S_HEAD}, s{S_HEAD}, s3",
      f"s_and_b32 s{S_QG}, s{S_WAVE}, 3",f"s_lshr_b32 s{S_KH}, s{S_WAVE}, 2",
      f"s_and_b32 s{S_QT}, s37, 7",f"s_lshl_b32 s{S_QT}, s{S_QT}, 2",f"s_add_u32 s{S_QT}, s{S_QT}, s{S_QG}",f"s_lshl_b32 s{S_QT}, s{S_QT}, 1",
      f"v_lshlrev_b32 v{VL}, 4, v0",
      f"v_and_b32 v{VP}, 0x23, v0","v_bfe_u32 v5, v0, 2, 1",f"v_lshl_or_b32 v{VP}, v5, 4, v{VP}","v_bfe_u32 v5, v0, 3, 2",f"v_lshl_or_b32 v{VP}, v5, 2, v{VP}",f"v_lshlrev_b32 v{VP}, 4, v{VP}",f"s_mov_b32 s{S_NMAX}, 1","s_waitcnt lgkmcnt(0)",
      srd(8,4,WS_QF,0x400000),srd(12,4,WS_KV,0x800000),srd(16,4,WS_OF,0x400000))
    stamp(k,1,True)
    k.label("retry")
    SJ_SRC,SJ_STEP,SJ_DST,SJ_DA,SJ_DB,SJ_DT,SJ_RS,SJ_LDS=70,71,72,73,74,75,76,77
    VS,VT1,VT2,WF,CSA,ONE=198,199,200,204,212,220
    k("s_cmp_lt_u32 s2, 112",f"s_cbranch_scc0 {k.lab('sj2')}",
      srd(20,48,0,1024*7168),srd(24,4,WS_W1,1024*7168),
      f"s_mul_i32 s37, s2, 2341","s_lshr_b32 s37, s37, 16","s_mul_i32 s43, s37, 28","s_sub_u32 s43, s2, s43","s_lshl_b32 s43, s43, 2",f"s_add_u32 s43, s43, s{S_QG}",
      f"s_mul_i32 s{SJ_SRC}, s37, {256*7168}","s_lshl_b32 s44, s43, 6",f"s_add_u32 s{SJ_SRC}, s{SJ_SRC}, s44",f"s_mov_b32 s{SJ_STEP}, {32*7168}",f"s_mov_b32 s{SJ_RS}, 7168",
      f"s_mul_i32 s78, s37, {3584*4}","s_lshl_b32 s44, s43, 7","s_add_u32 s78, s78, s44",
      "s_mul_i32 s44, s43, 9363","s_lshr_b32 s44, s44, 16","s_mul_i32 s45, s44, 7","s_sub_u32 s45, s43, s45",
      f"s_mul_i32 s{SJ_DST}, s44, {16*28672}",f"s_mul_i32 s44, s37, {4*28672}",f"s_add_u32 s{SJ_DST}, s{SJ_DST}, s44",
      "s_lshl_b32 s44, s45, 1","s_cmp_gt_u32 s45, 3","s_cselect_b32 s46, 1, 0","s_sub_u32 s44, s44, s46","s_lshl_b32 s44, s44, 11",f"s_add_u32 s{SJ_DST}, s{SJ_DST}, s44",
      "s_cmp_eq_u32 s45, 3",f"s_cselect_b32 s{SJ_DT}, 7, 1","s_cselect_b32 s47, 1, 0",f"s_lshl_b32 s{SJ_DT}, s{SJ_DT}, 11",f"s_mov_b32 s{SJ_DA}, 1024",f"s_mov_b32 s{SJ_DB}, {28672-1024}","s_mov_b32 s44, 0",f"s_branch {k.lab('sjd')}")
    k.label("sj2")
    k("s_cmp_lt_u32 s2, 224",f"s_cbranch_scc0 {k.lab('sj3')}",srd(20,50,0,3584*2048),srd(24,4,WS_W2,3584*2048),"s_sub_u32 s37, s2, 112",f"s_mov_b32 s45, {56*8192}",f"s_branch {k.lab('sj4')}")
    k.label("sj3")
    k(srd(20,6,0,1024*2048),srd(24,4,WS_WO,1024*2048),"s_sub_u32 s37, s2, 224",f"s_mov_b32 s45, {16*8192}")
    k.label("sj4"); k("s_mov_b32 s44, 0")
    k(f"s_lshl_b32 s{SJ_SRC}, s37, 16",f"s_lshl_b32 s43, s{S_QG}, 9",f"s_add_u32 s{SJ_SRC}, s{SJ_SRC}, s43",f"s_mov_b32 s{SJ_STEP}, 64",f"s_mov_b32 s{SJ_RS}, 2048",
      f"s_lshl_b32 s43, s{S_QG}, 2",f"s_mul_i32 s{SJ_DST}, s43, s45","s_lshr_b32 s43, s37, 1","s_lshl_b32 s43, s43, 13",f"s_add_u32 s{SJ_DST}, s{SJ_DST}, s43",
      "s_and_b32 s43, s37, 1","s_lshl_b32 s43, s43, 10",f"s_add_u32 s{SJ_DST}, s{SJ_DST}, s43",f"s_mov_b32 s{SJ_DT}, 2048",f"s_mov_b32 s{SJ_DA}, 4096",f"s_sub_u32 s{SJ_DB}, s45, 4096","s_mov_b32 s78, 0","s_mov_b32 s47, 0")
    k.label("sjd")
    relayout_addr(k,VS,VT1,SJ_RS,None,None)
    k(f"s_lshl_b32 s{SJ_LDS}, s{S_QG}, 14",f"s_add_u32 s{SJ_LDS}, s{SJ_LDS}, 98304","s_lshr_b32 s45, 512, s44","s_lshl_b32 s46, 256, s44",
      "v_lshrrev_b32 v7, 5, v0",f"v_lshl_add_u32 v{VT1}, v7, 10, v{VT1}","v_bfe_u32 v7, v0, 4, 1","v_mul_lo_u32 v7, s45, v7",f"v_add3_u32 v{VT1}, v{VT1}, v7, s{SJ_LDS}","v_and_b32 v7, 3, v0","v_lshlrev_b32 v7, 3, v7","v_mul_lo_u32 v7, s47, v7",f"v_sub_u32 v{VT1}, v{VT1}, v7",f"v_add_u32 v{VT2}, s46, v{VT1}",
      "s_lshl_b32 s85, s47, 1","s_lshl_b32 s85, 8, s85",f"v_add_u32 v{VT1+3}, s85, v{VT1}",f"v_add_u32 v{VT2+3}, s85, v{VT2}",
      f"s_lshl_b32 s{SJ_RS}, s{SJ_RS}, 4",srd(80,4,WS_CS,4*3584*4))
    for i in range(8): k(f"v_mov_b32 v{CSA+i}, 0")
    for i in range(4): k(f"v_mov_b32 v{ONE+i}, 0x3f803f80")
    def sj_rd(off):
        o=[]
        for t in range(2): o+=[f"ds_read_b64_tr_b16 {vr(WF+4*t,2)}, v{VT1+3*t} offset:{off}",f"ds_read_b64_tr_b16 {vr(WF+4*t+2,2)}, v{VT2+3*t} offset:{off}"]
        return o
    def sj_st(adv):
        o=[f"s_add_u32 s37, s{SJ_DST}, s{SJ_DT}",f"buffer_store_dwordx4 {vr(WF,4)}, v{VL}, s[24:27], s{SJ_DST} offen{G.STW}",f"buffer_store_dwordx4 {vr(WF+4,4)}, v{VL}, s[24:27], s37 offen{G.STW}"]
        for t in range(2): o+=[f"v_mfma_f32_16x16x32_bf16 {vr(CSA+4*t,4)}, {vr(WF+4*t,4)}, {vr(ONE,4)}, {vr(CSA+4*t,4)}"]
        o+=[f"s_add_u32 s{SJ_DST}, s{SJ_DST}, s{SJ_DA}",f"s_mov_b32 s37, s{SJ_DA}",f"s_mov_b32 s{SJ_DA}, s{SJ_DB}",f"s_mov_b32 s{SJ_DB}, s37"]
        if adv: o+=[f"v_add_u32 v{r}, 4096, v{r}" for r in (VT1,VT2,VT1+3,VT2+3)]
        return o
    def sj_load():
        return [f"s_mov_b32 m0, s{SJ_LDS}",f"s_add_u32 s37, s{SJ_SRC}, s{SJ_RS}",f"buffer_load_dwordx4 v{VS}, s[20:23], s{SJ_SRC} offen{G.SJP} lds",f"s_add_u32 m0, s{SJ_LDS}, 1024",
                f"s_add_u32 s{SJ_SRC}, s{SJ_SRC}, s{SJ_STEP}",f"buffer_load_dwordx4 v{VS}, s[20:23], s37 offen{G.SJP} lds",f"s_add_u32 s{SJ_LDS}, s{SJ_LDS}, 2048"]
    S_MODE,S_MT=79,84
    def site(n,mode,code):
        l=k.lab(f"h{n}_{mode}")
        return [f"s_cmp_eq_u32 s{S_MODE}, {mode}",f"s_cbranch_scc0 {l}"]+code+[l+":"]
    k(f"v_mov_b32 v{IDX}, 0xdddddddd","v_bfe_u32 v5, v0, 2, 1","v_cmp_eq_u32 vcc, 0, v5","v_mov_b32 v6, 0x3f803f80","s_nop 0",
      f"v_cndmask_b32 v{SEL}, 0, v6, vcc",f"v_cndmask_b32 v{SEL+1}, 0, v6, vcc",f"v_sub_u32 v{SEL+2}, v6, v{SEL}",f"v_sub_u32 v{SEL+3}, v6, v{SEL}",
      f"s_lshl_b32 s37, s{S_KH}, 14",f"v_add_u32 v5, s37, v{VP}",f"v_mov_b32 v{VC}, v5",f"v_add_u32 v{VN}, 32768, v5",f"s_mov_b32 s{S_CUR}, 0",
      "v_mov_b32 v6, 0xff800000","v_mov_b32 v7, 0xff800000")
    for i in range(40): k(f"v_mov_b32 v{O+i}, 0")
    for i in range(16): k(f"v_mov_b32 v{SB_+48+i}, 0")
    for i in range(16): k(f"v_mov_b32 v{VF+i}, 0")
    k(f"s_cmp_lg_u32 s{S_NMAX}, 1",f"s_cbranch_scc1 {k.lab('go')}")
    fsrd(k)
    k(f"s_cmp_lt_u32 s{S_WAVE}, 4",f"s_cbranch_scc0 {k.lab('ns')}"); signal(k,92); k(f"s_branch {k.lab('pdx')}"); k.label("ns")
    if G.TLB:
        k(f"s_cmp_lg_u32 s{S_WAVE}, 6",f"s_cbranch_scc1 {k.lab('nt')}",f"s_load_dwordx2 s[60:61], s[0:1], {A_OUT}",srd(56,4,0x1000000,0x3500000),f"v_lshlrev_b32 v240, {G.TLB}, v0")
        for j in range(1<<(20-G.TLB)): k(f"s_mov_b32 s43, {j<<(6+G.TLB)}","buffer_load_dword v241, v240, s[56:59], s43 offen sc1")
        k("s_waitcnt lgkmcnt(0)",srd(56,60,0,0x400000),"v_lshlrev_b32 v240, 16, v0","buffer_load_dword v241, v240, s[56:59], 0 offen sc1","s_waitcnt vmcnt(0)"); k.label("nt")
    k(f"s_cmp_lg_u32 s{S_WAVE}, 4",f"s_cbranch_scc1 {k.lab('pdx')}",f"s_lshl_b32 s43, s{S_HEAD}, 12")
    poll(k,"x",43,32,1)
    k("s_barrier"); k.label("go")
    k(f"s_lshl_b32 s37, s{S_HEAD}, 6",f"s_add_u32 s37, s37, s{S_QT}","s_lshl_b32 s37, s37, 11")
    for j in range(4): k(f"buffer_load_dwordx4 {vr(Q+4*j,4)}, v{VL}, s[8:11], s37 offen offset:{1024*j}{P}")
    k(f"s_lshl_b32 s38, s{S_HEAD}, 18")
    for j in range(2): k(f"buffer_load_dwordx4 {vr(KF+4*j,4)}, v{VL}, s[12:15], s38 offen offset:{1024*j}{P}")
    k(f"s_lshl_b32 s{S_GO}, s{S_KH}, 5",f"s_add_u32 s{S_GO}, s{S_GO}, s{S_QG}",f"s_lshl_b32 s{S_GO}, s{S_GO}, 12",f"s_add_u32 s{S_GO}, s{S_GO}, s38",
      f"s_lshl_b32 s{S_M0}, s{S_WAVE}, 12")
    def dma():
        return [f"buffer_load_dwordx4 v{VL}, s[12:15], s{S_GO} offen offset:{1024*j}{P} lds" for j in range(4)]+[f"s_add_u32 s{S_GO}, s{S_GO}, 16384"]
    k(f"s_mov_b32 m0, s{S_M0}","s_nop 0",dma(),f"s_add_u32 m0, s{S_M0}, 32768","s_nop 0",dma())
    k(f"s_mov_b32 s{S_CNT}, s{S_NMAX}","s_waitcnt vmcnt(8)")
    k.label("mx")
    for u in range(2):
        k(f"v_mfma_f32_32x32x16_bf16 {vr(SB_+16*u,16)}, {vr(KF,4)}, {vr(Q+8*u,4)}, 0",f"v_mfma_f32_32x32x16_bf16 {vr(SB_+16*u,16)}, {vr(KF+4,4)}, {vr(Q+8*u+4,4)}, {vr(SB_+16*u,16)}")
    k("s_nop 15")
    for u in range(2):
        for i in range(8): k(f"v_max3_f32 v{6+u}, v{SB_+16*u+2*i}, v{SB_+16*u+2*i+1}, v{6+u}")
    k(f"s_sub_u32 s{S_CNT}, s{S_CNT}, 1",f"s_cmp_eq_u32 s{S_CNT}, 0",f"s_cbranch_scc1 {k.lab('mxd')}","s_add_u32 s38, s38, 4096")
    for j in range(2): k(f"buffer_load_dwordx4 {vr(KF+4*j,4)}, v{VL}, s[12:15], s38 offen offset:{1024*j}{P}")
    k("s_waitcnt vmcnt(0)",f"s_branch {k.lab('mx')}")
    k.label("mxd")
    k(f"v_mov_b32 v{NM}, v6",f"v_mov_b32 v{NM+16}, v7","s_nop 1",f"v_permlane32_swap_b32 v6, v{NM}",f"v_permlane32_swap_b32 v7, v{NM+16}","s_nop 1",
      f"v_max_f32 v6, v6, v{NM}",f"v_max_f32 v7, v7, v{NM+16}")
    for u in range(2):
        for i in range(16): k(f"v_sub_f32 v{NM+16*u+i}, 0, v{6+u}")
    k(f"s_cmp_eq_u32 s{S_KH}, 0",f"s_cbranch_scc1 {k.lab('w4')}","s_waitcnt vmcnt(0)"); k.label("w4")
    k("s_waitcnt vmcnt(4)","s_barrier"); stamp(k,2)
    def rdK(t):
        a,o=(VC,t*4096) if t<4 else (VN,(t-4)*4096)
        return [f"ds_read_b128 {vr(KF+8*(t%2)+4*j,4)}, v{a} offset:{o+1024*j}" for j in range(2)]
    def rdV(t): return [f"ds_read_b128 {vr(VF+8*(t%2)+4*j,4)}, v{VC} offset:{t*4096+2048+1024*j}" for j in range(2)]
    def qk(n):
        t,u=n//2,n%2; b=SB_+16*(n%4); kf=KF+8*(t%2)
        return [f"v_mfma_f32_32x32x16_bf16 {vr(b,16)}, {vr(kf,4)}, {vr(Q+8*u,4)}, {vr(NM+16*u,16)}",
                f"v_mfma_f32_32x32x16_bf16 {vr(b,16)}, {vr(kf+4,4)}, {vr(Q+8*u+4,4)}, {vr(b,16)}"]
    def pv(n):
        t,u=n//2,n%2; b=SB_+16*(n%4); vf=VF+8*(t%2)
        return [f"v_smfmac_f32_32x32x32_bf16 {vr(O+16*u,16)}, {vr(vf+4*j,4)}, {vr(b+8*j,8)}, v{IDX}" for j in range(2)]
    def sm(n):
        u=n%2; b=SB_+16*(n%4)
        return [f"v_smfmac_f32_16x16x64_bf16 {vr(L+4*u,4)}, {vr(SEL,4)}, {vr(b+8*j,8)}, v{IDX}" for j in range(2)]
    k(rdK(0),rdK(1),"s_waitcnt lgkmcnt(2)",qk(0),qk(1),f"s_mov_b32 s{S_CNT}, 0","s_nop 7","s_nop 1")
    k(f"s_mov_b32 s{S_MT}, 0x00111111",f"s_cmp_eq_u32 s{S_KH}, 0",f"s_cbranch_scc1 {k.lab('mt')}",f"s_mov_b32 s{S_MT}, 0x33332222"); k.label("mt")
    if G.APRIO: k(f"s_cmp_eq_u32 s{S_KH}, {G.APRIO-1}",f"s_cbranch_scc0 {k.lab('np')}","s_setprio 1"); k.label("np")
    k(".p2align 3"); k.label("loop")
    for n in range(8):
        b=SB_+16*(n%4); e=[f"v_exp_f32 v{b+i}, v{b+i}" for i in range(16)]
        a,p,s=qk(n+2),pv(n-1),sm(n-1)
        rd=rdV(n//2) if n%2==0 else rdK(n//2+2)
        hk=[]
        if n==0: k(f"s_and_b32 s{S_MODE}, s{S_MT}, 15",f"s_lshr_b32 s{S_MT}, s{S_MT}, 4")
        if n==4 and not G.XNB:
            l=k.lab("nw")
            k(f"s_cmp_ge_u32 s{S_MODE}, 2",f"s_cbranch_scc1 {l}","s_waitcnt vmcnt(0)",l+":","s_barrier")
        if n in (4,5) and not G.XND:
            if n==4: pre=[f"s_add_u32 s37, s{S_CUR}, 65536","s_sub_u32 s38, s37, 98304","s_cmp_ge_u32 s37, 98304","s_cselect_b32 s37, s38, s37",f"s_add_u32 m0, s37, s{S_M0}","s_nop 0"]
            if n==5: pre=["s_add_u32 m0, m0, 16384",f"s_add_u32 s{S_GO}, s{S_GO}, 131072"]
            ld=[f"buffer_load_dwordx4 v{VL}, s[12:15], s{S_GO} offen offset:{1024*j}{P} lds" for j in range(4)]
            rd[0]=[rd[0]]+site(n+10,1,pre+ld[:2])
            hk+=site(n,1,ld[2:]+([f"s_sub_u32 s{S_GO}, s{S_GO}, {131072-16384}"] if n==5 else []))
        if G.SJ:
            if n in G.SJL and G.SJ&1: hk+=site(n,2,sj_load())
            if n%4==0: hk+=site(n,3,(["s_waitcnt vmcnt(12)"] if n==0 else [])+sj_rd(2048*(n//4)))
            if n%4==2 and G.SJ&2: hk+=site(n,3,sj_st(n==6))
        rd=[rd[0],[rd[1]]+hk]
        if G.XNR: rd=[[],[]]
        W="s_waitcnt lgkmcnt(0)"
        if G.AORD==0: k(e[0:2],W,a[0],rd,e[2:5],p[0],e[5:7],s[0],e[7:10],a[1],e[10:12],p[1],e[12:15],s[1],e[15])
        if G.AORD==1: k(e[0:2],W,a[0],rd,e[2:5],p[0],e[5:8],s[0],e[8:9],a[1],e[9:12],p[1],e[12:15],s[1],e[15])
        if G.AORD==2: k(W,a[0],e[0:3],a[1],rd,e[3:6],p[0],e[6:9],s[0],e[9:11],p[1],e[11:14],s[1],e[14:16])
        if G.AORD==3: k(W,s[0],a[0],rd[0],e[0:4],p[0],e[4:8],s[1],a[1],rd[1],e[8:12],p[1],e[12:16])
        if G.AORD==4: k(W,a[0],e[0:4],p[0],rd[0],e[4:7],s[0],e[7:8],a[1],e[8:12],p[1],rd[1],e[12:15],s[1],e[15:16])
    k(f"s_add_u32 s{S_CUR}, s{S_CUR}, 32768",f"s_cmp_ge_u32 s{S_CUR}, 98304",f"s_cselect_b32 s{S_CUR}, 0, s{S_CUR}",
      f"s_add_u32 s37, s{S_CUR}, 32768","s_cmp_ge_u32 s37, 98304","s_cselect_b32 s37, 0, s37",
      f"v_mov_b32 v{VC}, v{VN}",f"v_add_u32 v{VN}, s37, v5",
      f"s_add_u32 s{S_CNT}, s{S_CNT}, 1",f"s_cmp_lt_u32 s{S_CNT}, 8",f"s_cbranch_scc1 {k.lab('loop')}")
    k(pv(7),sm(7),"s_waitcnt lgkmcnt(0)","s_barrier"); stamp(k,3)
    k("s_cmp_lt_u32 s2, 112",f"s_cbranch_scc0 {k.lab('nocs')}",f"s_cmp_eq_u32 s{S_KH}, 1",f"s_cbranch_scc0 {k.lab('nocs')}","v_lshrrev_b32 v7, 4, v0","s_sub_u32 s37, 5, s47","v_lshlrev_b32 v7, s37, v7","s_lshl_b32 s85, s85, 1","v_and_b32 v6, 1, v0","v_cmp_eq_u32 vcc, 1, v6","v_mul_lo_u32 v6, s85, v6","v_add_u32 v7, v6, v7",
      [f"v_cndmask_b32 v{WF+r}, v{CSA+r}, v{CSA+4+r}, vcc" for r in range(4)],"s_mov_b32 exec_lo, 0x30003","s_mov_b32 exec_hi, 0x30003",
      f"buffer_store_dwordx4 {vr(WF,4)}, v7, s[80:83], s78 offen sc1","s_mov_b64 exec, -1")
    k.label("nocs")
    k(f"s_mul_i32 s37, s{S_WAVE}, 5120",f"s_xor_b32 s38, s{S_WAVE}, 4","s_mul_i32 s38, s38, 5120",f"v_add_u32 v6, s37, v{VL}",f"v_add_u32 v7, s38, v{VL}","s_nop 7",
      f"s_cmp_eq_u32 s{S_KH}, 0",f"s_cbranch_scc1 {k.lab('kh0')}")
    for j in range(4): k(f"ds_write_b128 v6, {vr(O+4*j,4)} offset:{1024*j}")
    k(f"ds_write_b128 v6, {vr(L,4)} offset:4096")
    k("s_nop 1")
    for i in range(16): k(f"v_mov_b32 v{O+i}, v{O+16+i}")
    k(f"v_mov_b32 v{L}, v{L+4}",f"s_branch {k.lab('khd')}")
    k.label("kh0")
    for j in range(4): k(f"ds_write_b128 v6, {vr(O+16+4*j,4)} offset:{1024*j}")
    k(f"ds_write_b128 v6, {vr(L+4,4)} offset:4096")
    k.label("khd")
    k("v_mov_b32 v1, 0","v_mov_b32 v197, 163776","ds_write_b32 v197, v1","s_waitcnt lgkmcnt(0)","s_barrier")
    for j in range(4): k(f"ds_read_b128 {vr(SB_+4*j,4)}, v7 offset:{1024*j}")
    k(f"ds_read_b128 {vr(SB_+16,4)}, v7 offset:4096","s_waitcnt lgkmcnt(0)",f"v_add_f32 v{L}, v{L}, v{SB_+16}",f"v_rcp_f32 v{L+2}, v{L}")
    for i in range(8): k(f"v_pk_add_f32 {vr(O+2*i,2)}, {vr(O+2*i,2)}, {vr(SB_+2*i,2)}")
    k(f"v_mov_b32 v{L+3}, v{L+2}")
    for i in range(8): k(f"v_pk_mul_f32 {vr(O+2*i,2)}, {vr(O+2*i,2)}, {vr(L+2,2)}")
    pack(k,SB_,O)
    k(f"s_add_u32 s37, s{S_QT}, s{S_KH}","s_lshr_b32 s38, s37, 2","s_lshl_b32 s38, s38, 18","s_and_b32 s37, s37, 3","s_lshl_b32 s37, s37, 12","s_add_u32 s37, s37, s38",
      f"s_lshr_b32 s38, s{S_HEAD}, 1","s_lshl_b32 s38, s38, 14","s_add_u32 s37, s37, s38",f"s_and_b32 s38, s{S_HEAD}, 1","s_lshl_b32 s38, s38, 10","s_add_u32 s37, s37, s38",
      "v_and_b32 v6, 15, v0","v_lshlrev_b32 v6, 4, v6","v_bfe_u32 v7, v0, 4, 1","v_lshl_add_u32 v6, v7, 11, v6","v_lshrrev_b32 v7, 5, v0","v_lshl_add_u32 v6, v7, 9, v6")
    for j in range(2): k(f"buffer_store_dwordx4 {vr(SB_+4*j,4)}, v6, s[16:19], s37 offen offset:{256*j}{G.STF}")
    k(f"s_cmp_lg_u32 s{S_NMAX}, 1",f"s_cbranch_scc1 {k.lab('ok')}")
    for i in range(16): k(f"v_fma_f32 v{L}, v{O+i}, 0, v{L}")
    k(f"v_mov_b32 v7, {f2u(2.0**60)}",f"v_cmp_nlt_f32 vcc, v{L}, v7","s_nop 4","s_cmp_eq_u64 vcc, 0",f"s_cbranch_scc1 {k.lab('ok')}",
      "v_mov_b32 v1, 1","ds_write_b32 v197, v1")
    k.label("ok")
    k("s_waitcnt vmcnt(0) lgkmcnt(0)","s_barrier","ds_read_b32 v1, v197","s_waitcnt lgkmcnt(0)","v_readfirstlane_b32 s37, v1","s_nop 3","s_cmp_eq_u32 s37, 0",f"s_cbranch_scc1 {k.lab('store')}",
      f"s_mov_b32 s{S_NMAX}, 64","s_barrier",f"s_branch {k.lab('retry')}")
    k.label("store")
    if mega:
        k("s_setprio 0",f"s_add_u32 s43, s{S_QT}, s{S_KH}","s_lshl_b32 s43, s43, 5",f"s_add_u32 s43, s43, s{S_HEAD}","s_lshl_b32 s43, s43, 7",f"s_add_u32 s43, s43, {F2}"); signal(k,43)
        k(f"s_cmp_eq_u32 s{S_WAVE}, 0",f"s_cbranch_scc0 {k.lab('nsj')}","s_lshl_b32 s43, s2, 2",f"s_add_u32 s43, s43, {F5}","s_lshl_b32 s44, s2, 7",f"s_add_u32 s44, s44, {F6-224*128}","s_cmp_lt_u32 s2, 224","s_cselect_b32 s43, s43, s44",
          "s_mov_b64 exec, 1",f"buffer_store_dword v241, v240, s[{SF}:{SF+3}], s43 offen sc1","s_mov_b64 exec, -1")
        k.label("nsj")
    if G.STAMP and not mega: k("s_waitcnt vmcnt(0)")
    stamp(k,4)
    return k if mega else finish(k)
```

```python
from lib import *
import gemm as G
from gemm import *
from kern import rstd_from
import math
WS_RP=0x0; WS_CP=0x100000
def k_qkvd(km):
    k=begin(km,"qkv",163840); NS=4; STG=40960; LW=10; S=16; PSH=G.PSH
    k(f"s_load_dwordx4 s[48:51], s[0:1], {A_X}",f"s_load_dwordx2 s[52:53], s[0:1], {A_DBG}",f"s_load_dwordx8 s[80:87], s[0:1], {A_W1}",f"s_load_dwordx2 s[62:63], s[0:1], {A_WO}",f"s_load_dwordx2 s[78:79], s[0:1], {A_OUT}",f"s_and_b32 s{S_T}, s2, 7",f"s_lshr_b32 s{S_T2}, s2, 3")
    wgmap(k,"8x4")
    if G.LAT: k(f"s_and_b32 s58, s{S_MI}, 7","s_lshl_b32 s58, s58, 1",f"s_lshr_b32 s3, s{S_MI}, 3","s_add_u32 s58, s58, s3")
    else: k(f"s_mov_b32 s58, s{S_MI}")
    k(f"s_add_u32 s58, s58, s{S_NI}","s_and_b32 s58, s58, 15",
      f"s_cmp_lt_u32 s{S_WAVE}, 4",f"s_cbranch_scc1 {k.lab('cons')}")
    k(f"s_sub_u32 s{S_WAVE}, s{S_WAVE}, 4","v_lshrrev_b32 v3, 3, v0","v_and_b32 v4, 7, v0","v_lshrrev_b32 v5, 1, v3","v_xor_b32 v6, v4, v5","v_lshlrev_b32 v7, 11, v3")
    for u in range(4): k(f"v_xor_b32 v1, {4*(u%2)}, v6",f"v_lshl_add_u32 v{8+u}, v1, 4, v7",f"v_add_u32 v{8+u}, {u*(16384-1024)}, v{8+u}")
    k("v_and_b32 v5, 2, v3","v_xor_b32 v6, v4, v5","v_mul_u32_u24 v7, 6144, v3","v_lshl_add_u32 v12, v6, 4, v7","v_xor_b32 v6, 4, v6","v_lshl_add_u32 v13, v6, 4, v7",f"v_add_u32 v13, {8*6144-1024}, v13",
      f"s_lshl_b32 s41, s{S_WAVE}, 12",f"s_lshl_b32 s42, s{S_WAVE}, 11","s_add_u32 s42, s42, 16384",
      f"s_lshl_b32 s43, s{S_MI}, 2",f"s_add_u32 s43, s43, s{S_WAVE}","s_lshl_b32 s43, s43, 16",f"s_mul_i32 s3, s{S_WAVE}, {16*6144}")
    for p in range(3): k(f"s_add_u32 s{44+p}, s{S_NI}, {PSH*p}",f"s_and_b32 s{44+p}, s{44+p}, 15",f"s_lshl_b32 s{44+p}, s{44+p}, 7",f"s_add_u32 s{44+p}, s{44+p}, s3",f"s_add_u32 s{44+p}, s{44+p}, {2048*p}")
    k("s_mov_b32 s47, s58","s_and_b32 s59, s2, 7",f"s_mul_i32 s59, s59, {G.XOF}",f"s_and_b32 s3, s{S_MI}, {G.SKM}",f"s_mul_i32 s3, s3, {G.SK}","s_add_u32 s59, s59, s3","s_and_b32 s59, s59, 15")
    if G.SK<0: k("s_mov_b32 s59, s58")
    k(f"s_mov_b32 s{S_SLOT}, 0","s_waitcnt lgkmcnt(0)",srd(SX,48,0,0x400000),srd(SW,50,0,1024*6144))
    def issue():
        o=[f"s_mul_i32 s{S_WO}, s58, {64*6144}",f"s_lshl_b32 s{S_XO}, s58, 7",f"s_add_u32 s{S_XO}, s{S_XO}, s43",f"s_add_u32 m0, s{S_SLOT}, s41","s_add_u32 s58, s59, 1"]
        o+=[f"s_add_u32 s54, s{S_SLOT}, s41",f"s_add_u32 s55, s{S_SLOT}, s42"]+[f"s_add_u32 s{78+p}, s{S_WO}, s{44+p}" for p in range(3)]
        for it in G.QORD:
            if it[0]=="x": u=int(it[1]); o+=["s_mov_b32 m0, s54","s_nop 0",f"buffer_load_dwordx4 v{8+u}, s[{SX}:{SX+3}], s{S_XO} offen offset:{1024*u}{G.QLP} lds"]
            else: p,h=int(it[0]),int(it[1]); o+=[f"s_add_u32 m0, s55, {8192*p}","s_nop 0",f"buffer_load_dwordx4 v{12+h}, s[{SW}:{SW+3}], s{78+p} offen offset:{1024*h}{G.QLP} lds"]
        o+=["s_and_b32 s58, s58, 15","s_cmp_eq_u32 s59, s47","s_cselect_b32 s58, s58, s59","s_add_u32 s59, s58, 1","s_and_b32 s59, s59, 15",f"s_add_u32 s{S_SLOT}, s{S_SLOT}, {STG}",f"s_cmp_ge_u32 s{S_SLOT}, {NS*STG}",f"s_cselect_b32 s{S_SLOT}, 0, s{S_SLOT}"]
        return o
    def rep(tag,n,code): k(f"s_mov_b32 s{S_CNT}, {n}"); k.label(tag); k(code,f"s_sub_u32 s{S_CNT}, s{S_CNT}, 1",f"s_cmp_lg_u32 s{S_CNT}, 0",f"s_cbranch_scc1 {k.lab(tag)}")
    P0=G.QP0
    rep("lpro",P0,issue())
    for j in range(NS-1-P0): k(f"s_waitcnt vmcnt({(P0-1+j)*LW})","s_barrier",issue(),issue())
    rep("lloop",S-(NS-1)-(NS-1-P0),[f"s_waitcnt vmcnt({(NS-2)*LW})","s_barrier",issue()])
    k(f"s_waitcnt vmcnt({2*LW})","s_barrier",srd(SF,52,0,256),"s_mov_b32 s43, 0")
    if G.STAMP: k("s_memtime s[70:71]")
    poll(k,"d",43,G.NCT,256//G.NCT,sh={2:7,4:6,8:5}[G.NCT])
    if G.STAMP: k("s_memtime s[72:73]")
    k(srd(SA,P_WS,0,0x200000),f"s_and_b32 s3, s{S_WAVE}, 1","s_lshl_b32 s3, s3, 6","v_add_u32 v20, s3, v0",f"s_add_u32 s44, s{S_NI}, {WS_CP>>14}",f"s_cmp_lt_u32 s{S_WAVE}, 2",f"s_cselect_b32 s43, s{S_MI}, s44","s_lshl_b32 s43, s43, 14","v_lshlrev_b32 v21, 3, v20")
    for p in range(16): k(f"buffer_load_dwordx2 {vr(24+2*p,2)}, v21, s[{SA}:{SA+3}], s43 offen sc1","s_add_u32 s43, s43, 1024")
    k("s_barrier","s_barrier","s_waitcnt vmcnt(0)")
    for p in range(1,16): k(f"v_pk_add_f32 v[24:25], v[24:25], {vr(24+2*p,2)}")
    k(f"s_cmp_lt_u32 s{S_WAVE}, 2",f"s_cbranch_scc1 {k.lab('rows2')}","ds_write_b64 v21, v[24:25] offset:1024",f"s_branch {k.lab('rc2')}")
    k.label("rows2"); rstd_from(k,24,25,26); k("v_lshlrev_b32 v21, 2, v20","ds_write_b32 v21, v24","ds_write_b32 v21, v26 offset:512")
    k.label("rc2")
    if G.STAMP:
        k("s_memtime s[74:75]","s_lshl_b32 s62, s2, 7",f"s_add_u32 s62, s62, {0x2f00000+65536+64+20}","s_waitcnt lgkmcnt(0)","v_mov_b32 v255, s62")
        for j,r in enumerate((68,70,72,74)): k(f"v_mov_b32 v254, s{r}",f"global_store_dword v255, v254, s[4:5] offset:{4*j}")
    k("s_waitcnt lgkmcnt(0)","s_barrier","s_barrier",f"s_branch {k.lab('end')}")
    k.label("cons")
    ACC=12; FR=ACC+96; FSZ=40; VX,VW,VX0,VW0=2,4,6,8
    k(f"s_lshr_b32 s{S_WM}, s{S_WAVE}, 1",f"s_and_b32 s{S_WN}, s{S_WAVE}, 1",
      "v_and_b32 v1, 15, v0","v_lshrrev_b32 v10, 4, v0","v_lshrrev_b32 v11, 1, v1","v_xor_b32 v11, v11, v10",f"v_lshlrev_b32 v{VX0}, 7, v1",f"v_lshl_add_u32 v{VX0}, v11, 4, v{VX0}",
      f"s_lshl_b32 s3, s{S_WM}, 13",f"v_add_u32 v{VX0}, s3, v{VX0}",f"v_xor_b32 v{VX0+1}, 64, v{VX0}",
      "v_bfe_u32 v11, v0, 3, 2",f"s_lshl_b32 s3, s{S_WN}, 1","v_xor_b32 v11, s3, v11",f"v_lshlrev_b32 v{VW0}, 5, v11",f"v_lshl_add_u32 v{VW0}, v10, 10, v{VW0}",
      "v_bfe_u32 v11, v0, 2, 2",f"v_lshl_add_u32 v{VW0}, v11, 7, v{VW0}","v_and_b32 v11, 3, v0",f"v_lshl_add_u32 v{VW0}, v11, 3, v{VW0}",f"v_add_u32 v{VW0}, 16384, v{VW0}",f"v_xor_b32 v{VW0+1}, 32, v{VW0}")
    for i in range(2): k(f"v_mov_b32 v{VX+i}, v{VX0+i}",f"v_mov_b32 v{VW+i}, v{VW0+i}")
    for i in range(96): k(f"v_mov_b32 v{ACC+i}, 0")
    k(f"s_mov_b32 s{S_SLOT}, 0",f"s_mov_b32 s{S_CNT}, {S}","s_waitcnt lgkmcnt(0)")
    fsrd(k); k("s_lshl_b32 s3, s2, 2",f"s_add_u32 s3, s3, s{S_WAVE}","s_lshl_b32 s3, s3, 10","v_lshlrev_b32 v11, 4, v0",f"buffer_store_dwordx4 {vr(ACC,4)}, v11, s[{SF}:{SF+3}], s3 offen sc1")
    if G.WRM:
        k("s_lshr_b32 s3, s2, 3","v_lshlrev_b32 v248, 5, v0","v_add_u32 v248, s3, v248",f"v_lshlrev_b32 v249, {G.WRM}, v248")
        jobs=[[(4,0x4d00000),(52,256)],[(80,1024*7168),(84,3584*2048),(62,1024*2048)],[(78,0x400000),(48,0x400000),(50,1024*6144)]]
        for w,J in enumerate(jobs):
            k(f"s_cmp_lg_u32 s{S_WAVE}, {w}",f"s_cbranch_scc1 {k.lab('w%d'%w)}")
            for p,n in J: k(srd(SA,p,0,n),f"buffer_load_dword v250, v249, s[{SA}:{SA+3}], 0 offen sc1")
            k.label("w%d"%w)
        k(f"s_cmp_lg_u32 s{S_WAVE}, 3",f"s_cbranch_scc1 {k.lab('w3')}","v_lshlrev_b32 v249, 7, v248",srd(SA,82,0,7168),f"buffer_load_dword v250, v249, s[{SA}:{SA+3}], 0 offen",
          srd(SA,86,0,2048),f"buffer_load_dword v250, v249, s[{SA}:{SA+3}], 0 offen")
        if G.WRC: k("s_getpc_b64 s[54:55]",k.lab("pc")+":",f"v_min_u32 v249, fused_kernel_last-{k.lab('pc')}, v249","v_mov_b32 v247, s55","v_add_co_u32 v246, vcc, s54, v249","s_nop 1","v_addc_co_u32 v247, vcc, 0, v247, vcc","global_load_dword v250, v[246:247], off")
        k.label("w3")
    stamp(k,1,True)
    ONE,T=190,196
    for i in range(4): k(f"v_mov_b32 v{ONE+i}, 0x3f803f80")
    k(srd(SA,P_WS,0,0x200000),srd(SB,52,0,256),f"s_lshl_b32 s3, s{S_WN}, 12",f"v_add_u32 v240, s3, v{VX0}",f"v_add_u32 v241, s3, v{VX0+1}",
      f"s_cmp_eq_u32 s{S_WM}, 0","s_cselect_b64 vcc, -1, 0",f"v_add_u32 v242, 8192, v{VW0+1}",f"v_add_u32 v243, 16384, v{VW0}",f"v_add_u32 v244, 16384, v{VW0+1}",f"v_add_u32 v245, 8192, v{VW0}",
      f"v_cndmask_b32 v242, v242, v{VW0}, vcc",f"v_cndmask_b32 v243, v243, v{VW0+1}, vcc","v_cndmask_b32 v244, v244, v245, vcc",
      f"s_lshl_b32 s41, s{S_MI}, 4","s_add_u32 s41, s41, s58","s_lshl_b32 s41, s41, 10",f"s_lshl_b32 s3, s{S_WAVE}, 8","s_add_u32 s41, s41, s3",
      f"s_lshl_b32 s42, s{S_NI}, 4","s_add_u32 s42, s42, s58","s_lshl_b32 s42, s42, 10",f"s_lshl_b32 s3, s{S_WN}, 9","s_add_u32 s42, s42, s3",f"s_lshl_b32 s3, s{S_WM}, 8","s_add_u32 s42, s42, s3",f"s_add_u32 s42, s42, {WS_CP}",
      "v_lshlrev_b32 v246, 3, v1","v_lshlrev_b32 v247, 4, v10","v_and_b32 v11, 3, v0","v_lshl_add_u32 v247, v11, 6, v247","v_cmp_eq_u32 s[54:55], 1, v11","v_cmp_eq_u32 s[56:57], 2, v11","v_cmp_eq_u32 s[60:61], 3, v11" if not G.STAMP else "v_cmp_eq_u32 s[76:77], 3, v11")
    M3="s[76:77]" if G.STAMP else "s[60:61]"
    k("s_barrier"); stamp(k,2)
    for kk in range(2):
        for t in range(2): k(f"ds_read_b128 {vr(FR+20*kk+4*t,4)}, v{240+kk} offset:{2048*t}")
        for t in range(3): k(f"ds_read_b64_tr_b16 {vr(FR+20*kk+8+4*t,2)}, v{242+t} offset:{4096*kk}",f"ds_read_b64_tr_b16 {vr(FR+20*kk+10+4*t,2)}, v{242+t} offset:{4096*kk+512}")
    for kk in range(2):
        k(f"s_waitcnt lgkmcnt({8-8*kk})")
        c=lambda d:(vr(d,4) if kk else "0")
        for t in range(2):
            x=vr(FR+20*kk+4*t,4)
            k(f"v_mfma_f32_16x16x32_bf16 {vr(T+8*t,4)}, {vr(ONE,4)}, {x}, {c(T+8*t)}",f"v_mfma_f32_16x16x32_bf16 {vr(T+8*t+4,4)}, {x}, {x}, {c(T+8*t+4)}")
        for t in range(3): k(f"v_mfma_f32_16x16x32_bf16 {vr(T+16+4*t,4)}, {vr(FR+20*kk+8+4*t,4)}, {vr(ONE,4)}, {c(T+16+4*t)}")
    def xf(b,tm): return FR+b*FSZ+4*tm
    def wf(b,tn): return FR+b*FSZ+16+4*tn
    def reads(b):
        X=[(f"ds_read_b128 {vr(xf(b,tm),4)}, v{VX+b} offset:{tm*2048}",xf(b,tm)) for tm in range(4)]
        W=[(f"ds_read_b64_tr_b16 {vr(wf(b,tn)+2*j,2)}, v{VW+tn%2} offset:{(tn//2)*8192+b*4096+j*512}",wf(b,tn)) for tn in range(6) for j in range(2)]
        return W[:2]+X+W[2:]
    q=[]
    for ins,d in reads(0): k(ins); q.append(d)
    for t in range(2):
        a=T+8*t
        k(f"v_cndmask_b32 v{a+1}, v{a+4}, v{a+5}, s[54:55]",f"v_cndmask_b32 v{a+1}, v{a+1}, v{a+6}, s[56:57]",f"v_cndmask_b32 v{a+1}, v{a+1}, v{a+7}, {M3}")
    for r in range(4): k(f"v_cndmask_b32 v{T+16+r}, v{T+16+r}, v{T+20+r}, s[54:55]",f"v_cndmask_b32 v{T+16+r}, v{T+16+r}, v{T+24+r}, s[56:57]")
    k("s_mov_b32 exec_lo, 0x00f0000f","s_mov_b32 exec_hi, 0xf0000f00")
    for t in range(2): k(f"buffer_store_dwordx2 {vr(T+8*t,2)}, v246, s[{SA}:{SA+3}], s41 offen offset:{128*t} sc1")
    k(f"buffer_store_dwordx4 {vr(T+16,4)}, v247, s[{SA}:{SA+3}], s42 offen sc1")
    k("s_mov_b64 exec, -1",".p2align 3"); k.label("cloop")
    k(f"s_sub_u32 s3, s{S_CNT}, {G.SGA}","s_cmp_lt_u32 s3, 4",f"s_cbranch_scc1 {k.lab('aux')}"); k.label("auxd")
    done=[0]
    def need(regs):
        idx=max([i for i,d in enumerate(q) if d in regs],default=-1)
        if idx>=done[0]:
            n=min(15,len(q)-1-idx); k(f"s_waitcnt lgkmcnt({n})"); done[0]=len(q)-n
    for hh in range(4):
        b=hh%2; RD=reads(1-b); p=0; j=0; first=G.BP if b else 0
        for tn in range(6):
            for tm in range(4):
                a=ACC+4*(tm*6+tn); x,w=xf(b,tm),wf(b,tn); A,B=(x,w) if tn>=4 else (w,x)
                need((x,w)); k(f"v_mfma_f32_16x16x32_bf16 {vr(a,4)}, {vr(A,4)}, {vr(B,4)}, {vr(a,4)}")
                if b and j==0: k(f"s_add_u32 s{S_SLOT}, s{S_SLOT}, {STG}",f"s_cmp_ge_u32 s{S_SLOT}, {NS*STG}",f"s_cselect_b32 s{S_SLOT}, 0, s{S_SLOT}",f"v_add_u32 v{VX}, s{S_SLOT}, v{VX0}",f"v_add_u32 v{VX+1}, s{S_SLOT}, v{VX0+1}")
                if b and j==first: k(f"v_add_u32 v{VW}, s{S_SLOT}, v{VW0}",f"v_add_u32 v{VW+1}, s{S_SLOT}, v{VW0+1}","s_waitcnt lgkmcnt(0)","s_barrier"); done[0]=len(q)
                if hh==3 and j==22: k(f"s_sub_u32 s{S_CNT}, s{S_CNT}, 2",f"s_cmp_lg_u32 s{S_CNT}, 0")
                if j>=first and p<len(RD): k(RD[p][0]); q.append(RD[p][1]); p+=1
                j+=1
        assert p==len(RD)
    k(f"s_cbranch_scc1 {k.lab('cloop')}","s_waitcnt lgkmcnt(0)"); stamp(k,3)
    L=k.L; k.L=k.ool; k.label("aux")
    k("s_waitcnt vmcnt(0)",f"s_cmp_eq_u32 s{S_CNT}, {G.SGA}",f"s_cbranch_scc0 {k.lab('auxd')}",f"s_cmp_eq_u32 s{S_WAVE}, 0",f"s_cbranch_scc0 {k.lab('auxd')}",
      "v_mov_b32 v240, 0","v_mov_b32 v241, 1",f"s_and_b32 s3, s2, {G.NCT-1}",f"s_mul_i32 s3, s3, {256//G.NCT}","s_mov_b64 exec, 1",f"buffer_atomic_add v241, v240, s[{SB}:{SB+3}], s3 offen sc1","s_mov_b64 exec, -1",f"s_branch {k.lab('auxd')}"); k.L=L
    CS,TK,VC,VT=FR,FR+16,FR+32,FR+36
    k(f"s_lshl_b32 s3, s{S_WN}, 9","v_lshl_add_u32 v2, v10, 4, s3","v_lshl_add_u32 v3, v1, 2, s3",f"s_lshl_b32 s3, s{S_WM}, 8","v_lshl_add_u32 v4, v1, 2, s3","v_lshl_add_u32 v5, v10, 4, s3")
    for tn in range(4): k(f"ds_read_b128 {vr(CS+4*tn,4)}, v2 offset:{1024+256*(tn//3)+64*(tn%3)}")
    for tm in range(4): k(f"ds_read_b32 v{TK+4*tm}, v4 offset:{64*tm}",f"ds_read_b32 v{TK+4*tm+2}, v4 offset:{512+64*tm}")
    k("s_waitcnt lgkmcnt(0)")
    for t in range(2): k(f"ds_read_b32 v{VC+2*t}, v3 offset:{1024+256+64+64*t}")
    for tm in range(4): k(f"ds_read_b128 {vr(VT+8*tm,4)}, v5 offset:{64*tm}",f"ds_read_b128 {vr(VT+8*tm+4,4)}, v5 offset:{512+64*tm}")
    k(srd(SO,P_WS,WS_QF,0x400000),srd(SA,P_WS,WS_KV,0x800000),f"s_lshl_b32 s{S_T}, s{S_MI}, 2",f"s_lshl_b32 s3, s{S_WM}, 1",f"s_add_u32 s{S_T}, s{S_T}, s3")
    for p in range(3): k(f"s_add_u32 s3, s{S_NI}, {PSH*p}","s_and_b32 s3, s3, 15","s_lshl_b32 s3, s3, 1",f"s_add_u32 s3, s3, s{S_WN}","s_lshl_b32 s3, s3, 6",f"s_add_u32 s3, s3, s{S_T}",f"s_lshl_b32 s{41+2*p}, s3, {12 if p else 11}",f"s_add_u32 s{42+2*p}, s{41+2*p}, {4096 if p else 2048}")
    k("v_lshlrev_b32 v2, 9, v10","v_lshl_add_u32 v2, v1, 4, v2","s_waitcnt lgkmcnt(0)","s_barrier")
    B="op_sel_hi:[1,0,1]"; d=FR+68; P=lambda r,i:vr(r+2*i,2)
    for tm in range(4):
        a=ACC+24*tm; m,r=vr(TK+4*tm,2),vr(TK+4*tm+2,2)
        for i in range(8): k(f"v_pk_fma_f32 {P(a,i)}, {P(CS,i)}, {m}, {P(a,i)} {B}")
        for i in range(4): k(f"v_pk_fma_f32 {P(a+16,i)}, {P(VT+8*tm,i%2)}, {vr(VC+2*(i//2),2)}, {P(a+16,i)} {B}")
        for i in range(4,8): k(f"v_pk_mul_f32 {P(a,i)}, {P(a,i)}, {r} op_sel_hi:[1,0]")
        k(f"v_mul_f32 v{TK+4*tm+2}, {f2u(math.log2(math.e)/math.sqrt(32))}, v{TK+4*tm+2}")
        for i in range(4): k(f"v_pk_mul_f32 {P(a+16,i)}, {P(a+16,i)}, {P(VT+8*tm+4,i%2)}")
        for i in range(4): k(f"v_pk_mul_f32 {P(a,i)}, {P(a,i)}, {r} op_sel_hi:[1,0]")
        pack(k,d,a+8,8); k(f"buffer_store_dwordx4 {vr(d,4)}, v2, s[{SA}:{SA+3}], s{43+tm//2} offen offset:{256*(tm%2)}{G.STF}"); d+=4
        if tm%2:
            for t in range(2):
                pack(k,d,a-24+16+4*t,4); pack(k,d+2,a+16+4*t,4)
                k(f"buffer_store_dwordx4 {vr(d,4)}, v2, s[{SA}:{SA+3}], s{45+tm//2} offen offset:{2048+256*t}{G.STF}"); d+=4
        pack(k,d,a,8); k(f"buffer_store_dwordx4 {vr(d,4)}, v2, s[{SO}:{SO+3}], s{41+tm//2} offen offset:{256*(tm%2)}{G.STF}"); d+=4
    k(f"s_lshl_b32 s43, s{S_NI}, 1",f"s_add_u32 s43, s43, s{S_WN}","s_lshl_b32 s43, s43, 5",f"s_lshl_b32 s3, s{S_MI}, 1","s_add_u32 s43, s43, s3",f"s_add_u32 s43, s43, s{S_WM}","s_lshl_b32 s92, s43, 7")
    stamp(k,4)
    k.label("end")
    return k
```

```python
from lib import *
WS_XN=0x0; WS_QF=0x400000; WS_KV=0x800000; WS_OF=0x1000000; WS_HF=0x1400000; WS_GF=0x1800000; WS_ST=0x2600000; WS_CS=0x2700000
WS_WQ=0x2800000; WS_WO=0x3200000; WS_W1=0x3400000; WS_W2=0x3c00000
import os
if os.environ.get('OVL','0')=='1': WS_OF=0; WS_GF=0; WS_HF=WS_WQ; WS_WO=WS_WQ+0x400000
P0=2; AUX6=4; R6=2; MEGA=1; NOPREP=1; WRM=16; SPLIT=1; SPM=0; WRC=1; TLB=0; NCT=4; OUTP=''; DSTAMP=0; LAT=1; SGA=12; QLP=''; QORD='x0 00 10 x1 20 01 x2 11 x3 21'.split(); XOF=2; SK=0; SKM=3; PSH=0; QP0=2; UNR=2; UNR6=1; BP=2; RS=1; ALN=3; GATE=1; LDP=' sc1'; SLP=6
WS_FL=0x4400000; F1,F2,F3,F4,F5=0,0x20000,0x60000,0x80000,0xa0000; F6=0xa0400; F7=0xa1400; F8=0xc1400; FLN=0xe1400; EARLY=0; XD=8; AAL=3; ABP=0; ANP=0; ABN=4; WSP=1; WS_EX=0x4500000; S_KH=93; SF=88; S_W8=29
AORD=4; APRIO=0; SJL=(6,7); SJP=' nt'; XNB=0; XND=0; XNR=0; SJ=3
STW=' sc1'
STF=' sc1'
A_X,A_WQKV,A_WO,A_W1,A_B1,A_W2,A_B2,A_OUT,A_DBG,A_WS=0,8,16,32,40,48,56,64,72,80
S_WAVE,S_MI,S_NI,S_SLOT,S_CNT,S_XO,S_WO,S_T,S_T2,S_WM,S_WN=30,31,32,33,34,35,36,37,38,39,40
SX,SW,SO,SA,SB,SC=8,12,16,20,24,44
P_WS,P_W,P_A,P_B=4,6,48,50
STAMP=False
KID={"prep":0,"qkv":1,"attn":2,"oproj":3,"ffn1":4,"ffn2":5}
def stamp0(k):
    if STAMP: k("s_memrealtime s[66:67]","s_memtime s[68:69]")
def stamp(k,idx,pre=False):
    if DSTAMP and idx in (2,3,4) or DSTAMP and idx==1 and k.pre=="qkv":
        n=0 if idx==1 else (KID[k.pre]-1)*3+idx-1
        k("s_memrealtime s[64:65]","s_waitcnt lgkmcnt(0)",f"v_writelane_b32 v252, s64, {n}")
        if n==15: k("s_cmp_lg_u32 s2, 9",f"s_cbranch_scc1 {k.lab('ds')}",f"s_cmp_lg_u32 s{S_W8}, 0",f"s_cbranch_scc1 {k.lab('ds')}","s_load_dwordx2 s[62:63], s[0:1], 72","v_readlane_b32 s64, v252, 0","v_lshlrev_b32 v251, 2, v0","s_waitcnt lgkmcnt(0)",
                    "v_subrev_u32 v252, s64, v252","s_mov_b64 exec, 0xffff","global_store_dword v251, v252, s[62:63]"); k.label("ds")
    if not STAMP: return
    base=0x2f00000+KID[k.pre]*65536
    k("s_memtime s[60:61]","s_memrealtime s[64:65]","s_lshl_b32 s62, s2, 7",f"s_add_u32 s62, s62, {base+4*idx}","s_waitcnt lgkmcnt(0)",
      "v_mov_b32 v255, s62","v_mov_b32 v254, s60","v_mov_b32 v253, s64","global_store_dword v255, v254, s[4:5] offset:64","global_store_dword v255, v253, s[4:5]")
    if pre: k("v_mov_b32 v254, s68","v_mov_b32 v253, s66","global_store_dword v255, v254, s[4:5] offset:60","global_store_dword v255, v253, s[4:5] offset:-4")

class Cfg: pass
def begin(k,name,lds):
    first = k is None or not k.L
    if k is None: k=K(name+"_kernel",256,512,lds)
    k.pre=name; stamp0(k)
    if first:
        k("s_cmp_ge_u32 s2, 256",f"s_cbranch_scc1 {k.name}_exit",f"s_load_dwordx2 s[{P_WS}:{P_WS+1}], s[0:1], {A_WS}",
          "v_lshrrev_b32 v1, 6, v0","v_and_b32 v0, 63, v0","s_nop 0",f"v_readfirstlane_b32 s{S_W8}, v1","s_nop 1")
    k(f"s_mov_b32 s{S_WAVE}, s{S_W8}")
    return k
def finish(k):
    k.L.append(f"{k.name}_exit:"); k("s_endpgm"); k(k.ool); k.L.insert(len(k.L)-1,f"{k.name}_last:"); return k
def fsrd(k): k(srd(SF,P_WS,WS_FL,FLN))
def poll(k,tag,soff,nlanes,expect,x4=False,v=240,sh=7,hi=None,SF=SF):
    k(f"v_min_u32 v{v+4}, {nlanes-1}, v0",f"v_lshlrev_b32 v{v+4}, {4 if x4 else sh}, v{v+4}","s_mov_b32 s87, 0x40000",f"s_mov_b32 s86, {hex(expect)}")
    if hi: k(f"v_and_b32 v{v+4}, 31, v0",f"v_lshlrev_b32 v{v+4}, 7, v{v+4}",f"v_mov_b32 v{v}, s{hi[0]}",f"v_mov_b32 v{v+1}, s{hi[1]}","v_cmp_gt_u32 vcc, 32, v0","s_nop 1",f"v_cndmask_b32 v{v}, v{v+1}, v{v}, vcc",f"v_add_u32 v{v+4}, v{v}, v{v+4}")
    k.label("pl"+tag)
    if x4: k(f"buffer_load_dwordx4 {vr(v,4)}, v{v+4}, s[{SF}:{SF+3}], s{soff} offen sc1","s_waitcnt vmcnt(0)",f"v_and_b32 v{v}, v{v}, v{v+1}",f"v_and_b32 v{v+2}, v{v+2}, v{v+3}",f"v_and_b32 v{v}, v{v}, v{v+2}")
    else: k(f"buffer_load_dword v{v}, v{v+4}, s[{SF}:{SF+3}], s{soff} offen sc1","s_waitcnt vmcnt(0)")
    k(f"v_cmp_ne_u32 vcc, s86, v{v}","s_sub_u32 s87, s87, 1","s_nop 3",f"s_cbranch_vccz {k.lab('pd'+tag)}",f"s_sleep {SLP}","s_cmp_lg_u32 s87, 0",f"s_cbranch_scc1 {k.lab('pl'+tag)}")
    k.label("pd"+tag)
def signal(k,soff,n=1,v=240,byte=False,vm=0):
    k(f"v_lshlrev_b32 v{v}, 7, v0",f"v_mov_b32 v{v+1}, 1",f"s_waitcnt vmcnt({vm})",f"s_mov_b64 exec, {(1<<n)-1}",
      f"buffer_store_{'byte' if byte else 'dword'} v{v+1}, v{v}, s[{SF}:{SF+3}], s{soff} offen sc1","s_mov_b64 exec, -1")

def wgmap(k,kind):
    if kind=="8x4":
        k(f"s_and_b32 s{S_MI}, s{S_T}, 1",f"s_lshl_b32 s{S_MI}, s{S_MI}, 3",f"s_and_b32 s3, s{S_T2}, 7",f"s_add_u32 s{S_MI}, s{S_MI}, s3",
          f"s_lshr_b32 s{S_NI}, s{S_T}, 1",f"s_lshl_b32 s{S_NI}, s{S_NI}, 2",f"s_lshr_b32 s3, s{S_T2}, 3",f"s_add_u32 s{S_NI}, s{S_NI}, s3")
    else:
        k(f"s_and_b32 s{S_MI}, s{S_T}, 3",f"s_lshl_b32 s{S_MI}, s{S_MI}, 2",f"s_and_b32 s3, s{S_T2}, 3",f"s_add_u32 s{S_MI}, s{S_MI}, s3",
          f"s_lshr_b32 s{S_NI}, s{S_T}, 2",f"s_lshl_b32 s{S_NI}, s{S_NI}, 3",f"s_lshr_b32 s3, s{S_T2}, 2",f"s_add_u32 s{S_NI}, s{S_NI}, s3")
def gemm(name, c, km=None):
    TM,TN,WM,WN,NS,KD=c.TM,c.TN,c.WM,c.WN,c.NS,c.K
    R=c.R; NT=TN*WN; WB=NT*2048; SG1=16384+WB; STG=SG1*R; S1=KD//64; S=S1//R//(2 if c.split else 1); NWL=NT//2; LW=(4+NWL)*R
    XTRA=147456; mega=km is not None
    k=begin(km,name,max(NS*STG,XTRA+c.lds_extra if c.lds_extra else 0))
    if c.aarg is not None: k(f"s_load_dwordx2 s[{P_A}:{P_A+1}], s[0:1], {c.aarg}")
    if c.barg is not None: k(f"s_load_dwordx2 s[{P_B}:{P_B+1}], s[0:1], {c.barg}")
    k(f"s_and_b32 s{S_T}, s2, 7",f"s_lshr_b32 s{S_T2}, s2, 3")
    wgmap(k,c.map)
    if c.split:
        if SPM: k(f"s_and_b32 s{S_KH}, s{S_NI}, 1",f"s_lshr_b32 s{S_NI}, s{S_NI}, 1")
        else: k(f"s_lshr_b32 s{S_KH}, s{S_NI}, 3",f"s_and_b32 s{S_NI}, s{S_NI}, 7")
    k("v_lshlrev_b32 v2, 4, v0",f"s_cmp_lt_u32 s{S_WAVE}, 4",f"s_cbranch_scc1 {k.lab('cons')}")
    k(f"s_sub_u32 s{S_WAVE}, s{S_WAVE}, 4",f"s_lshl_b32 s41, s{S_WAVE}, 12",f"s_mul_i32 s42, s{S_WAVE}, {NWL*1024}",
      f"s_mul_i32 s{S_XO}, s{S_MI}, {KD*256}",f"s_add_u32 s{S_XO}, s{S_XO}, s41",
      f"s_mul_i32 s{S_WO}, s{S_NI}, {S1*WB}",f"s_add_u32 s{S_WO}, s{S_WO}, s42","s_add_u32 s42, s42, 16384",f"s_mov_b32 s{S_SLOT}, 0",
      "s_waitcnt lgkmcnt(0)",srd(SX,P_WS,c.xoff,2048*KD*2),srd(SW,P_WS,c.woff,16*S1*WB))
    WST=WB
    if c.split:
        WST=WB//2
        k(f"s_mul_i32 s3, s{S_KH}, {S*16384}",f"s_add_u32 s{S_XO}, s{S_XO}, s3",f"s_lshl_b32 s{S_WO}, s{S_NI}, 1",f"s_lshr_b32 s3, s{S_WAVE}, 1",f"s_add_u32 s{S_WO}, s{S_WO}, s3",f"s_mul_i32 s{S_WO}, s{S_WO}, {S1*WST}",
          f"s_and_b32 s3, s{S_WAVE}, 1","s_lshl_b32 s3, s3, 12",f"s_add_u32 s{S_WO}, s{S_WO}, s3",f"s_mul_i32 s3, s{S_KH}, {S*WST}",f"s_add_u32 s{S_WO}, s{S_WO}, s3",f"s_mov_b32 s{SW+2}, {16*S1*WST}")
    dep=mega and c.xflag is not None
    P=LDP if dep else ''
    def issue(w=True,x=True): return [issue1(w,x) for r in range(R)]
    early=c.split and EARLY
    if early:
        E=[0,2,7,9,14,16,21,23]; seq=E+[t for t in range(28) if t not in E]
        tbl=sum(((seq[i+1]-seq[i])%28)<<(4*i) for i in range(27))
        def tinit(): return ["s_mov_b32 s95, 0"]+[f"s_mov_b32 s{96+i}, {hex((tbl>>(32*i))&0xffffffff)}" for i in range(4)]
        k(f"s_mov_b32 s46, s{S_XO}",f"s_mov_b32 s47, s{S_WO}",tinit())
    def issue1(w,x):
        o=[]
        if early: o+=[f"s_lshl_b32 s{S_XO}, s95, 14",f"s_add_u32 s{S_XO}, s{S_XO}, s46",f"s_lshl_b32 s{S_WO}, s95, 13",f"s_add_u32 s{S_WO}, s{S_WO}, s47",
                      "s_and_b32 s3, s96, 15","s_add_u32 s95, s95, s3","s_lshr_b64 s[96:97], s[96:97], 4","s_lshl_b32 s3, s98, 28","s_or_b32 s97, s97, s3","s_lshr_b64 s[98:99], s[98:99], 4",
                      "s_sub_u32 s3, s95, 28","s_cmp_ge_u32 s95, 28","s_cselect_b32 s95, s3, s95"]
        if w:
            o+=[f"s_add_u32 m0, s{S_SLOT}, s42",f"s_add_u32 s{S_T2}, s{S_WO}, 4096"]
            for j in range(NWL):
                if j==4: o+=["s_add_u32 m0, m0, 4096","s_nop 0"]
                o+=[f"buffer_load_dwordx4 v2, s[{SW}:{SW+3}], s{S_WO if j<4 else S_T2} offen offset:{(j%4)*1024}{P} lds"]
            o+=[f"s_add_u32 s{S_WO}, s{S_WO}, {WST}"]
        if x:
            o+=[f"s_add_u32 m0, s{S_SLOT}, s41","s_nop 0"]
            for u in range(4): o+=[f"buffer_load_dwordx4 v2, s[{SX}:{SX+3}], s{S_XO} offen offset:{u*1024}{P} lds"]
            o+=[f"s_add_u32 s{S_XO}, s{S_XO}, 16384"]
        o+=[f"s_add_u32 s{S_SLOT}, s{S_SLOT}, {SG1}",f"s_cmp_ge_u32 s{S_SLOT}, {NS*STG}",f"s_cselect_b32 s{S_SLOT}, 0, s{S_SLOT}"]
        return o
    def rep(tag,n,code): k(f"s_mov_b32 s{S_CNT}, {n}"); k.label(tag); k(code,f"s_sub_u32 s{S_CNT}, s{S_CNT}, 1",f"s_cmp_lg_u32 s{S_CNT}, 0",f"s_cbranch_scc1 {k.lab(tag)}")
    if STAMP: k("s_memtime s[70:71]")
    if dep:
        fsrd(k)
        if c.wflag: k(f"s_mov_b32 s43, {c.wflag[0]}"); poll(k,"w",43,c.wflag[1],1,c.wflag[2])
        if not c.wlate: rep("lpw",(NS-1)*R,issue1(True,False))
        k(f"s_lshl_b32 s43, s{S_MI}, 2",f"s_add_u32 s43, s43, s{S_WAVE}",f"s_lshr_b32 s43, s43, {c.xflag[2]}",f"s_mul_i32 s43, s43, {c.xflag[1]*128}",f"s_add_u32 s43, s43, {c.xflag[0]}",f"s_mov_b32 s{S_SLOT}, 0")
        if c.gate and not early: k("s_barrier")
        if c.wlate: k(f"s_mov_b32 s44, {F6}","s_mov_b32 s45, 0"); poll(k,"x",45,64,1,hi=(43,44))
        elif c.split: k(f"s_lshl_b32 s3, s{S_KH}, 11","s_add_u32 s43, s43, s3",f"s_add_u32 s45, s43, {F8-F4 if early else 0}",tinit() if early else []); poll(k,"x",45,16,1)
        else: poll(k,"x",43,c.xflag[1],1)
        if STAMP: k("s_memtime s[72:73]")
        rep("lpx",(NS-1)*R,issue1(c.wlate,True))
        if STAMP: k("s_memtime s[74:75]")
        for j in range(NS-1): k(f"s_waitcnt vmcnt({(NS-2-j)*(LW if c.wlate else 4*R)+j*LW})","s_barrier",issue())
        P0=0
        if early:
            rep("le",2,[f"s_waitcnt vmcnt({(NS-2)*LW})","s_barrier",issue()]); poll(k,"y",43,16,1); P0=-2
    else:
        P0=min(c.P0,NS-1)
        rep("lpro",P0,issue())
        if STAMP: k("s_memtime s[72:73]",f"s_waitcnt vmcnt({(P0-1)*LW})","s_memtime s[74:75]")
        for j in range(NS-1-P0): k(f"s_waitcnt vmcnt({(P0-1+j)*LW})","s_barrier",issue(),issue())
    k(f"s_mov_b32 s{S_CNT}, {S-(NS-1)-(NS-1-P0)}"); k.label("lloop")
    k(f"s_waitcnt vmcnt({(NS-2)*LW})","s_barrier",issue(),f"s_sub_u32 s{S_CNT}, s{S_CNT}, 1",f"s_cmp_lg_u32 s{S_CNT}, 0",f"s_cbranch_scc1 {k.lab('lloop')}")
    nh=c.loader_head(k) if c.loader_head else 0
    for j in range(NS-1): k(f"s_waitcnt vmcnt({(NS-2-j)*LW+nh})","s_barrier")
    if nh: k("s_waitcnt vmcnt(0)")
    if c.loader_tail: c.loader_tail(k,XTRA)
    if STAMP:
        k("s_lshl_b32 s62, s2, 7",f"s_add_u32 s62, s62, {0x2f00000+KID[k.pre]*65536+64+20}","s_waitcnt lgkmcnt(0)","v_mov_b32 v255, s62")
        for j,r in enumerate((68,70,72,74)): k(f"v_mov_b32 v254, s{r}",f"global_store_dword v255, v254, s[4:5] offset:{4*j}")
    k("s_barrier",f"s_branch {k.lab('end')}" if mega and c.sig else "s_endpgm")
    k.label("cons")
    ACC=c.acc0; FR=ACC+4*TM*TN; FSZ=4*(TM+TN)
    VX,VW,VX0,VW0=6,3,4,5
    assert FR+2*FSZ<=c.vmax,(FR+2*FSZ)
    if WN==2: k(f"s_lshr_b32 s{S_WM}, s{S_WAVE}, 1",f"s_and_b32 s{S_WN}, s{S_WAVE}, 1")
    else: k(f"s_mov_b32 s{S_WM}, s{S_WAVE}",f"s_mov_b32 s{S_WN}, 0")
    k(f"s_mul_i32 s{S_T}, s{S_WM}, {TM*2048}",f"v_add_u32 v{VX0}, s{S_T}, v2",
      f"s_mul_i32 s{S_T}, s{S_WN}, {TN*2048}",f"s_add_u32 s{S_T}, s{S_T}, 16384",f"v_add_u32 v{VW0}, s{S_T}, v2",
      f"v_mov_b32 v{VX}, v{VX0}",f"v_mov_b32 v{VW}, v{VW0}",f"s_mov_b32 s{S_SLOT}, 0",f"s_mov_b32 s{S_CNT}, {S}","s_waitcnt lgkmcnt(0)")
    if c.split:
        k(f"s_lshl_b32 s94, s{S_MI}, 3",f"s_add_u32 s94, s94, s{S_NI}","s_lshl_b32 s94, s94, 2",f"s_add_u32 s94, s94, s{S_WAVE}","s_lshl_b32 s94, s94, 1",f"s_add_u32 s94, s94, s{S_KH}",
          f"s_lshl_b32 s{S_WM}, s{S_WM}, 1",f"s_add_u32 s{S_WM}, s{S_WM}, s{S_KH}",f"s_lshl_b32 s{S_NI}, s{S_NI}, 1",f"s_add_u32 s{S_NI}, s{S_NI}, s{S_WN}")
    if dep and c.gate and not early: k("s_barrier")
    stamp(k,1,True)
    c.prologue(k,ACC,FR)
    def xf(b,tm): return FR+b*FSZ+4*tm
    def wf(b,tn): return FR+b*FSZ+4*TM+4*tn
    def reads(h):
        b=h%2; so=(h//2)*SG1
        X=[(f"ds_read_b128 {vr(xf(b,tm),4)}, v{VX} offset:{so+tm*2048+b*1024}",xf(b,tm)) for tm in range(TM)]
        W=[(f"ds_read_b128 {vr(wf(b,tn),4)}, v{VW} offset:{so+tn*2048+b*1024}",wf(b,tn)) for tn in range(TN)]
        return W[:1]+X+W[1:]
    def mfmas(b):
        o=[]
        for tn in range(TN):
            for tm in range(TM):
                a=ACC+4*(tm*TN+tn); x,w=xf(b,tm),wf(b,tn)
                A,B=(x,w) if c.swap(tn) else (w,x)
                o.append((f"v_mfma_f32_16x16x32_bf16 {vr(a,4)}, {vr(A,4)}, {vr(B,4)}, {vr(a,4)}",(x,w)))
        return o
    k("s_barrier"); stamp(k,2)
    q=[]
    for ins,d in reads(0): k(ins); q.append(d)
    k(f".p2align {ALN}"); k.label("cloop")
    if early:
        k(f"s_cmp_eq_u32 s{S_CNT}, {S-c.UNR}",f"s_cbranch_scc1 {k.lab('sg')}"); k.label("sgd")
        L=k.L; k.L=k.ool; k.label("sg"); signal(k,92); k(f"s_branch {k.lab('sgd')}"); k.L=L
    if c.aux: k(f"s_cmp_eq_u32 s{S_CNT}, {c.auxat}",f"s_cbranch_scc1 {k.lab('aux')}"); k.label("auxd")
    done=[0]
    def need(regs):
        idx=max([i for i,d in enumerate(q) if d in regs],default=-1)
        if idx>=done[0]:
            n=min(15,len(q)-1-idx); k(f"s_waitcnt lgkmcnt({n})"); done[0]=len(q)-n
    for hh in range(2*R*c.UNR):
        h=hh%(2*R); last=h==2*R-1
        M=mfmas(h%2); RD=reads((h+1)%(2*R)); p=0
        bar=c.barpos if last else -1
        first=bar if last else 0
        for j,(ins,regs) in enumerate(M):
            need(regs); k(ins)
            if last and j==0 : k(f"s_add_u32 s{S_SLOT}, s{S_SLOT}, {STG}",f"s_cmp_ge_u32 s{S_SLOT}, {NS*STG}",f"s_cselect_b32 s{S_SLOT}, 0, s{S_SLOT}")
            if j==bar:
                k("s_waitcnt lgkmcnt(0)",f"v_add_u32 v{VX}, s{S_SLOT}, v{VX0}",f"v_add_u32 v{VW}, s{S_SLOT}, v{VW0}","s_barrier"); done[0]=len(q)
            if hh==2*R*c.UNR-1 and j==len(M)-2: k(f"s_sub_u32 s{S_CNT}, s{S_CNT}, {c.UNR}",f"s_cmp_lg_u32 s{S_CNT}, 0")
            if j>=first and (j-first)%c.rstep==0 and p<len(RD):
                k(RD[p][0]); q.append(RD[p][1]); p+=1
        for ins2,d in RD[p:]: k(ins2); q.append(d)
    k(f"s_cbranch_scc1 {k.lab('cloop')}")
    k("s_waitcnt lgkmcnt(0)","s_nop 7"); stamp(k,3)
    c.epilogue(k,ACC,FR,XTRA)
    if mega and c.sig: fsrd(k); c.sig(k)
    if STAMP and not (mega and c.sig): k("s_waitcnt vmcnt(0)")
    stamp(k,4)
    k.label("end")
    if c.aux:
        L=k.L; k.L=k.ool; k.label("aux"); c.aux(k); k(f"s_branch {k.lab('auxd')}"); k.L=L
    return k if mega else finish(k)
def zero_acc(n):
    def f(k,ACC,FR):
        for i in range(n): k(f"v_mov_b32 v{ACC+i}, 0")
    return f
def pack(k,dst,src,n=16):
    for i in range(n//2): k(f"v_cvt_pk_bf16_f32 v{dst+i}, v{src+2*i}, v{src+2*i+1}")
def relayout_addr(k,vsrc,vtr,sstride,g1,g2,vt=7):
    k(f"v_lshrrev_b32 v{vsrc}, 2, v0",f"v_mul_lo_u32 v{vsrc}, s{sstride}, v{vsrc}",f"v_and_b32 v{vt}, 3, v0",f"v_lshl_add_u32 v{vsrc}, v{vt}, 4, v{vsrc}",
      f"v_lshlrev_b32 v{vtr}, 4, v{vt}",f"v_bfe_u32 v{vt}, v0, 2, 2",f"v_lshl_add_u32 v{vtr}, v{vt}, 6, v{vtr}")
```

```python
from lib import *
import gemm as G
from gemm import *
import math
def mkcfg(**kw):
    c=Cfg(); c.aarg=None; c.barg=None; c.loader_head=None; c.loader_tail=None; c.lds_extra=0; c.swap=lambda tn:False; c.acc0=8; c.vmax=252; c.barpos=G.BP; c.rstep=G.RS; c.UNR=G.UNR; c.aux=None; c.auxat=0; c.P0=G.P0; c.R=1; c.xflag=None; c.wflag=None; c.sig=None; c.wlate=False; c.split=False; c.gate=G.GATE
    c.__dict__.update(kw); return c
def unpack(k,dst,src,n):
    for i in range(n): k(f"v_lshlrev_b32 v{dst+2*i}, 16, v{src+i}",f"v_and_b32 v{dst+2*i+1}, 0xffff0000, v{src+i}")
def rstd_from(k,s,q,out):
    k(f"v_mul_f32 v{s}, {f2u(-1/1024)}, v{s}",f"v_mul_f32 v{q}, {f2u(1/1024)}, v{q}",f"v_fma_f32 v{q}, -v{s}, v{s}, v{q}",f"v_max_f32 v{q}, 0, v{q}",
      f"v_add_f32 v{q}, {f2u(1e-5)}, v{q}",f"v_rsq_f32 v{out}, v{q}")
def k_qkv(km=None):
    def epi(k,ACC,FR,X):
        k(srd(SO,P_WS,WS_QF,0x400000),srd(SA,P_WS,WS_KV,0x800000))
        k(f"s_lshl_b32 s{S_T}, s{S_MI}, 2",f"s_lshl_b32 s3, s{S_WM}, 1",f"s_add_u32 s{S_T}, s{S_T}, s3",
          f"s_lshl_b32 s{S_T2}, s{S_NI}, 1",f"s_add_u32 s{S_T2}, s{S_T2}, s{S_WN}",f"s_lshl_b32 s{S_T2}, s{S_T2}, 6",f"s_add_u32 s{S_T}, s{S_T}, s{S_T2}",
          f"s_lshl_b32 s41, s{S_T}, 11",f"s_lshl_b32 s42, s{S_T}, 12","s_add_u32 s43, s42, 4096",
          f"s_mov_b32 s52, {f2u(math.log2(math.e)/math.sqrt(32))}",f"s_mov_b32 s53, s52",
          "v_lshrrev_b32 v4, 4, v0","v_lshlrev_b32 v4, 9, v4","v_and_b32 v5, 15, v0","v_lshl_add_u32 v2, v5, 4, v4",
          )
        d=FR
        for tm in range(4):
            a=ACC+24*tm; sk=42+tm//2
            pack(k,d,a+8,8); k(f"buffer_store_dwordx4 {vr(d,4)}, v2, s[{SA}:{SA+3}], s{sk} offen offset:{256*(tm%2)}{G.STF}"); d+=4
            if tm%2:
                for t in range(2):
                    pack(k,d,a-24+16+4*t,4); pack(k,d+2,a+16+4*t,4)
                    k(f"buffer_store_dwordx4 {vr(d,4)}, v2, s[{SA}:{SA+3}], s{sk} offen offset:{2048+256*t}{G.STF}"); d+=4
            for i in range(4): k(f"v_pk_mul_f32 {vr(a+2*i,2)}, {vr(a+2*i,2)}, s[52:53]")
            pack(k,d,a,8); k(f"buffer_store_dwordx4 {vr(d,4)}, v2, s[{SO}:{SO+3}], s41 offen offset:{2048*(tm//2)+256*(tm%2)}{G.STF}"); d+=4
    def sig(k):
        k(f"s_lshl_b32 s43, s{S_NI}, 1",f"s_add_u32 s43, s43, s{S_WN}","s_lshl_b32 s43, s43, 5",f"s_lshl_b32 s3, s{S_MI}, 1","s_add_u32 s43, s43, s3",f"s_add_u32 s43, s43, s{S_WM}","s_lshl_b32 s43, s43, 7"); signal(k,43)
    c=mkcfg(sig=sig,TM=4,TN=6,WM=2,WN=2,NS=4,K=1024,woff=WS_WQ,xoff=WS_XN,map="8x4",swap=lambda tn:tn>=4,prologue=zero_acc(96),epilogue=epi)
    return gemm("qkv",c,km)
def rowmajor_addr(k,v,sdst):
    k(f"s_lshl_b32 s{sdst}, s{S_MI}, 2",f"s_add_u32 s{sdst}, s{sdst}, s{S_WM}",f"s_lshl_b32 s{sdst}, s{sdst}, 16",f"s_lshl_b32 s3, s{S_NI}, 7",f"s_add_u32 s{sdst}, s{sdst}, s3",
      f"s_add_u32 s{sdst+1}, s{sdst}, 32768",f"v_and_b32 v{v}, 15, v0",f"v_lshlrev_b32 v{v}, 11, v{v}","v_lshrrev_b32 v1, 4, v0",f"v_lshl_add_u32 v{v}, v1, 4, v{v}")
def hunit_addr(k,sdst):
    k(f"s_lshl_b32 s{sdst}, s{S_MI}, 18",f"s_lshl_b32 s3, s{S_NI}, 14",f"s_add_u32 s{sdst}, s{sdst}, s3",f"s_lshl_b32 s3, s{S_WM}, 12",f"s_add_u32 s{sdst}, s{sdst}, s3")
def k_oproj(km=None):
    def pro(k):
        k(srd(SA,P_A,0,0x400000)); rowmajor_addr(k,7,41)
        for j in range(4): k(f"buffer_load_dwordx4 {vr(100+4*j,4)}, v7, s[{SA}:{SA+3}], s{41+j//2} offen offset:{64*(j%2)}")
    def epi(k,ACC,FR,X):
        k(srd(SO,P_WS,WS_HF,0x400000),srd(SB,P_WS,WS_ST,2048*128)); hunit_addr(k,41)
        k("s_waitcnt vmcnt(0)"); unpack(k,120,100,16)
        for i in range(16): k(f"v_pk_add_f32 {vr(ACC+2*i,2)}, {vr(ACC+2*i,2)}, {vr(120+2*i,2)}")
        pack(k,FR,ACC,32)
        for j in range(4): k(f"buffer_store_dwordx4 {vr(FR+4*j,4)}, v2, s[{SO}:{SO+3}], s41 offen offset:{1024*j}{G.STF}")
        for tm in range(2):
            a=ACC+16*tm; s_,q_=100+4*tm,102+4*tm
            k(f"v_pk_add_f32 {vr(s_,2)}, {vr(a,2)}, {vr(a+2,2)}",f"v_pk_mul_f32 {vr(q_,2)}, {vr(a,2)}, {vr(a,2)}",f"v_pk_fma_f32 {vr(q_,2)}, {vr(a+2,2)}, {vr(a+2,2)}, {vr(q_,2)}")
            for i in range(2,8): k(f"v_pk_add_f32 {vr(s_,2)}, {vr(s_,2)}, {vr(a+2*i,2)}",f"v_pk_fma_f32 {vr(q_,2)}, {vr(a+2*i,2)}, {vr(a+2*i,2)}, {vr(q_,2)}")
            k(f"v_add_f32 v{s_}, v{s_}, v{s_+1}",f"v_add_f32 v{q_}, v{q_}, v{q_+1}")
        k(f"s_lshl_b32 s42, s{S_MI}, 2",f"s_add_u32 s42, s42, s{S_WM}","s_lshl_b32 s42, s42, 12",f"s_lshl_b32 s3, s{S_NI}, 8","s_add_u32 s42, s42, s3",
          "v_permlane32_swap_b32 v100, v104","v_permlane32_swap_b32 v102, v106","v_and_b32 v3, 15, v0","v_lshlrev_b32 v3, 3, v3",
          "v_add_f32 v100, v100, v104","v_add_f32 v102, v102, v106","v_lshrrev_b32 v4, 5, v0","v_lshl_add_u32 v3, v4, 7, v3",
          "v_permlane16_swap_b32 v100, v102","v_bfe_u32 v4, v0, 4, 1","v_lshl_add_u32 v3, v4, 2, v3","v_add_f32 v100, v100, v102",
          f"buffer_store_dword v100, v3, s[{SB}:{SB+3}], s42 offen sc1")
    def sig(k):
        k(f"s_lshl_b32 s43, s{S_MI}, 2",f"s_add_u32 s43, s43, s{S_WM}","s_lshl_b32 s43, s43, 4",f"s_add_u32 s43, s43, s{S_NI}","s_lshl_b32 s43, s43, 7",f"s_add_u32 s43, s43, {F3}"); signal(k,43)
    c=mkcfg(sig=sig,xflag=(F2,32,0),gate=0,wlate=bool(G.NOPREP),TM=2,TN=4,WM=4,WN=1,NS=6//G.R6,R=G.R6,K=1024,aarg=A_X,woff=WS_WO,xoff=WS_OF,map="4x8",prologue=zero_acc(32),aux=pro,auxat=G.AUX6//G.R6,epilogue=epi,barpos=1,rstep=1,UNR=G.UNR6,vmax=100)
    return gemm("oproj",c,km)
def k_ffn1(km=None):
    def lhead(k):
        k(srd(SA,P_WS,WS_CS,4*3584*4),srd(SB,P_A,0,3584*2),f"s_lshl_b32 s{S_T}, s{S_WAVE}, 6",f"v_add_u32 v20, s{S_T}, v0",
          f"s_mul_i32 s{S_T}, s{S_NI}, 224",f"v_add_u32 v21, s{S_T}, v20","v_lshlrev_b32 v22, 2, v21","v_lshlrev_b32 v21, 1, v21",
          f"buffer_load_ushort v40, v21, s[{SB}:{SB+3}], 0 offen")
        for p in range(4): k(f"s_mov_b32 s{S_T}, {p*3584*4}",f"buffer_load_dword v{24+p}, v22, s[{SA}:{SA+3}], s{S_T} offen sc1")
        return 5
    def ltail(k,X):
        for p in range(1,4): k(f"v_add_f32 v24, v24, v{24+p}")
        k("v_lshlrev_b32 v40, 16, v40","v_lshrrev_b32 v21, 5, v20","v_bfe_u32 v22, v20, 2, 1","v_lshl_add_u32 v25, v21, 1, v22",
          "v_bfe_u32 v28, v20, 3, 2","v_bfe_u32 v29, v20, 2, 2","v_bfe_u32 v22, v20, 4, 1",
          "v_cmp_lt_u32 vcc, 3, v21","v_subrev_u32 v26, 1, v25","v_mul_u32_u24 v27, 7, v22","v_cndmask_b32 v25, v25, v26, vcc","v_cmp_eq_u32 vcc, 3, v21","v_add_u32 v27, 6, v27","s_nop 0","v_cndmask_b32 v25, v25, v27, vcc","v_cndmask_b32 v28, v28, v29, vcc",
          "v_cmp_eq_u32 vcc, 7, v21","v_mov_b32 v27, 15","s_nop 0","v_cndmask_b32 v25, v25, v27, vcc",
          "v_lshlrev_b32 v25, 6, v25","v_lshl_add_u32 v25, v28, 4, v25","v_and_b32 v26, 3, v20","v_lshl_add_u32 v25, v26, 2, v25",
          f"v_add_u32 v25, {X}, v25","ds_write_b32 v25, v24","ds_write_b32 v25, v40 offset:1024","s_waitcnt lgkmcnt(0)")
    ST=208
    def pro(k):
        k(srd(SB,P_WS,WS_ST,2048*128),f"s_lshl_b32 s{S_T}, s{S_MI}, 1",f"s_add_u32 s{S_T}, s{S_T}, s{S_WM}",f"s_lshl_b32 s{S_T}, s{S_T}, 13",
          "v_and_b32 v7, 15, v0","v_lshlrev_b32 v7, 3, v7","v_lshrrev_b32 v1, 4, v0","v_lshl_add_u32 v7, v1, 10, v7")
        for tm in range(4):
            if tm==2: k(f"s_add_u32 s{S_T}, s{S_T}, 4096")
            for j in range(4): k(f"buffer_load_dwordx2 {vr(ST+8*tm+2*j,2)}, v7, s[{SB}:{SB+3}], s{S_T} offen offset:{128*(tm%2)+256*j} sc1")
    def epi(k,ACC,FR,X):
        k(srd(SO,P_WS,WS_GF,2048*3584*2))
        CSR=FR; BR=FR+28; T=FR+56
        k(f"s_mul_i32 s3, s{S_WN}, 448",f"s_add_u32 s3, s3, {X}","v_lshrrev_b32 v3, 4, v0","v_lshlrev_b32 v3, 4, v3","v_add_u32 v3, s3, v3")
        for tn in range(7): k(f"ds_read_b128 {vr(CSR+4*tn,4)}, v3 offset:{64*tn}",f"ds_read_b128 {vr(BR+4*tn,4)}, v3 offset:{1024+64*tn}")
        k(f"s_mul_i32 s41, s{S_MI}, {3584*256}",f"s_lshl_b32 s3, s{S_WM}, 13","s_add_u32 s41, s41, s3",f"s_mul_i32 s42, s{S_NI}, 7",f"s_lshl_b32 s43, s{S_WN}, 2")
        for p in range(4):
            if p<3: k(f"s_add_u32 s3, s42, s43",f"s_add_u32 s3, s3, {p}")
            else: k("s_add_u32 s3, s42, 3")
            k(f"s_lshr_b32 s{54+p}, s3, 1",f"s_lshl_b32 s{54+p}, s{54+p}, 14","s_and_b32 s3, s3, 1","s_lshl_b32 s3, s3, 10",f"s_add_u32 s{54+p}, s{54+p}, s3",f"s_add_u32 s{54+p}, s{54+p}, s41")
        k(f"s_lshl_b32 s3, s{S_WN}, 9","s_add_u32 s57, s57, s3","v_add_u32 v7, 4096, v2",
          "v_and_b32 v6, 15, v0","v_lshlrev_b32 v6, 4, v6","v_bfe_u32 v1, v0, 4, 1","v_lshl_add_u32 v6, v1, 11, v6","v_lshrrev_b32 v1, 5, v0","v_lshl_add_u32 v6, v1, 8, v6","s_waitcnt vmcnt(0)")
        for tm in range(4):
            r=ST+8*tm
            k(f"v_pk_add_f32 {vr(r,2)}, {vr(r,2)}, {vr(r+2,2)}",f"v_pk_add_f32 {vr(r+4,2)}, {vr(r+4,2)}, {vr(r+6,2)}",f"v_pk_add_f32 {vr(r,2)}, {vr(r,2)}, {vr(r+4,2)}")
        for op in ("v_permlane16_swap_b32","v_permlane32_swap_b32"):
            for tm in range(4): r=ST+8*tm; k(f"v_mov_b32 v{r+2}, v{r}",f"v_mov_b32 v{r+3}, v{r+1}")
            k("s_nop 1")
            for tm in range(4): r=ST+8*tm; k(f"{op} v{r}, v{r+2}",f"{op} v{r+1}, v{r+3}")
            k("s_nop 1")
            for tm in range(4): r=ST+8*tm; k(f"v_pk_add_f32 {vr(r,2)}, {vr(r,2)}, {vr(r+2,2)}")
        for tm in range(4): r=ST+8*tm; rstd_from(k,r,r+1,r+2); k(f"v_mov_b32 v{r+1}, v{r}",f"v_mov_b32 v{r+3}, v{r+2}")
        a_=-2*0.7978845608028654*math.log2(math.e); b_=a_*0.044715
        k(f"s_mov_b32 s52, {f2u(b_)}",f"s_mov_b32 s53, {f2u(b_)}",f"v_mov_b32 v4, {f2u(a_)}",f"v_mov_b32 v5, {f2u(a_)}","s_waitcnt lgkmcnt(0)")
        fsrd(k)
        k(f"s_lshl_b32 s43, s{S_MI}, 1",f"s_add_u32 s43, s43, s{S_WM}","s_lshl_b32 s43, s43, 5",f"s_lshl_b32 s3, s{S_NI}, 1","s_add_u32 s43, s43, s3",f"s_add_u32 s43, s43, s{S_WN}","s_lshl_b32 s43, s43, 7",
          f"s_add_u32 s92, s43, {F4}",f"s_add_u32 s43, s43, {F8}")
        for p in range(4):
            n=4 if p<3 else 2; I=[(tm,i) for tm in range(4) for i in range(n)]
            A=lambda tm,i:vr(ACC+28*tm+8*p+2*i,2); TT=lambda tm,i:vr(T+2*(n*tm+i),2)
            for tm,i in I: k(f"v_pk_fma_f32 {A(tm,i)}, {vr(CSR+8*p+2*i,2)}, {vr(ST+8*tm,2)}, {A(tm,i)}")
            for tm,i in I: k(f"v_pk_fma_f32 {A(tm,i)}, {A(tm,i)}, {vr(ST+8*tm+2,2)}, {vr(BR+8*p+2*i,2)}")
            for tm,i in I: k(f"v_pk_mul_f32 {TT(tm,i)}, {A(tm,i)}, {A(tm,i)}")
            for tm,i in I: k(f"v_pk_fma_f32 {TT(tm,i)}, {TT(tm,i)}, s[52:53], v[4:5]")
            for tm,i in I: k(f"v_pk_mul_f32 {TT(tm,i)}, {TT(tm,i)}, {A(tm,i)}")
            for i in range(8*n): k(f"v_exp_f32 v{T+i}, v{T+i}")
            for tm,i in I: k(f"v_pk_add_f32 {TT(tm,i)}, {TT(tm,i)}, 1.0 op_sel_hi:[1,0]")
            for i in range(8*n): k(f"v_rcp_f32 v{T+i}, v{T+i}")
            for tm,i in I: k(f"v_pk_mul_f32 {TT(tm,i)}, {TT(tm,i)}, {A(tm,i)}")
            if p==2 and G.EARLY and G.SPLIT: signal(k,43)
            for tm in range(4):
                if p<3:
                    d=ACC+28*tm+8*p; pack(k,d,T+8*tm,8)
                    k(f"buffer_store_dwordx4 {vr(d,4)}, v{2 if tm<2 else 7}, s[{SO}:{SO+3}], s{54+p} offen offset:{2048*(tm%2)}{G.STF}")
                else: pack(k,ACC+28*(tm&~1)+24+2*(tm%2),T+4*tm,4)
            if p==3:
                k("s_nop 1")
                for h in range(2):
                    sg=ACC+56*h+24
                    k(f"v_permlane16_swap_b32 v{sg}, v{sg+2}",f"v_permlane16_swap_b32 v{sg+1}, v{sg+3}",f"buffer_store_dwordx4 {vr(sg,4)}, v6, s[{SO}:{SO+3}], s57 offen{G.STF}","s_add_u32 s57, s57, 4096")
    def sig(k):
        if not (G.EARLY and G.SPLIT): signal(k,92)
    c=mkcfg(sig=sig,xflag=(F3,16,0),wflag=(F5,56,True),TM=4,TN=7,WM=2,WN=2,NS=3,K=1024,aarg=A_B1,woff=WS_W1,xoff=WS_HF,map="8x4",prologue=zero_acc(112),aux=pro,auxat=max(2,G.UNR),epilogue=epi,loader_head=lhead,loader_tail=ltail,lds_extra=2048,vmax=208)
    return gemm("ffn1",c,km)
def k_ffn2(km=None):
    A=140 if G.SPLIT else 100
    def pro(k):
        k(srd(SA,P_WS,WS_HF,0x400000),srd(SB,P_A,0,2048)); hunit_addr(k,41)
        k(f"s_lshl_b32 s42, s{S_NI}, 7","v_lshrrev_b32 v7, 4, v0","v_lshlrev_b32 v7, 4, v7")
        for j in range(4): k(f"buffer_load_dwordx4 {vr(A+4*j,4)}, v2, s[{SA}:{SA+3}], s41 offen offset:{1024*j} sc1")
        for j in range(2): k(f"buffer_load_dwordx4 {vr(A+16+4*j,4)}, v7, s[{SB}:{SB+3}], s42 offen offset:{64*j}")
    def epi(k,ACC,FR,X):
        if G.SPLIT:
            k(srd(SA,P_WS,WS_EX,0x800000),"s_lshl_b32 s44, s94, 13","s_add_u32 s45, s44, 4096",f"s_cmp_eq_u32 s{S_KH}, 0",f"s_cbranch_scc1 {k.lab('nsw')}")
            for i in range(32): k(f"v_swap_b32 v{ACC+i}, v{ACC+32+i}")
            k.label("nsw")
            for j in range(8): k(f"buffer_store_dwordx4 {vr(ACC+32+4*j,4)}, v2, s[{SA}:{SA+3}], s{44+j//4} offen offset:{1024*(j%4)} sc1")
            k("s_waitcnt vmcnt(8)")
        else: k("s_waitcnt vmcnt(0)")
        k(srd(SO,P_B,0,0x400000)); rowmajor_addr(k,7,41)
        unpack(k,A+30,A,24)
        for i in range(16): k(f"v_pk_add_f32 {vr(ACC+2*i,2)}, {vr(ACC+2*i,2)}, {vr(A+62+2*(i%8),2)}")
        for i in range(16): k(f"v_pk_add_f32 {vr(ACC+2*i,2)}, {vr(ACC+2*i,2)}, {vr(A+30+2*i,2)}")
        if G.SPLIT:
            fsrd(k); k("s_lshl_b32 s43, s94, 7",f"s_add_u32 s43, s43, {F7}"); signal(k,43)
            k("s_xor_b32 s94, s94, 1","s_lshl_b32 s43, s94, 7",f"s_add_u32 s43, s43, {F7}","s_lshl_b32 s44, s94, 13","s_add_u32 s45, s44, 4096")
            G.SLP,o=1,G.SLP; poll(k,"e",43,1,1); G.SLP=o
            for j in range(8): k(f"buffer_load_dwordx4 {vr(ACC+32+4*j,4)}, v2, s[{SA}:{SA+3}], s{44+j//4} offen offset:{1024*(j%4)} sc1")
        for j in range(4):
            if G.SPLIT:
                k(f"s_waitcnt vmcnt({6-j})")
                for i in range(4*j,4*j+4): k(f"v_pk_add_f32 {vr(ACC+2*i,2)}, {vr(ACC+2*i,2)}, {vr(ACC+32+2*i,2)}")
            pack(k,FR+4*j,ACC+8*j,8)
            k(f"buffer_store_dwordx4 {vr(FR+4*j,4)}, v7, s[{SO}:{SO+3}], s{41+j//2} offen offset:{64*(j%2)}{G.OUTP}")
    if G.SPLIT: c=mkcfg(xflag=(F4,32,1),split=True,TM=4,TN=4,WM=2,WN=2,NS=4,K=3584,aarg=A_B2,barg=A_OUT,woff=WS_W2,xoff=WS_GF,map="4x8",prologue=zero_acc(64),aux=pro,auxat=2,epilogue=epi,vmax=140)
    else: c=mkcfg(xflag=(F4,32,1),TM=2,TN=4,WM=4,WN=1,NS=6//G.R6,R=G.R6,K=3584,aarg=A_B2,barg=A_OUT,woff=WS_W2,xoff=WS_GF,map="4x8",prologue=zero_acc(32),aux=pro,auxat=G.AUX6//G.R6,epilogue=epi,barpos=1,rstep=1,UNR=G.UNR6,vmax=100)
    return gemm("ffn2",c,km)
def k_prep():
    k=K("prep_kernel",256,512,256+4*8192,nv=256 if G.STAMP else 64)
    stamp0(k)
    k("s_cmp_ge_u32 s2, 256",f"s_cbranch_scc1 {k.lab('end')}",f"s_load_dwordx2 s[4:5], s[0:1], {A_WS}",f"s_load_dwordx4 s[48:51], s[0:1], {A_X}",f"s_load_dwordx2 s[56:57], s[0:1], {A_WO}",f"s_load_dwordx2 s[52:53], s[0:1], {A_B1}",f"s_load_dwordx2 s[54:55], s[0:1], {A_B2}",
      "v_lshrrev_b32 v1, 6, v0","v_and_b32 v0, 63, v0","s_nop 0",f"v_readfirstlane_b32 s30, v1","s_nop 1","s_cmp_ge_u32 s30, 4",f"s_cbranch_scc1 {k.lab('w')}")
    k("v_and_b32 v2, 7, v0","v_lshrrev_b32 v3, 3, v0","v_lshlrev_b32 v4, 11, v2","v_lshl_add_u32 v4, v3, 4, v4","s_lshl_b32 s31, s2, 14","s_lshl_b32 s32, s30, 9","s_add_u32 s31, s31, s32",
      "s_waitcnt lgkmcnt(0)",srd(8,48,0,0x400000))
    for i in range(4): k(f"buffer_load_dwordx4 {vr(8+4*i,4)}, v4, s[8:11], s31 offen offset:{128*i}")
    k(srd(16,4,WS_FL,FLN),"s_lshl_b32 s35, s2, 2","s_add_u32 s35, s35, s30","s_lshl_b32 s35, s35, 10","v_lshlrev_b32 v6, 4, v0","v_mov_b32 v28, 0","v_mov_b32 v29, 0","v_mov_b32 v30, 0","v_mov_b32 v31, 0",
      f"buffer_store_dwordx4 v[28:31], v6, s[16:19], s35 offen{G.STF}")
    stamp(k,1,True)
    k(srd(12,4,WS_XN,0x400000),"s_lshr_b32 s33, s2, 4","s_lshl_b32 s33, s33, 18","s_bfe_u32 s34, s2, 0x30001","s_lshl_b32 s34, s34, 11","s_add_u32 s33, s33, s34",
      "s_and_b32 s34, s2, 1","s_lshl_b32 s34, s34, 7","s_add_u32 s33, s33, s34","s_lshl_b32 s34, s30, 16","s_add_u32 s33, s33, s34",
      "v_lshlrev_b32 v5, 8, v3","v_lshl_add_u32 v5, v2, 4, v5","s_waitcnt vmcnt(1)")
    stamp(k,2)
    unpack(k,32,8,16)
    k("v_pk_add_f32 v[24:25], v[32:33], v[34:35]","v_pk_mul_f32 v[26:27], v[32:33], v[32:33]","v_pk_fma_f32 v[26:27], v[34:35], v[34:35], v[26:27]")
    for i in range(2,16): k(f"v_pk_add_f32 v[24:25], v[24:25], {vr(32+2*i,2)}",f"v_pk_fma_f32 v[26:27], {vr(32+2*i,2)}, {vr(32+2*i,2)}, v[26:27]")
    k("v_add_f32 v24, v24, v25","v_add_f32 v25, v26, v27","s_nop 1","v_add_f32_dpp v24, v24, v24 row_ror:8 row_mask:0xf bank_mask:0xf","v_add_f32_dpp v25, v25, v25 row_ror:8 row_mask:0xf bank_mask:0xf")
    for op in ("v_permlane16_swap_b32","v_permlane32_swap_b32"):
        k("v_mov_b32 v26, v24","v_mov_b32 v27, v25","s_nop 1",f"{op} v24, v26",f"{op} v25, v27","s_nop 1","v_add_f32 v24, v24, v26","v_add_f32 v25, v25, v27")
    k("s_lshl_b32 s34, s30, 6","v_lshlrev_b32 v6, 3, v2","v_add_u32 v7, s34, v6","ds_write_b64 v7, v[24:25]","s_waitcnt lgkmcnt(0)","s_barrier")
    for w in range(4): k(f"ds_read_b64 {vr(8+2*w,2)}, v6 offset:{64*w}")
    k("s_waitcnt lgkmcnt(0)","v_pk_add_f32 v[8:9], v[8:9], v[10:11]","v_pk_add_f32 v[12:13], v[12:13], v[14:15]","v_pk_add_f32 v[24:25], v[8:9], v[12:13]")
    rstd_from(k,24,25,26); k("v_mov_b32 v25, v24","v_mov_b32 v27, v26")
    for i in range(16): k(f"v_pk_add_f32 {vr(32+2*i,2)}, {vr(32+2*i,2)}, v[24:25]")
    for i in range(16): k(f"v_pk_mul_f32 {vr(32+2*i,2)}, {vr(32+2*i,2)}, v[26:27]")
    pack(k,8,32,32)
    for i in range(4): k(f"buffer_store_dwordx4 {vr(8+4*i,4)}, v5, s[12:15], s33 offen{G.STF}","s_add_u32 s33, s33, 16384")
    stamp(k,3)
    if G.STAMP: k("s_waitcnt vmcnt(0)")
    stamp(k,4)
    k("s_endpgm")
    k.label("w")
    k("s_sub_u32 s30, s30, 4","s_mov_b32 s35, 6144"); relayout_addr(k,2,3,35,None,None)
    k("v_lshrrev_b32 v7, 4, v0","v_lshl_add_u32 v3, v7, 9, v3","s_lshl_b32 s36, s30, 13","s_add_u32 s36, s36, 256","v_add_u32 v3, s36, v3","v_lshlrev_b32 v4, 4, v0",
      "s_lshr_b32 s31, s2, 3","s_and_b32 s32, s2, 7","s_mul_i32 s32, s32, 12","s_mul_i32 s33, s30, 3","s_add_u32 s32, s32, s33",
      f"s_mul_i32 s33, s31, {32*6144}","s_lshl_b32 s34, s32, 6","s_add_u32 s33, s33, s34",f"s_add_u32 s34, s33, {16*6144}",
      "s_waitcnt lgkmcnt(0)",srd(8,50,0,1024*6144),srd(12,4,WS_WQ,1024*6144))
    for it in range(3):
        k(f"s_add_u32 m0, s36, {2048*it}","s_nop 0","buffer_load_dwordx4 v2, s[8:11], s33 offen lds",f"s_add_u32 m0, s36, {2048*it+1024}","s_add_u32 s33, s33, 64",
          "buffer_load_dwordx4 v2, s[8:11], s34 offen lds","s_add_u32 s34, s34, 64")
    k(srd(16,56,0,1024*2048),srd(20,4,WS_WO,1024*2048),"s_mov_b32 s35, 2048"); relayout_addr(k,40,41,35,None,None)
    k("s_and_b32 s42, s2, 7","s_lshl_b32 s42, s42, 2","s_add_u32 s42, s42, s30","s_lshl_b32 s33, s31, 16","s_lshl_b32 s34, s42, 6","s_add_u32 s33, s33, s34","s_add_u32 s34, s33, 32768",
      "s_add_u32 m0, s36, 6144","v_lshrrev_b32 v7, 5, v0","buffer_load_dwordx4 v40, s[16:19], s33 offen lds","s_add_u32 m0, s36, 7168","v_lshl_add_u32 v41, v7, 10, v41","buffer_load_dwordx4 v40, s[16:19], s34 offen lds",
      "v_bfe_u32 v7, v0, 4, 1","v_lshl_add_u32 v41, v7, 8, v41","v_add_u32 v41, s36, v41",
      "s_lshr_b32 s43, s42, 1","s_lshl_b32 s43, s43, 17","s_and_b32 s42, s42, 1","s_lshl_b32 s42, s42, 12","s_add_u32 s43, s43, s42","s_lshr_b32 s42, s31, 1","s_lshl_b32 s42, s42, 13","s_add_u32 s43, s43, s42",
      "s_and_b32 s42, s31, 1","s_lshl_b32 s42, s42, 10","s_add_u32 s43, s43, s42")
    k("s_barrier","s_lshr_b32 s37, s31, 1","s_mul_i32 s37, s37, 24576","s_and_b32 s31, s31, 1","s_lshl_b32 s31, s31, 10","s_add_u32 s37, s37, s31")
    for it in range(3):
        k("s_waitcnt vmcnt(6)")
        for t in range(2):
            k(f"ds_read_b64_tr_b16 {vr(8+8*it+4*t,2)}, v3 offset:{2048*it+8*t}",f"ds_read_b64_tr_b16 {vr(10+8*it+4*t,2)}, v3 offset:{2048*it+8*t+256}")
        k("s_lshr_b32 s39, s32, 5","s_bfe_u32 s40, s32, 0x40001",f"s_mul_i32 s40, s40, {16*24576}","s_and_b32 s41, s32, 1","s_mul_i32 s41, s41, 3","s_add_u32 s39, s39, s41","s_lshl_b32 s39, s39, 12",
          "s_add_u32 s39, s39, s40","s_add_u32 s39, s39, s37","s_add_u32 s32, s32, 1","s_waitcnt lgkmcnt(0)")
        for t in range(2): k(f"buffer_store_dwordx4 {vr(8+8*it+4*t,4)}, v4, s[12:15], s39 offen offset:{2048*t}{G.STF}")
    k("s_waitcnt vmcnt(6)")
    for t in range(2): k(f"ds_read_b64_tr_b16 {vr(32+4*t,2)}, v41 offset:{6144+8*t}",f"ds_read_b64_tr_b16 {vr(34+4*t,2)}, v41 offset:{6144+8*t+512}")
    k("s_waitcnt lgkmcnt(0)")
    for t in range(2): k(f"buffer_store_dwordx4 {vr(32+4*t,4)}, v4, s[20:23], s43 offen offset:{2048*t}{G.STF}")
    k("s_cmp_lg_u32 s2, 0",f"s_cbranch_scc1 {k.lab('end')}",srd(8,52,0,7168),srd(12,54,0,2048),"v_lshlrev_b32 v4, 7, v0",
      "buffer_load_dword v5, v4, s[8:11], 0 offen","buffer_load_dword v6, v4, s[12:15], 0 offen","s_waitcnt vmcnt(0)")
    k.label("end"); k("s_endpgm")
    return k
```

```python
from lib import *
from gemm import *
import gemm as G
def k_attn(km=None):
    mega=km is not None; P=G.LDP if mega else ''
    k=begin(km,"attn",163840)
    Q=8; NM=24; SB_=56; O=120; L=152; KF=160; VF=176; SEL=192; IDX=196; VC,VN,VL,VP=2,3,4,201
    S_HEAD,S_QT,S_KH,S_QG,S_NMAX,S_GO,S_M0,S_CUR,S_NXT=31,32,33,35,36,39,40,41,42
    k(
      f"s_load_dwordx2 s[6:7], s[0:1], {A_DBG}",f"s_load_dwordx2 s[48:49], s[0:1], {A_W1}",f"s_load_dwordx2 s[50:51], s[0:1], {A_W2}",
      "s_and_b32 s3, s2, 7","s_lshr_b32 s37, s2, 3",
      f"s_lshl_b32 s{S_HEAD}, s3, 2","s_lshr_b32 s3, s37, 3",f"s_add_u32 s{S_HEAD}, s{S_HEAD}, s3",
      f"s_and_b32 s{S_QG}, s{S_WAVE}, 3",f"s_lshr_b32 s{S_KH}, s{S_WAVE}, 2",
      f"s_and_b32 s{S_QT}, s37, 7",f"s_lshl_b32 s{S_QT}, s{S_QT}, 2",f"s_add_u32 s{S_QT}, s{S_QT}, s{S_QG}",f"s_lshl_b32 s{S_QT}, s{S_QT}, 1",
      f"v_lshlrev_b32 v{VL}, 4, v0",
      f"v_and_b32 v{VP}, 0x23, v0","v_bfe_u32 v5, v0, 2, 1",f"v_lshl_or_b32 v{VP}, v5, 4, v{VP}","v_bfe_u32 v5, v0, 3, 2",f"v_lshl_or_b32 v{VP}, v5, 2, v{VP}",f"v_lshlrev_b32 v{VP}, 4, v{VP}",f"s_mov_b32 s{S_NMAX}, 1","s_waitcnt lgkmcnt(0)",
      srd(8,4,WS_QF,0x400000),srd(12,4,WS_KV,0x800000),srd(16,4,WS_OF,0x400000))
    stamp(k,1,True)
    k.label("retry")
    SJ_SRC,SJ_STEP,SJ_DST,SJ_DA,SJ_DB,SJ_DT,SJ_RS,SJ_LDS=70,71,72,73,74,75,76,77
    VS,VT1,VT2,WF,CSA,ONE=198,199,200,204,212,220
    k("s_cmp_lt_u32 s2, 112",f"s_cbranch_scc0 {k.lab('sj2')}",
      srd(20,48,0,1024*7168),srd(24,4,WS_W1,1024*7168),
      f"s_mul_i32 s37, s2, 2341","s_lshr_b32 s37, s37, 16","s_mul_i32 s43, s37, 28","s_sub_u32 s43, s2, s43","s_lshl_b32 s43, s43, 2",f"s_add_u32 s43, s43, s{S_QG}",
      f"s_mul_i32 s{SJ_SRC}, s37, {256*7168}","s_lshl_b32 s44, s43, 6",f"s_add_u32 s{SJ_SRC}, s{SJ_SRC}, s44",f"s_mov_b32 s{SJ_STEP}, {32*7168}",f"s_mov_b32 s{SJ_RS}, 7168",
      f"s_mul_i32 s78, s37, {3584*4}","s_lshl_b32 s44, s43, 7","s_add_u32 s78, s78, s44",
      "s_mul_i32 s44, s43, 9363","s_lshr_b32 s44, s44, 16","s_mul_i32 s45, s44, 7","s_sub_u32 s45, s43, s45",
      f"s_mul_i32 s{SJ_DST}, s44, {16*28672}",f"s_mul_i32 s44, s37, {4*28672}",f"s_add_u32 s{SJ_DST}, s{SJ_DST}, s44",
      "s_lshl_b32 s44, s45, 1","s_cmp_gt_u32 s45, 3","s_cselect_b32 s46, 1, 0","s_sub_u32 s44, s44, s46","s_lshl_b32 s44, s44, 11",f"s_add_u32 s{SJ_DST}, s{SJ_DST}, s44",
      "s_cmp_eq_u32 s45, 3",f"s_cselect_b32 s{SJ_DT}, 7, 1","s_cselect_b32 s47, 1, 0",f"s_lshl_b32 s{SJ_DT}, s{SJ_DT}, 11",f"s_mov_b32 s{SJ_DA}, 1024",f"s_mov_b32 s{SJ_DB}, {28672-1024}","s_mov_b32 s44, 0",f"s_branch {k.lab('sjd')}")
    k.label("sj2")
    k(srd(20,50,0,3584*2048),srd(24,4,WS_W2,3584*2048),"s_sub_u32 s37, s2, 112",f"s_mov_b32 s45, {56*8192}","s_mov_b32 s44, 0")
    k(f"s_lshl_b32 s{SJ_SRC}, s37, 16",f"s_lshl_b32 s43, s{S_QG}, 9",f"s_add_u32 s{SJ_SRC}, s{SJ_SRC}, s43",f"s_mov_b32 s{SJ_STEP}, 64",f"s_mov_b32 s{SJ_RS}, 2048",
      f"s_lshl_b32 s43, s{S_QG}, 2",f"s_mul_i32 s{SJ_DST}, s43, s45","s_lshr_b32 s43, s37, 1","s_lshl_b32 s43, s43, 13",f"s_add_u32 s{SJ_DST}, s{SJ_DST}, s43",
      "s_and_b32 s43, s37, 1","s_lshl_b32 s43, s43, 10",f"s_add_u32 s{SJ_DST}, s{SJ_DST}, s43",f"s_mov_b32 s{SJ_DT}, 2048",f"s_mov_b32 s{SJ_DA}, 4096",f"s_sub_u32 s{SJ_DB}, s45, 4096","s_mov_b32 s78, 0","s_mov_b32 s47, 0")
    k.label("sjd")
    relayout_addr(k,VS,VT1,SJ_RS,None,None)
    k(f"s_lshl_b32 s{SJ_LDS}, s{S_QG}, 14",f"s_add_u32 s{SJ_LDS}, s{SJ_LDS}, 98304","s_lshr_b32 s45, 512, s44","s_lshl_b32 s46, 256, s44",
      "v_lshrrev_b32 v7, 5, v0",f"v_lshl_add_u32 v{VT1}, v7, 10, v{VT1}","v_bfe_u32 v7, v0, 4, 1","v_mul_lo_u32 v7, s45, v7",f"v_add3_u32 v{VT1}, v{VT1}, v7, s{SJ_LDS}","v_and_b32 v7, 3, v0","v_lshlrev_b32 v7, 3, v7","v_mul_lo_u32 v7, s47, v7",f"v_sub_u32 v{VT1}, v{VT1}, v7",f"v_add_u32 v{VT2}, s46, v{VT1}",
      "s_lshl_b32 s85, s47, 1","s_lshl_b32 s85, 8, s85",f"v_add_u32 v{VT1+3}, s85, v{VT1}",f"v_add_u32 v{VT2+3}, s85, v{VT2}",
      f"s_lshl_b32 s{SJ_RS}, s{SJ_RS}, 4",srd(80,4,WS_CS,4*3584*4))
    for i in range(8): k(f"v_mov_b32 v{CSA+i}, 0")
    for i in range(4): k(f"v_mov_b32 v{ONE+i}, 0x3f803f80")
    def sj_rd(off):
        o=[]
        for t in range(2): o+=[f"ds_read_b64_tr_b16 {vr(WF+4*t,2)}, v{VT1+3*t} offset:{off}",f"ds_read_b64_tr_b16 {vr(WF+4*t+2,2)}, v{VT2+3*t} offset:{off}"]
        return o
    def sj_st(adv):
        o=[f"s_add_u32 s37, s{SJ_DST}, s{SJ_DT}",f"buffer_store_dwordx4 {vr(WF,4)}, v{VL}, s[24:27], s{SJ_DST} offen{G.STW}",f"buffer_store_dwordx4 {vr(WF+4,4)}, v{VL}, s[24:27], s37 offen{G.STW}"]
        for t in range(2): o+=[f"v_mfma_f32_16x16x32_bf16 {vr(CSA+4*t,4)}, {vr(WF+4*t,4)}, {vr(ONE,4)}, {vr(CSA+4*t,4)}"]
        o+=[f"s_add_u32 s{SJ_DST}, s{SJ_DST}, s{SJ_DA}",f"s_mov_b32 s37, s{SJ_DA}",f"s_mov_b32 s{SJ_DA}, s{SJ_DB}",f"s_mov_b32 s{SJ_DB}, s37"]
        if adv: o+=[f"v_add_u32 v{r}, 4096, v{r}" for r in (VT1,VT2,VT1+3,VT2+3)]
        return o
    def sj_load():
        return [f"s_mov_b32 m0, s{SJ_LDS}",f"s_add_u32 s37, s{SJ_SRC}, s{SJ_RS}",f"buffer_load_dwordx4 v{VS}, s[20:23], s{SJ_SRC} offen{G.SJP} lds",f"s_add_u32 m0, s{SJ_LDS}, 1024",
                f"s_add_u32 s{SJ_SRC}, s{SJ_SRC}, s{SJ_STEP}",f"buffer_load_dwordx4 v{VS}, s[20:23], s37 offen{G.SJP} lds",f"s_add_u32 s{SJ_LDS}, s{SJ_LDS}, 2048"]
    S_MODE,S_MT=79,84
    def site(n,mode,code):
        l=k.lab(f"h{n}_{mode}")
        return [f"s_cmp_eq_u32 s{S_MODE}, {mode}",f"s_cbranch_scc0 {l}"]+code+[l+":"]
    k(f"v_mov_b32 v{IDX}, 0xdddddddd","v_bfe_u32 v5, v0, 2, 1","v_cmp_eq_u32 vcc, 0, v5","v_mov_b32 v6, 0x3f803f80","s_nop 0",
      f"v_cndmask_b32 v{SEL}, 0, v6, vcc",f"v_cndmask_b32 v{SEL+1}, 0, v6, vcc",f"v_sub_u32 v{SEL+2}, v6, v{SEL}",f"v_sub_u32 v{SEL+3}, v6, v{SEL}",
      f"s_lshl_b32 s37, s{S_KH}, 14",f"v_add_u32 v5, s37, v{VP}",f"v_mov_b32 v{VC}, v5",f"v_add_u32 v{VN}, 32768, v5",f"s_mov_b32 s{S_CUR}, 0",
      "v_mov_b32 v6, 0xff800000","v_mov_b32 v7, 0xff800000")
    for i in range(40): k(f"v_mov_b32 v{O+i}, 0")
    for i in range(16): k(f"v_mov_b32 v{SB_+48+i}, 0")
    for i in range(16): k(f"v_mov_b32 v{VF+i}, 0")
    k(f"s_cmp_lg_u32 s{S_NMAX}, 1",f"s_cbranch_scc1 {k.lab('go')}")
    fsrd(k)
    k(f"s_cmp_lt_u32 s{S_WAVE}, 4",f"s_cbranch_scc0 {k.lab('ns')}"); signal(k,92); k(f"s_branch {k.lab('pdx')}"); k.label("ns")
    if G.TLB:
        k(f"s_cmp_lg_u32 s{S_WAVE}, 6",f"s_cbranch_scc1 {k.lab('nt')}",f"s_load_dwordx2 s[60:61], s[0:1], {A_OUT}",srd(56,4,0x1000000,0x3500000),f"v_lshlrev_b32 v240, {G.TLB}, v0")
        for j in range(1<<(20-G.TLB)): k(f"s_mov_b32 s43, {j<<(6+G.TLB)}","buffer_load_dword v241, v240, s[56:59], s43 offen sc1")
        k("s_waitcnt lgkmcnt(0)",srd(56,60,0,0x400000),"v_lshlrev_b32 v240, 16, v0","buffer_load_dword v241, v240, s[56:59], 0 offen sc1","s_waitcnt vmcnt(0)"); k.label("nt")
    k(f"s_cmp_lg_u32 s{S_WAVE}, 4",f"s_cbranch_scc1 {k.lab('pdx')}",f"s_lshl_b32 s43, s{S_HEAD}, 12")
    poll(k,"x",43,32,1)
    k("s_barrier"); k.label("go")
    k(f"s_lshl_b32 s37, s{S_HEAD}, 6",f"s_add_u32 s37, s37, s{S_QT}","s_lshl_b32 s37, s37, 11")
    for j in range(4): k(f"buffer_load_dwordx4 {vr(Q+4*j,4)}, v{VL}, s[8:11], s37 offen offset:{1024*j}{P}")
    k(f"s_lshl_b32 s38, s{S_HEAD}, 18")
    for j in range(2): k(f"buffer_load_dwordx4 {vr(KF+4*j,4)}, v{VL}, s[12:15], s38 offen offset:{1024*j}{P}")
    k(f"s_lshl_b32 s{S_GO}, s{S_KH}, 5",f"s_add_u32 s{S_GO}, s{S_GO}, s{S_QG}",f"s_lshl_b32 s{S_GO}, s{S_GO}, 12",f"s_add_u32 s{S_GO}, s{S_GO}, s38",
      f"s_lshl_b32 s{S_M0}, s{S_WAVE}, 12")
    def dma():
        return [f"buffer_load_dwordx4 v{VL}, s[12:15], s{S_GO} offen offset:{1024*j}{P} lds" for j in range(4)]+[f"s_add_u32 s{S_GO}, s{S_GO}, 16384"]
    k(f"s_mov_b32 m0, s{S_M0}","s_nop 0",dma(),f"s_add_u32 m0, s{S_M0}, 32768","s_nop 0",dma())
    k(f"s_mov_b32 s{S_CNT}, s{S_NMAX}","s_waitcnt vmcnt(8)")
    k.label("mx")
    for u in range(2):
        k(f"v_mfma_f32_32x32x16_bf16 {vr(SB_+16*u,16)}, {vr(KF,4)}, {vr(Q+8*u,4)}, 0",f"v_mfma_f32_32x32x16_bf16 {vr(SB_+16*u,16)}, {vr(KF+4,4)}, {vr(Q+8*u+4,4)}, {vr(SB_+16*u,16)}")
    k("s_nop 15")
    for u in range(2):
        for i in range(8): k(f"v_max3_f32 v{6+u}, v{SB_+16*u+2*i}, v{SB_+16*u+2*i+1}, v{6+u}")
    k(f"s_sub_u32 s{S_CNT}, s{S_CNT}, 1",f"s_cmp_eq_u32 s{S_CNT}, 0",f"s_cbranch_scc1 {k.lab('mxd')}","s_add_u32 s38, s38, 4096")
    for j in range(2): k(f"buffer_load_dwordx4 {vr(KF+4*j,4)}, v{VL}, s[12:15], s38 offen offset:{1024*j}{P}")
    k("s_waitcnt vmcnt(0)",f"s_branch {k.lab('mx')}")
    k.label("mxd")
    k(f"v_mov_b32 v{NM}, v6",f"v_mov_b32 v{NM+16}, v7","s_nop 1",f"v_permlane32_swap_b32 v6, v{NM}",f"v_permlane32_swap_b32 v7, v{NM+16}","s_nop 1",
      f"v_max_f32 v6, v6, v{NM}",f"v_max_f32 v7, v7, v{NM+16}")
    for u in range(2):
        for i in range(16): k(f"v_sub_f32 v{NM+16*u+i}, 0, v{6+u}")
    k(f"s_cmp_eq_u32 s{S_KH}, 0",f"s_cbranch_scc1 {k.lab('w4')}","s_waitcnt vmcnt(0)"); k.label("w4")
    k("s_waitcnt vmcnt(4)","s_barrier"); stamp(k,2)
    def rdK(t):
        a,o=(VC,t*4096) if t<4 else (VN,(t-4)*4096)
        return [f"ds_read_b128 {vr(KF+8*(t%2)+4*j,4)}, v{a} offset:{o+1024*j}" for j in range(2)]
    def rdV(t): return [f"ds_read_b128 {vr(VF+8*(t%2)+4*j,4)}, v{VC} offset:{t*4096+2048+1024*j}" for j in range(2)]
    def qk(n):
        t,u=n//2,n%2; b=SB_+16*(n%4); kf=KF+8*(t%2)
        return [f"v_mfma_f32_32x32x16_bf16 {vr(b,16)}, {vr(kf,4)}, {vr(Q+8*u,4)}, {vr(NM+16*u,16)}",
                f"v_mfma_f32_32x32x16_bf16 {vr(b,16)}, {vr(kf+4,4)}, {vr(Q+8*u+4,4)}, {vr(b,16)}"]
    def pv(n):
        t,u=n//2,n%2; b=SB_+16*(n%4); vf=VF+8*(t%2)
        return [f"v_smfmac_f32_32x32x32_bf16 {vr(O+16*u,16)}, {vr(vf+4*j,4)}, {vr(b+8*j,8)}, v{IDX}" for j in range(2)]
    def sm(n):
        u=n%2; b=SB_+16*(n%4)
        return [f"v_smfmac_f32_16x16x64_bf16 {vr(L+4*u,4)}, {vr(SEL,4)}, {vr(b+8*j,8)}, v{IDX}" for j in range(2)]
    k(rdK(0),rdK(1),"s_waitcnt lgkmcnt(2)",qk(0),qk(1),f"s_mov_b32 s{S_CNT}, 0","s_nop 7","s_nop 1")
    k(f"s_mov_b32 s{S_MT}, 0x00111111",f"s_cmp_eq_u32 s{S_KH}, 0",f"s_cbranch_scc1 {k.lab('mt')}",f"s_mov_b32 s{S_MT}, 0x33332222","s_cmp_lt_u32 s2, 224",f"s_cselect_b32 s{S_MT}, s{S_MT}, 0x44444444",
      f"s_add_u32 s37, s{S_NMAX}, s{S_WAVE}","s_cmp_lg_u32 s37, 5",f"s_cbranch_scc1 {k.lab('mt')}",srd(56,6,0,256),"s_and_b32 s37, s2, 3","s_lshl_b32 s37, s37, 6",
      "v_mov_b32 v240, 4","v_mov_b32 v241, 1","s_mov_b64 exec, 1","buffer_atomic_add v241, v240, s[56:59], s37 offen sc1","s_mov_b64 exec, -1"); k.label("mt")
    if G.APRIO: k(f"s_cmp_eq_u32 s{S_KH}, {G.APRIO-1}",f"s_cbranch_scc0 {k.lab('np')}","s_setprio 1"); k.label("np")
    k(".p2align 3"); k.label("loop")
    for n in range(8):
        b=SB_+16*(n%4); e=[f"v_exp_f32 v{b+i}, v{b+i}" for i in range(16)]
        a,p,s=qk(n+2),pv(n-1),sm(n-1)
        rd=rdV(n//2) if n%2==0 else rdK(n//2+2)
        hk=[]
        if n==0: k(f"s_and_b32 s{S_MODE}, s{S_MT}, 15",f"s_lshr_b32 s{S_MT}, s{S_MT}, 4")
        if n==4 and not G.XNB:
            l=k.lab("nw")
            k(f"s_cmp_ge_u32 s{S_MODE}, 2",f"s_cbranch_scc1 {l}","s_waitcnt vmcnt(0)",l+":","s_barrier")
        if n in (4,5) and not G.XND:
            if n==4: pre=[f"s_add_u32 s37, s{S_CUR}, 65536","s_sub_u32 s38, s37, 98304","s_cmp_ge_u32 s37, 98304","s_cselect_b32 s37, s38, s37",f"s_add_u32 m0, s37, s{S_M0}","s_nop 0"]
            if n==5: pre=["s_add_u32 m0, m0, 16384",f"s_add_u32 s{S_GO}, s{S_GO}, 131072"]
            ld=[f"buffer_load_dwordx4 v{VL}, s[12:15], s{S_GO} offen offset:{1024*j}{P} lds" for j in range(4)]
            rd[0]=[rd[0]]+site(n+10,1,pre+ld[:2])
            hk+=site(n,1,ld[2:]+([f"s_sub_u32 s{S_GO}, s{S_GO}, {131072-16384}"] if n==5 else []))
        if G.SJ:
            if n in G.SJL and G.SJ&1: hk+=site(n,2,sj_load())
            if n%4==0: hk+=site(n,3,(["s_waitcnt vmcnt(12)"] if n==0 else [])+sj_rd(2048*(n//4)))
            if n%4==2 and G.SJ&2: hk+=site(n,3,sj_st(n==6))
        rd=[rd[0],[rd[1]]+hk]
        if G.XNR: rd=[[],[]]
        W="s_waitcnt lgkmcnt(0)"
        if G.AORD==0: k(e[0:2],W,a[0],rd,e[2:5],p[0],e[5:7],s[0],e[7:10],a[1],e[10:12],p[1],e[12:15],s[1],e[15])
        if G.AORD==1: k(e[0:2],W,a[0],rd,e[2:5],p[0],e[5:8],s[0],e[8:9],a[1],e[9:12],p[1],e[12:15],s[1],e[15])
        if G.AORD==2: k(W,a[0],e[0:3],a[1],rd,e[3:6],p[0],e[6:9],s[0],e[9:11],p[1],e[11:14],s[1],e[14:16])
        if G.AORD==3: k(W,s[0],a[0],rd[0],e[0:4],p[0],e[4:8],s[1],a[1],rd[1],e[8:12],p[1],e[12:16])
        if G.AORD==4: k(W,a[0],e[0:4],p[0],rd[0],e[4:7],s[0],e[7:8],a[1],e[8:12],p[1],rd[1],e[12:15],s[1],e[15:16])
    k(f"s_add_u32 s{S_CUR}, s{S_CUR}, 32768",f"s_cmp_ge_u32 s{S_CUR}, 98304",f"s_cselect_b32 s{S_CUR}, 0, s{S_CUR}",
      f"s_add_u32 s37, s{S_CUR}, 32768","s_cmp_ge_u32 s37, 98304","s_cselect_b32 s37, 0, s37",
      f"v_mov_b32 v{VC}, v{VN}",f"v_add_u32 v{VN}, s37, v5",
      f"s_add_u32 s{S_CNT}, s{S_CNT}, 1",f"s_cmp_lt_u32 s{S_CNT}, 8",f"s_cbranch_scc1 {k.lab('loop')}")
    k(pv(7),sm(7),"s_waitcnt lgkmcnt(0)","s_barrier"); stamp(k,3)
    k("s_cmp_lt_u32 s2, 112",f"s_cbranch_scc0 {k.lab('nocs')}",f"s_cmp_eq_u32 s{S_KH}, 1",f"s_cbranch_scc0 {k.lab('nocs')}","v_lshrrev_b32 v7, 4, v0","s_sub_u32 s37, 5, s47","v_lshlrev_b32 v7, s37, v7","s_lshl_b32 s85, s85, 1","v_and_b32 v6, 1, v0","v_cmp_eq_u32 vcc, 1, v6","v_mul_lo_u32 v6, s85, v6","v_add_u32 v7, v6, v7",
      [f"v_cndmask_b32 v{WF+r}, v{CSA+r}, v{CSA+4+r}, vcc" for r in range(4)],"s_mov_b32 exec_lo, 0x30003","s_mov_b32 exec_hi, 0x30003",
      f"buffer_store_dwordx4 {vr(WF,4)}, v7, s[80:83], s78 offen sc1","s_mov_b64 exec, -1")
    k.label("nocs")
    k(f"s_mul_i32 s37, s{S_WAVE}, 5120",f"s_xor_b32 s38, s{S_WAVE}, 4","s_mul_i32 s38, s38, 5120",f"v_add_u32 v6, s37, v{VL}",f"v_add_u32 v7, s38, v{VL}","s_nop 7",
      f"s_cmp_eq_u32 s{S_KH}, 0",f"s_cbranch_scc1 {k.lab('kh0')}")
    for j in range(4): k(f"ds_write_b128 v6, {vr(O+4*j,4)} offset:{1024*j}")
    k(f"ds_write_b128 v6, {vr(L,4)} offset:4096")
    k("s_nop 1")
    for i in range(16): k(f"v_mov_b32 v{O+i}, v{O+16+i}")
    k(f"v_mov_b32 v{L}, v{L+4}",f"s_branch {k.lab('khd')}")
    k.label("kh0")
    for j in range(4): k(f"ds_write_b128 v6, {vr(O+16+4*j,4)} offset:{1024*j}")
    k(f"ds_write_b128 v6, {vr(L+4,4)} offset:4096")
    k.label("khd")
    k("v_mov_b32 v1, 0","v_mov_b32 v197, 163776","ds_write_b32 v197, v1","s_waitcnt lgkmcnt(0)","s_barrier")
    for j in range(4): k(f"ds_read_b128 {vr(SB_+4*j,4)}, v7 offset:{1024*j}")
    k(f"ds_read_b128 {vr(SB_+16,4)}, v7 offset:4096","s_waitcnt lgkmcnt(0)",f"v_add_f32 v{L}, v{L}, v{SB_+16}",f"v_rcp_f32 v{L+2}, v{L}")
    for i in range(8): k(f"v_pk_add_f32 {vr(O+2*i,2)}, {vr(O+2*i,2)}, {vr(SB_+2*i,2)}")
    k(f"v_mov_b32 v{L+3}, v{L+2}")
    for i in range(8): k(f"v_pk_mul_f32 {vr(O+2*i,2)}, {vr(O+2*i,2)}, {vr(L+2,2)}")
    pack(k,SB_,O)
    k(f"s_add_u32 s37, s{S_QT}, s{S_KH}","s_lshr_b32 s38, s37, 2","s_lshl_b32 s38, s38, 18","s_and_b32 s37, s37, 3","s_lshl_b32 s37, s37, 12","s_add_u32 s37, s37, s38",
      f"s_lshr_b32 s38, s{S_HEAD}, 1","s_lshl_b32 s38, s38, 14","s_add_u32 s37, s37, s38",f"s_and_b32 s38, s{S_HEAD}, 1","s_lshl_b32 s38, s38, 10","s_add_u32 s37, s37, s38",
      "v_and_b32 v6, 15, v0","v_lshlrev_b32 v6, 4, v6","v_bfe_u32 v7, v0, 4, 1","v_lshl_add_u32 v6, v7, 11, v6","v_lshrrev_b32 v7, 5, v0","v_lshl_add_u32 v6, v7, 9, v6")
    for j in range(2): k(f"buffer_store_dwordx4 {vr(SB_+4*j,4)}, v6, s[16:19], s37 offen offset:{256*j}{G.STF}")
    k(f"s_cmp_lg_u32 s{S_NMAX}, 1",f"s_cbranch_scc1 {k.lab('ok')}")
    for i in range(16): k(f"v_fma_f32 v{L}, v{O+i}, 0, v{L}")
    k(f"v_mov_b32 v7, {f2u(2.0**60)}",f"v_cmp_nlt_f32 vcc, v{L}, v7","s_nop 4","s_cmp_eq_u64 vcc, 0",f"s_cbranch_scc1 {k.lab('ok')}",
      "v_mov_b32 v1, 1","ds_write_b32 v197, v1")
    k.label("ok")
    k(f"s_cmp_eq_u32 s{S_KH}, 0",f"s_cbranch_scc1 {k.lab('pdw')}",srd(56,6,0,256),"s_mov_b32 s43, 4"); poll(k,"w",43,4,64,sh=6,SF=56)
    k("s_waitcnt vmcnt(0) lgkmcnt(0)","s_barrier","ds_read_b32 v1, v197","s_waitcnt lgkmcnt(0)","v_readfirstlane_b32 s37, v1","s_nop 3","s_cmp_eq_u32 s37, 0",f"s_cbranch_scc1 {k.lab('store')}",
      f"s_mov_b32 s{S_NMAX}, 64","s_barrier",f"s_branch {k.lab('retry')}")
    k.label("store")
    if mega:
        k("s_setprio 0",f"s_add_u32 s43, s{S_QT}, s{S_KH}","s_lshl_b32 s43, s43, 5",f"s_add_u32 s43, s43, s{S_HEAD}","s_lshl_b32 s43, s43, 7",f"s_add_u32 s43, s43, {F2}"); signal(k,43)
        k(f"s_cmp_eq_u32 s{S_WAVE}, 0",f"s_cbranch_scc0 {k.lab('nsj')}","s_lshl_b32 s43, s2, 2",f"s_add_u32 s43, s43, {F5}",
          "s_mov_b64 exec, 1",f"buffer_store_dword v241, v240, s[{SF}:{SF+3}], s43 offen sc1","s_mov_b64 exec, -1")
        k.label("nsj")
    if G.STAMP and not mega: k("s_waitcnt vmcnt(0)")
    stamp(k,4)
    return k if mega else finish(k)
```

```python
from lib import *
import gemm as G
from gemm import *
import math
def mkcfg(**kw):
    c=Cfg(); c.aarg=None; c.barg=None; c.loader_head=None; c.loader_tail=None; c.lds_extra=0; c.swap=lambda tn:False; c.acc0=8; c.vmax=252; c.barpos=G.BP; c.rstep=G.RS; c.UNR=G.UNR; c.aux=None; c.auxat=0; c.P0=G.P0; c.R=1; c.xflag=None; c.wflag=None; c.sig=None; c.wlate=False; c.split=False; c.gate=G.GATE
    c.__dict__.update(kw); return c
def unpack(k,dst,src,n):
    for i in range(n): k(f"v_lshlrev_b32 v{dst+2*i}, 16, v{src+i}",f"v_and_b32 v{dst+2*i+1}, 0xffff0000, v{src+i}")
def rstd_from(k,s,q,out):
    k(f"v_mul_f32 v{s}, {f2u(-1/1024)}, v{s}",f"v_mul_f32 v{q}, {f2u(1/1024)}, v{q}",f"v_fma_f32 v{q}, -v{s}, v{s}, v{q}",f"v_max_f32 v{q}, 0, v{q}",
      f"v_add_f32 v{q}, {f2u(1e-5)}, v{q}",f"v_rsq_f32 v{out}, v{q}")
def k_qkv(km=None):
    def epi(k,ACC,FR,X):
        k(srd(SO,P_WS,WS_QF,0x400000),srd(SA,P_WS,WS_KV,0x800000))
        k(f"s_lshl_b32 s{S_T}, s{S_MI}, 2",f"s_lshl_b32 s3, s{S_WM}, 1",f"s_add_u32 s{S_T}, s{S_T}, s3",
          f"s_lshl_b32 s{S_T2}, s{S_NI}, 1",f"s_add_u32 s{S_T2}, s{S_T2}, s{S_WN}",f"s_lshl_b32 s{S_T2}, s{S_T2}, 6",f"s_add_u32 s{S_T}, s{S_T}, s{S_T2}",
          f"s_lshl_b32 s41, s{S_T}, 11",f"s_lshl_b32 s42, s{S_T}, 12","s_add_u32 s43, s42, 4096",
          f"s_mov_b32 s52, {f2u(math.log2(math.e)/math.sqrt(32))}",f"s_mov_b32 s53, s52",
          "v_lshrrev_b32 v4, 4, v0","v_lshlrev_b32 v4, 9, v4","v_and_b32 v5, 15, v0","v_lshl_add_u32 v2, v5, 4, v4",
          )
        d=FR
        for tm in range(4):
            a=ACC+24*tm; sk=42+tm//2
            pack(k,d,a+8,8); k(f"buffer_store_dwordx4 {vr(d,4)}, v2, s[{SA}:{SA+3}], s{sk} offen offset:{256*(tm%2)}{G.STF}"); d+=4
            if tm%2:
                for t in range(2):
                    pack(k,d,a-24+16+4*t,4); pack(k,d+2,a+16+4*t,4)
                    k(f"buffer_store_dwordx4 {vr(d,4)}, v2, s[{SA}:{SA+3}], s{sk} offen offset:{2048+256*t}{G.STF}"); d+=4
            for i in range(4): k(f"v_pk_mul_f32 {vr(a+2*i,2)}, {vr(a+2*i,2)}, s[52:53]")
            pack(k,d,a,8); k(f"buffer_store_dwordx4 {vr(d,4)}, v2, s[{SO}:{SO+3}], s41 offen offset:{2048*(tm//2)+256*(tm%2)}{G.STF}"); d+=4
    def sig(k):
        k(f"s_lshl_b32 s43, s{S_NI}, 1",f"s_add_u32 s43, s43, s{S_WN}","s_lshl_b32 s43, s43, 5",f"s_lshl_b32 s3, s{S_MI}, 1","s_add_u32 s43, s43, s3",f"s_add_u32 s43, s43, s{S_WM}","s_lshl_b32 s43, s43, 7"); signal(k,43)
    c=mkcfg(sig=sig,TM=4,TN=6,WM=2,WN=2,NS=4,K=1024,woff=WS_WQ,xoff=WS_XN,map="8x4",swap=lambda tn:tn>=4,prologue=zero_acc(96),epilogue=epi)
    return gemm("qkv",c,km)
def rowmajor_addr(k,v,sdst):
    k(f"s_lshl_b32 s{sdst}, s{S_MI}, 2",f"s_add_u32 s{sdst}, s{sdst}, s{S_WM}",f"s_lshl_b32 s{sdst}, s{sdst}, 16",f"s_lshl_b32 s3, s{S_NI}, 7",f"s_add_u32 s{sdst}, s{sdst}, s3",
      f"s_add_u32 s{sdst+1}, s{sdst}, 32768",f"v_and_b32 v{v}, 15, v0",f"v_lshlrev_b32 v{v}, 11, v{v}","v_lshrrev_b32 v1, 4, v0",f"v_lshl_add_u32 v{v}, v1, 4, v{v}")
def hunit_addr(k,sdst):
    k(f"s_lshl_b32 s{sdst}, s{S_MI}, 18",f"s_lshl_b32 s3, s{S_NI}, 14",f"s_add_u32 s{sdst}, s{sdst}, s3",f"s_lshl_b32 s3, s{S_WM}, 12",f"s_add_u32 s{sdst}, s{sdst}, s3")
def k_oproj(km=None):
    def pro(k):
        k(srd(SA,P_A,0,0x400000)); rowmajor_addr(k,7,41)
        for j in range(4): k(f"buffer_load_dwordx4 {vr(100+4*j,4)}, v7, s[{SA}:{SA+3}], s{41+j//2} offen offset:{64*(j%2)}")
    def epi(k,ACC,FR,X):
        k(srd(SO,P_WS,WS_HF,0x400000),srd(SB,P_WS,WS_ST,2048*128)); hunit_addr(k,41)
        k("s_waitcnt vmcnt(0)"); unpack(k,120,100,16)
        for i in range(16): k(f"v_pk_add_f32 {vr(ACC+2*i,2)}, {vr(ACC+2*i,2)}, {vr(120+2*i,2)}")
        pack(k,FR,ACC,32)
        for j in range(4): k(f"buffer_store_dwordx4 {vr(FR+4*j,4)}, v2, s[{SO}:{SO+3}], s41 offen offset:{1024*j}{G.STF}")
        for tm in range(2):
            a=ACC+16*tm; s_,q_=100+4*tm,102+4*tm
            k(f"v_pk_add_f32 {vr(s_,2)}, {vr(a,2)}, {vr(a+2,2)}",f"v_pk_mul_f32 {vr(q_,2)}, {vr(a,2)}, {vr(a,2)}",f"v_pk_fma_f32 {vr(q_,2)}, {vr(a+2,2)}, {vr(a+2,2)}, {vr(q_,2)}")
            for i in range(2,8): k(f"v_pk_add_f32 {vr(s_,2)}, {vr(s_,2)}, {vr(a+2*i,2)}",f"v_pk_fma_f32 {vr(q_,2)}, {vr(a+2*i,2)}, {vr(a+2*i,2)}, {vr(q_,2)}")
            k(f"v_add_f32 v{s_}, v{s_}, v{s_+1}",f"v_add_f32 v{q_}, v{q_}, v{q_+1}")
        k(f"s_lshl_b32 s42, s{S_MI}, 2",f"s_add_u32 s42, s42, s{S_WM}","s_lshl_b32 s42, s42, 12",f"s_lshl_b32 s3, s{S_NI}, 8","s_add_u32 s42, s42, s3",
          "v_permlane32_swap_b32 v100, v104","v_permlane32_swap_b32 v102, v106","v_and_b32 v3, 15, v0","v_lshlrev_b32 v3, 3, v3",
          "v_add_f32 v100, v100, v104","v_add_f32 v102, v102, v106","v_lshrrev_b32 v4, 5, v0","v_lshl_add_u32 v3, v4, 7, v3",
          "v_permlane16_swap_b32 v100, v102","v_bfe_u32 v4, v0, 4, 1","v_lshl_add_u32 v3, v4, 2, v3","v_add_f32 v100, v100, v102",
          f"buffer_store_dword v100, v3, s[{SB}:{SB+3}], s42 offen sc1")
    def sig(k):
        k(f"s_lshl_b32 s43, s{S_MI}, 2",f"s_add_u32 s43, s43, s{S_WM}","s_lshl_b32 s43, s43, 4",f"s_add_u32 s43, s43, s{S_NI}","s_lshl_b32 s43, s43, 7",f"s_add_u32 s43, s43, {F3}"); signal(k,43)
    k=begin(km,"oproj",0); D=G.XD; ACC=8; FR=40; XR=256-16-8*D
    k(f"s_load_dwordx2 s[{P_A}:{P_A+1}], s[0:1], {A_X}",f"s_and_b32 s{S_T}, s2, 7",f"s_lshr_b32 s{S_T2}, s2, 3"); wgmap(k,"4x8")
    k("v_lshlrev_b32 v2, 4, v0",f"s_cmp_lt_u32 s{S_WAVE}, 4",f"s_cbranch_scc1 {k.lab('cons')}")
    k(srd(SW,P_WS,WS_WO,1024*2048),f"s_sub_u32 s41, s{S_WAVE}, 4","s_lshl_b32 s41, s41, 12",f"s_lshl_b32 s42, s{S_NI}, 17","s_add_u32 s42, s42, s41")
    for it in range(8):
        k("s_mov_b32 m0, s41","s_add_u32 s41, s41, 16384",[f"buffer_load_dwordx4 v2, s[{SW}:{SW+3}], s42 offen offset:{1024*u} sc1 lds" for u in range(4)],"s_add_u32 s42, s42, 16384")
        if G.WSP and it==4: k("s_waitcnt vmcnt(4)","s_barrier")
    k("s_waitcnt vmcnt(0)","s_barrier","s_barrier",f"s_branch {k.lab('end')}")
    k.label("cons")
    k(f"s_mov_b32 s{S_WM}, s{S_WAVE}",srd(SX,P_WS,WS_OF,0x400000),f"s_lshl_b32 s{S_XO}, s{S_MI}, 18",f"s_lshl_b32 s3, s{S_WM}, 12",f"s_add_u32 s{S_XO}, s{S_XO}, s3",
      f"s_lshl_b32 s43, s{S_MI}, 2",f"s_add_u32 s43, s43, s{S_WM}","s_lshl_b32 s43, s43, 12",f"s_add_u32 s43, s43, {F2}","v_add_u32 v3, 65536, v2","s_waitcnt lgkmcnt(0)")
    zero_acc(32)(k,ACC,FR); stamp(k,1,True); pro(k); poll(k,"x",43,32,1)
    def xl(t): return [f"buffer_load_dwordx4 {vr(XR+8*(t%D)+4*tm,4)}, v2, s[{SX}:{SX+3}], s{S_XO} offen offset:{2048*tm+1024*(t%2)} sc1" for tm in range(2)]+([f"s_add_u32 s{S_XO}, s{S_XO}, 16384"] if t%2 else [])
    def wr(t): return [f"ds_read_b128 {vr(FR+16*(t%2)+4*tn,4)}, v{2+t//16} offset:{((t//2)%8)*8192+tn*2048+(t%2)*1024}" for tn in range(4)]
    for t in range(D): k(xl(t))
    k("s_barrier"); stamp(k,2); k(wr(0))
    for t in range(32):
        n=2*(min(32,t+D)-t-1)+(2 if G.STAMP and t<D else 0)
        if G.WSP and t==15: k("s_barrier")
        k(wr(t+1) if t<31 else [],f"s_waitcnt vmcnt({n}) lgkmcnt({4 if t<31 else 0})")
        if t==31: k("s_barrier")
        for tn in range(4):
            for tm in range(2): a=ACC+4*(tm*4+tn); k(f"v_mfma_f32_16x16x32_bf16 {vr(a,4)}, {vr(FR+16*(t%2)+4*tn,4)}, {vr(XR+8*(t%D)+4*tm,4)}, {vr(a,4)}")
        if t+D<32: k(xl(t+D))
    k("s_nop 7"); stamp(k,3); epi(k,ACC,FR,0); sig(k); stamp(k,4); k.label("end")
    return k
def k_ffn1(km=None):
    def lhead(k):
        k(srd(SA,P_WS,WS_CS,4*3584*4),srd(SB,P_A,0,3584*2),f"s_lshl_b32 s{S_T}, s{S_WAVE}, 6",f"v_add_u32 v20, s{S_T}, v0",
          f"s_mul_i32 s{S_T}, s{S_NI}, 224",f"v_add_u32 v21, s{S_T}, v20","v_lshlrev_b32 v22, 2, v21","v_lshlrev_b32 v21, 1, v21",
          f"buffer_load_ushort v40, v21, s[{SB}:{SB+3}], 0 offen")
        for p in range(4): k(f"s_mov_b32 s{S_T}, {p*3584*4}",f"buffer_load_dword v{24+p}, v22, s[{SA}:{SA+3}], s{S_T} offen sc1")
        return 5
    def ltail(k,X):
        for p in range(1,4): k(f"v_add_f32 v24, v24, v{24+p}")
        k("v_lshlrev_b32 v40, 16, v40","v_lshrrev_b32 v21, 5, v20","v_bfe_u32 v22, v20, 2, 1","v_lshl_add_u32 v25, v21, 1, v22",
          "v_bfe_u32 v28, v20, 3, 2","v_bfe_u32 v29, v20, 2, 2","v_bfe_u32 v22, v20, 4, 1",
          "v_cmp_lt_u32 vcc, 3, v21","v_subrev_u32 v26, 1, v25","v_mul_u32_u24 v27, 7, v22","v_cndmask_b32 v25, v25, v26, vcc","v_cmp_eq_u32 vcc, 3, v21","v_add_u32 v27, 6, v27","s_nop 0","v_cndmask_b32 v25, v25, v27, vcc","v_cndmask_b32 v28, v28, v29, vcc",
          "v_cmp_eq_u32 vcc, 7, v21","v_mov_b32 v27, 15","s_nop 0","v_cndmask_b32 v25, v25, v27, vcc",
          "v_lshlrev_b32 v25, 6, v25","v_lshl_add_u32 v25, v28, 4, v25","v_and_b32 v26, 3, v20","v_lshl_add_u32 v25, v26, 2, v25",
          f"v_add_u32 v25, {X}, v25","ds_write_b32 v25, v24","ds_write_b32 v25, v40 offset:1024","s_waitcnt lgkmcnt(0)")
    ST=208
    def pro(k):
        k(srd(SB,P_WS,WS_ST,2048*128),f"s_lshl_b32 s{S_T}, s{S_MI}, 1",f"s_add_u32 s{S_T}, s{S_T}, s{S_WM}",f"s_lshl_b32 s{S_T}, s{S_T}, 13",
          "v_and_b32 v7, 15, v0","v_lshlrev_b32 v7, 3, v7","v_lshrrev_b32 v1, 4, v0","v_lshl_add_u32 v7, v1, 10, v7")
        for tm in range(4):
            if tm==2: k(f"s_add_u32 s{S_T}, s{S_T}, 4096")
            for j in range(4): k(f"buffer_load_dwordx2 {vr(ST+8*tm+2*j,2)}, v7, s[{SB}:{SB+3}], s{S_T} offen offset:{128*(tm%2)+256*j} sc1")
    def epi(k,ACC,FR,X):
        k(srd(SO,P_WS,WS_GF,2048*3584*2))
        CSR=FR; BR=FR+28; T=FR+56
        k(f"s_mul_i32 s3, s{S_WN}, 448",f"s_add_u32 s3, s3, {X}","v_lshrrev_b32 v3, 4, v0","v_lshlrev_b32 v3, 4, v3","v_add_u32 v3, s3, v3")
        for tn in range(7): k(f"ds_read_b128 {vr(CSR+4*tn,4)}, v3 offset:{64*tn}",f"ds_read_b128 {vr(BR+4*tn,4)}, v3 offset:{1024+64*tn}")
        k(f"s_mul_i32 s41, s{S_MI}, {3584*256}",f"s_lshl_b32 s3, s{S_WM}, 13","s_add_u32 s41, s41, s3",f"s_mul_i32 s42, s{S_NI}, 7",f"s_lshl_b32 s43, s{S_WN}, 2")
        for p in range(4):
            if p<3: k(f"s_add_u32 s3, s42, s43",f"s_add_u32 s3, s3, {p}")
            else: k("s_add_u32 s3, s42, 3")
            k(f"s_lshr_b32 s{54+p}, s3, 1",f"s_lshl_b32 s{54+p}, s{54+p}, 14","s_and_b32 s3, s3, 1","s_lshl_b32 s3, s3, 10",f"s_add_u32 s{54+p}, s{54+p}, s3",f"s_add_u32 s{54+p}, s{54+p}, s41")
        k(f"s_lshl_b32 s3, s{S_WN}, 9","s_add_u32 s57, s57, s3","v_add_u32 v7, 4096, v2",
          "v_and_b32 v6, 15, v0","v_lshlrev_b32 v6, 4, v6","v_bfe_u32 v1, v0, 4, 1","v_lshl_add_u32 v6, v1, 11, v6","v_lshrrev_b32 v1, 5, v0","v_lshl_add_u32 v6, v1, 8, v6","s_waitcnt vmcnt(0)")
        for tm in range(4):
            r=ST+8*tm
            k(f"v_pk_add_f32 {vr(r,2)}, {vr(r,2)}, {vr(r+2,2)}",f"v_pk_add_f32 {vr(r+4,2)}, {vr(r+4,2)}, {vr(r+6,2)}",f"v_pk_add_f32 {vr(r,2)}, {vr(r,2)}, {vr(r+4,2)}")
        for op in ("v_permlane16_swap_b32","v_permlane32_swap_b32"):
            for tm in range(4): r=ST+8*tm; k(f"v_mov_b32 v{r+2}, v{r}",f"v_mov_b32 v{r+3}, v{r+1}")
            k("s_nop 1")
            for tm in range(4): r=ST+8*tm; k(f"{op} v{r}, v{r+2}",f"{op} v{r+1}, v{r+3}")
            k("s_nop 1")
            for tm in range(4): r=ST+8*tm; k(f"v_pk_add_f32 {vr(r,2)}, {vr(r,2)}, {vr(r+2,2)}")
        for tm in range(4): r=ST+8*tm; rstd_from(k,r,r+1,r+2); k(f"v_mov_b32 v{r+1}, v{r}",f"v_mov_b32 v{r+3}, v{r+2}")
        a_=-2*0.7978845608028654*math.log2(math.e); b_=a_*0.044715
        k(f"s_mov_b32 s52, {f2u(b_)}",f"s_mov_b32 s53, {f2u(b_)}",f"v_mov_b32 v4, {f2u(a_)}",f"v_mov_b32 v5, {f2u(a_)}","s_waitcnt lgkmcnt(0)")
        fsrd(k)
        k(f"s_lshl_b32 s43, s{S_MI}, 1",f"s_add_u32 s43, s43, s{S_WM}","s_lshl_b32 s43, s43, 5",f"s_lshl_b32 s3, s{S_NI}, 1","s_add_u32 s43, s43, s3",f"s_add_u32 s43, s43, s{S_WN}","s_lshl_b32 s43, s43, 7",
          f"s_add_u32 s92, s43, {F4}",f"s_add_u32 s43, s43, {F8}")
        for p in range(4):
            n=4 if p<3 else 2; I=[(tm,i) for tm in range(4) for i in range(n)]
            A=lambda tm,i:vr(ACC+28*tm+8*p+2*i,2); TT=lambda tm,i:vr(T+2*(n*tm+i),2)
            for tm,i in I: k(f"v_pk_fma_f32 {A(tm,i)}, {vr(CSR+8*p+2*i,2)}, {vr(ST+8*tm,2)}, {A(tm,i)}")
            for tm,i in I: k(f"v_pk_fma_f32 {A(tm,i)}, {A(tm,i)}, {vr(ST+8*tm+2,2)}, {vr(BR+8*p+2*i,2)}")
            for tm,i in I: k(f"v_pk_mul_f32 {TT(tm,i)}, {A(tm,i)}, {A(tm,i)}")
            for tm,i in I: k(f"v_pk_fma_f32 {TT(tm,i)}, {TT(tm,i)}, s[52:53], v[4:5]")
            for tm,i in I: k(f"v_pk_mul_f32 {TT(tm,i)}, {TT(tm,i)}, {A(tm,i)}")
            for i in range(8*n): k(f"v_exp_f32 v{T+i}, v{T+i}")
            for tm,i in I: k(f"v_pk_add_f32 {TT(tm,i)}, {TT(tm,i)}, 1.0 op_sel_hi:[1,0]")
            for i in range(8*n): k(f"v_rcp_f32 v{T+i}, v{T+i}")
            for tm,i in I: k(f"v_pk_mul_f32 {TT(tm,i)}, {TT(tm,i)}, {A(tm,i)}")
            if p==2 and G.EARLY and G.SPLIT: signal(k,43)
            for tm in range(4):
                if p<3:
                    d=ACC+28*tm+8*p; pack(k,d,T+8*tm,8)
                    k(f"buffer_store_dwordx4 {vr(d,4)}, v{2 if tm<2 else 7}, s[{SO}:{SO+3}], s{54+p} offen offset:{2048*(tm%2)}{G.STF}")
                else: pack(k,ACC+28*(tm&~1)+24+2*(tm%2),T+4*tm,4)
            if p==3:
                k("s_nop 1")
                for h in range(2):
                    sg=ACC+56*h+24
                    k(f"v_permlane16_swap_b32 v{sg}, v{sg+2}",f"v_permlane16_swap_b32 v{sg+1}, v{sg+3}",f"buffer_store_dwordx4 {vr(sg,4)}, v6, s[{SO}:{SO+3}], s57 offen{G.STF}","s_add_u32 s57, s57, 4096")
    def sig(k):
        if not (G.EARLY and G.SPLIT): signal(k,92)
    c=mkcfg(sig=sig,xflag=(F3,16,0),wflag=(F5,56,True),TM=4,TN=7,WM=2,WN=2,NS=3,K=1024,aarg=A_B1,woff=WS_W1,xoff=WS_HF,map="8x4",prologue=zero_acc(112),aux=pro,auxat=max(2,G.UNR),epilogue=epi,loader_head=lhead,loader_tail=ltail,lds_extra=2048,vmax=208)
    return gemm("ffn1",c,km)
def k_ffn2(km=None):
    A=140 if G.SPLIT else 100
    def pro(k):
        k(srd(SA,P_WS,WS_HF,0x400000),srd(SB,P_A,0,2048)); hunit_addr(k,41)
        k(f"s_lshl_b32 s42, s{S_NI}, 7","v_lshrrev_b32 v7, 4, v0","v_lshlrev_b32 v7, 4, v7")
        for j in range(4): k(f"buffer_load_dwordx4 {vr(A+4*j,4)}, v2, s[{SA}:{SA+3}], s41 offen offset:{1024*j} sc1")
        for j in range(2): k(f"buffer_load_dwordx4 {vr(A+16+4*j,4)}, v7, s[{SB}:{SB+3}], s42 offen offset:{64*j}")
    def epi(k,ACC,FR,X):
        if G.SPLIT:
            k(srd(SA,P_WS,WS_EX,0x800000),"s_lshl_b32 s44, s94, 13","s_add_u32 s45, s44, 4096",f"s_cmp_eq_u32 s{S_KH}, 0",f"s_cbranch_scc1 {k.lab('nsw')}")
            for i in range(32): k(f"v_swap_b32 v{ACC+i}, v{ACC+32+i}")
            k.label("nsw")
            for j in range(8): k(f"buffer_store_dwordx4 {vr(ACC+32+4*j,4)}, v2, s[{SA}:{SA+3}], s{44+j//4} offen offset:{1024*(j%4)} sc1")
            k("s_waitcnt vmcnt(8)")
        else: k("s_waitcnt vmcnt(0)")
        k(srd(SO,P_B,0,0x400000)); rowmajor_addr(k,7,41)
        unpack(k,A+30,A,24)
        for i in range(16): k(f"v_pk_add_f32 {vr(ACC+2*i,2)}, {vr(ACC+2*i,2)}, {vr(A+62+2*(i%8),2)}")
        for i in range(16): k(f"v_pk_add_f32 {vr(ACC+2*i,2)}, {vr(ACC+2*i,2)}, {vr(A+30+2*i,2)}")
        if G.SPLIT:
            fsrd(k); k("s_lshl_b32 s43, s94, 7",f"s_add_u32 s43, s43, {F7}"); signal(k,43)
            k("s_xor_b32 s94, s94, 1","s_lshl_b32 s43, s94, 7",f"s_add_u32 s43, s43, {F7}","s_lshl_b32 s44, s94, 13","s_add_u32 s45, s44, 4096")
            G.SLP,o=1,G.SLP; poll(k,"e",43,1,1); G.SLP=o
            for j in range(8): k(f"buffer_load_dwordx4 {vr(ACC+32+4*j,4)}, v2, s[{SA}:{SA+3}], s{44+j//4} offen offset:{1024*(j%4)} sc1")
        for j in range(4):
            if G.SPLIT:
                k(f"s_waitcnt vmcnt({6-j})")
                for i in range(4*j,4*j+4): k(f"v_pk_add_f32 {vr(ACC+2*i,2)}, {vr(ACC+2*i,2)}, {vr(ACC+32+2*i,2)}")
            pack(k,FR+4*j,ACC+8*j,8)
            k(f"buffer_store_dwordx4 {vr(FR+4*j,4)}, v7, s[{SO}:{SO+3}], s{41+j//2} offen offset:{64*(j%2)}{G.OUTP}")
    if G.SPLIT: c=mkcfg(xflag=(F4,32,1),split=True,TM=4,TN=4,WM=2,WN=2,NS=4,K=3584,aarg=A_B2,barg=A_OUT,woff=WS_W2,xoff=WS_GF,map="4x8",prologue=zero_acc(64),aux=pro,auxat=2,epilogue=epi,vmax=140)
    else: c=mkcfg(xflag=(F4,32,1),TM=2,TN=4,WM=4,WN=1,NS=6//G.R6,R=G.R6,K=3584,aarg=A_B2,barg=A_OUT,woff=WS_W2,xoff=WS_GF,map="4x8",prologue=zero_acc(32),aux=pro,auxat=G.AUX6//G.R6,epilogue=epi,barpos=1,rstep=1,UNR=G.UNR6,vmax=100)
    return gemm("ffn2",c,km)
def k_prep():
    k=K("prep_kernel",256,512,256+4*8192,nv=256 if G.STAMP else 64)
    stamp0(k)
    k("s_cmp_ge_u32 s2, 256",f"s_cbranch_scc1 {k.lab('end')}",f"s_load_dwordx2 s[4:5], s[0:1], {A_WS}",f"s_load_dwordx4 s[48:51], s[0:1], {A_X}",f"s_load_dwordx2 s[56:57], s[0:1], {A_WO}",f"s_load_dwordx2 s[52:53], s[0:1], {A_B1}",f"s_load_dwordx2 s[54:55], s[0:1], {A_B2}",
      "v_lshrrev_b32 v1, 6, v0","v_and_b32 v0, 63, v0","s_nop 0",f"v_readfirstlane_b32 s30, v1","s_nop 1","s_cmp_ge_u32 s30, 4",f"s_cbranch_scc1 {k.lab('w')}")
    k("v_and_b32 v2, 7, v0","v_lshrrev_b32 v3, 3, v0","v_lshlrev_b32 v4, 11, v2","v_lshl_add_u32 v4, v3, 4, v4","s_lshl_b32 s31, s2, 14","s_lshl_b32 s32, s30, 9","s_add_u32 s31, s31, s32",
      "s_waitcnt lgkmcnt(0)",srd(8,48,0,0x400000))
    for i in range(4): k(f"buffer_load_dwordx4 {vr(8+4*i,4)}, v4, s[8:11], s31 offen offset:{128*i}")
    k(srd(16,4,WS_FL,FLN),"s_lshl_b32 s35, s2, 2","s_add_u32 s35, s35, s30","s_lshl_b32 s35, s35, 10","v_lshlrev_b32 v6, 4, v0","v_mov_b32 v28, 0","v_mov_b32 v29, 0","v_mov_b32 v30, 0","v_mov_b32 v31, 0",
      f"buffer_store_dwordx4 v[28:31], v6, s[16:19], s35 offen{G.STF}")
    stamp(k,1,True)
    k(srd(12,4,WS_XN,0x400000),"s_lshr_b32 s33, s2, 4","s_lshl_b32 s33, s33, 18","s_bfe_u32 s34, s2, 0x30001","s_lshl_b32 s34, s34, 11","s_add_u32 s33, s33, s34",
      "s_and_b32 s34, s2, 1","s_lshl_b32 s34, s34, 7","s_add_u32 s33, s33, s34","s_lshl_b32 s34, s30, 16","s_add_u32 s33, s33, s34",
      "v_lshlrev_b32 v5, 8, v3","v_lshl_add_u32 v5, v2, 4, v5","s_waitcnt vmcnt(1)")
    stamp(k,2)
    unpack(k,32,8,16)
    k("v_pk_add_f32 v[24:25], v[32:33], v[34:35]","v_pk_mul_f32 v[26:27], v[32:33], v[32:33]","v_pk_fma_f32 v[26:27], v[34:35], v[34:35], v[26:27]")
    for i in range(2,16): k(f"v_pk_add_f32 v[24:25], v[24:25], {vr(32+2*i,2)}",f"v_pk_fma_f32 v[26:27], {vr(32+2*i,2)}, {vr(32+2*i,2)}, v[26:27]")
    k("v_add_f32 v24, v24, v25","v_add_f32 v25, v26, v27","s_nop 1","v_add_f32_dpp v24, v24, v24 row_ror:8 row_mask:0xf bank_mask:0xf","v_add_f32_dpp v25, v25, v25 row_ror:8 row_mask:0xf bank_mask:0xf")
    for op in ("v_permlane16_swap_b32","v_permlane32_swap_b32"):
        k("v_mov_b32 v26, v24","v_mov_b32 v27, v25","s_nop 1",f"{op} v24, v26",f"{op} v25, v27","s_nop 1","v_add_f32 v24, v24, v26","v_add_f32 v25, v25, v27")
    k("s_lshl_b32 s34, s30, 6","v_lshlrev_b32 v6, 3, v2","v_add_u32 v7, s34, v6","ds_write_b64 v7, v[24:25]","s_waitcnt lgkmcnt(0)","s_barrier")
    for w in range(4): k(f"ds_read_b64 {vr(8+2*w,2)}, v6 offset:{64*w}")
    k("s_waitcnt lgkmcnt(0)","v_pk_add_f32 v[8:9], v[8:9], v[10:11]","v_pk_add_f32 v[12:13], v[12:13], v[14:15]","v_pk_add_f32 v[24:25], v[8:9], v[12:13]")
    rstd_from(k,24,25,26); k("v_mov_b32 v25, v24","v_mov_b32 v27, v26")
    for i in range(16): k(f"v_pk_add_f32 {vr(32+2*i,2)}, {vr(32+2*i,2)}, v[24:25]")
    for i in range(16): k(f"v_pk_mul_f32 {vr(32+2*i,2)}, {vr(32+2*i,2)}, v[26:27]")
    pack(k,8,32,32)
    for i in range(4): k(f"buffer_store_dwordx4 {vr(8+4*i,4)}, v5, s[12:15], s33 offen{G.STF}","s_add_u32 s33, s33, 16384")
    stamp(k,3)
    if G.STAMP: k("s_waitcnt vmcnt(0)")
    stamp(k,4)
    k("s_endpgm")
    k.label("w")
    k("s_sub_u32 s30, s30, 4","s_mov_b32 s35, 6144"); relayout_addr(k,2,3,35,None,None)
    k("v_lshrrev_b32 v7, 4, v0","v_lshl_add_u32 v3, v7, 9, v3","s_lshl_b32 s36, s30, 13","s_add_u32 s36, s36, 256","v_add_u32 v3, s36, v3","v_lshlrev_b32 v4, 4, v0",
      "s_lshr_b32 s31, s2, 3","s_and_b32 s32, s2, 7","s_mul_i32 s32, s32, 12","s_mul_i32 s33, s30, 3","s_add_u32 s32, s32, s33",
      f"s_mul_i32 s33, s31, {32*6144}","s_lshl_b32 s34, s32, 6","s_add_u32 s33, s33, s34",f"s_add_u32 s34, s33, {16*6144}",
      "s_waitcnt lgkmcnt(0)",srd(8,50,0,1024*6144),srd(12,4,WS_WQ,1024*6144))
    for it in range(3):
        k(f"s_add_u32 m0, s36, {2048*it}","s_nop 0","buffer_load_dwordx4 v2, s[8:11], s33 offen lds",f"s_add_u32 m0, s36, {2048*it+1024}","s_add_u32 s33, s33, 64",
          "buffer_load_dwordx4 v2, s[8:11], s34 offen lds","s_add_u32 s34, s34, 64")
    k(srd(16,56,0,1024*2048),srd(20,4,WS_WO,1024*2048),"s_mov_b32 s35, 2048"); relayout_addr(k,40,41,35,None,None)
    k("s_and_b32 s42, s2, 7","s_lshl_b32 s42, s42, 2","s_add_u32 s42, s42, s30","s_lshl_b32 s33, s31, 16","s_lshl_b32 s34, s42, 6","s_add_u32 s33, s33, s34","s_add_u32 s34, s33, 32768",
      "s_add_u32 m0, s36, 6144","v_lshrrev_b32 v7, 5, v0","buffer_load_dwordx4 v40, s[16:19], s33 offen lds","s_add_u32 m0, s36, 7168","v_lshl_add_u32 v41, v7, 10, v41","buffer_load_dwordx4 v40, s[16:19], s34 offen lds",
      "v_bfe_u32 v7, v0, 4, 1","v_lshl_add_u32 v41, v7, 8, v41","v_add_u32 v41, s36, v41",
      "s_lshr_b32 s43, s42, 1","s_lshl_b32 s43, s43, 17","s_and_b32 s42, s42, 1","s_lshl_b32 s42, s42, 12","s_add_u32 s43, s43, s42","s_lshr_b32 s42, s31, 1","s_lshl_b32 s42, s42, 13","s_add_u32 s43, s43, s42",
      "s_and_b32 s42, s31, 1","s_lshl_b32 s42, s42, 10","s_add_u32 s43, s43, s42")
    k("s_barrier","s_lshr_b32 s37, s31, 1","s_mul_i32 s37, s37, 24576","s_and_b32 s31, s31, 1","s_lshl_b32 s31, s31, 10","s_add_u32 s37, s37, s31")
    for it in range(3):
        k("s_waitcnt vmcnt(6)")
        for t in range(2):
            k(f"ds_read_b64_tr_b16 {vr(8+8*it+4*t,2)}, v3 offset:{2048*it+8*t}",f"ds_read_b64_tr_b16 {vr(10+8*it+4*t,2)}, v3 offset:{2048*it+8*t+256}")
        k("s_lshr_b32 s39, s32, 5","s_bfe_u32 s40, s32, 0x40001",f"s_mul_i32 s40, s40, {16*24576}","s_and_b32 s41, s32, 1","s_mul_i32 s41, s41, 3","s_add_u32 s39, s39, s41","s_lshl_b32 s39, s39, 12",
          "s_add_u32 s39, s39, s40","s_add_u32 s39, s39, s37","s_add_u32 s32, s32, 1","s_waitcnt lgkmcnt(0)")
        for t in range(2): k(f"buffer_store_dwordx4 {vr(8+8*it+4*t,4)}, v4, s[12:15], s39 offen offset:{2048*t}{G.STF}")
    k("s_waitcnt vmcnt(6)")
    for t in range(2): k(f"ds_read_b64_tr_b16 {vr(32+4*t,2)}, v41 offset:{6144+8*t}",f"ds_read_b64_tr_b16 {vr(34+4*t,2)}, v41 offset:{6144+8*t+512}")
    k("s_waitcnt lgkmcnt(0)")
    for t in range(2): k(f"buffer_store_dwordx4 {vr(32+4*t,4)}, v4, s[20:23], s43 offen offset:{2048*t}{G.STF}")
    k("s_cmp_lg_u32 s2, 0",f"s_cbranch_scc1 {k.lab('end')}",srd(8,52,0,7168),srd(12,54,0,2048),"v_lshlrev_b32 v4, 7, v0",
      "buffer_load_dword v5, v4, s[8:11], 0 offen","buffer_load_dword v6, v4, s[12:15], 0 offen","s_waitcnt vmcnt(0)")
    k.label("end"); k("s_endpgm")
    return k
```

```python
from lib import *
import gemm as G
from gemm import *
from kern import rstd_from
import math
WS_RP=0x0; WS_CP=0x100000
def k_qkvd(km):
    k=begin(km,"qkv",163840); NS=4; STG=40960; LW=10; S=16; PSH=G.PSH
    k(f"s_load_dwordx4 s[48:51], s[0:1], {A_X}",f"s_load_dwordx2 s[52:53], s[0:1], {A_DBG}",f"s_load_dwordx8 s[80:87], s[0:1], {A_W1}",f"s_load_dwordx2 s[62:63], s[0:1], {A_WO}",f"s_load_dwordx2 s[78:79], s[0:1], {A_OUT}",f"s_and_b32 s{S_T}, s2, 7",f"s_lshr_b32 s{S_T2}, s2, 3")
    wgmap(k,"8x4")
    if G.LAT: k(f"s_and_b32 s58, s{S_MI}, 7","s_lshl_b32 s58, s58, 1",f"s_lshr_b32 s3, s{S_MI}, 3","s_add_u32 s58, s58, s3")
    else: k(f"s_mov_b32 s58, s{S_MI}")
    k(f"s_add_u32 s58, s58, s{S_NI}","s_and_b32 s58, s58, 15",
      f"s_cmp_lt_u32 s{S_WAVE}, 4",f"s_cbranch_scc1 {k.lab('cons')}")
    k(f"s_sub_u32 s{S_WAVE}, s{S_WAVE}, 4","v_lshrrev_b32 v3, 3, v0","v_and_b32 v4, 7, v0","v_lshrrev_b32 v5, 1, v3","v_xor_b32 v6, v4, v5","v_lshlrev_b32 v7, 11, v3")
    for u in range(4): k(f"v_xor_b32 v1, {4*(u%2)}, v6",f"v_lshl_add_u32 v{8+u}, v1, 4, v7",f"v_add_u32 v{8+u}, {u*(16384-1024)}, v{8+u}")
    k("v_and_b32 v5, 2, v3","v_xor_b32 v6, v4, v5","v_mul_u32_u24 v7, 6144, v3","v_lshl_add_u32 v12, v6, 4, v7","v_xor_b32 v6, 4, v6","v_lshl_add_u32 v13, v6, 4, v7",f"v_add_u32 v13, {8*6144-1024}, v13",
      f"s_lshl_b32 s41, s{S_WAVE}, 12",f"s_lshl_b32 s42, s{S_WAVE}, 11","s_add_u32 s42, s42, 16384",
      f"s_lshl_b32 s43, s{S_MI}, 2",f"s_add_u32 s43, s43, s{S_WAVE}","s_lshl_b32 s43, s43, 16",f"s_mul_i32 s3, s{S_WAVE}, {16*6144}")
    for p in range(3): k(f"s_add_u32 s{44+p}, s{S_NI}, {PSH*p}",f"s_and_b32 s{44+p}, s{44+p}, 15",f"s_lshl_b32 s{44+p}, s{44+p}, 7",f"s_add_u32 s{44+p}, s{44+p}, s3",f"s_add_u32 s{44+p}, s{44+p}, {2048*p}")
    k("s_mov_b32 s47, s58","s_and_b32 s59, s2, 7",f"s_mul_i32 s59, s59, {G.XOF}",f"s_and_b32 s3, s{S_MI}, {G.SKM}",f"s_mul_i32 s3, s3, {G.SK}","s_add_u32 s59, s59, s3","s_and_b32 s59, s59, 15")
    if G.SK<0: k("s_mov_b32 s59, s58")
    k(f"s_mov_b32 s{S_SLOT}, 0","s_waitcnt lgkmcnt(0)",srd(SX,48,0,0x400000),srd(SW,50,0,1024*6144))
    def issue():
        o=[f"s_mul_i32 s{S_WO}, s58, {64*6144}",f"s_lshl_b32 s{S_XO}, s58, 7",f"s_add_u32 s{S_XO}, s{S_XO}, s43",f"s_add_u32 m0, s{S_SLOT}, s41","s_add_u32 s58, s59, 1"]
        o+=[f"s_add_u32 s54, s{S_SLOT}, s41",f"s_add_u32 s55, s{S_SLOT}, s42"]+[f"s_add_u32 s{78+p}, s{S_WO}, s{44+p}" for p in range(3)]
        for it in G.QORD:
            if it[0]=="x": u=int(it[1]); o+=["s_mov_b32 m0, s54","s_nop 0",f"buffer_load_dwordx4 v{8+u}, s[{SX}:{SX+3}], s{S_XO} offen offset:{1024*u}{G.QLP} lds"]
            else: p,h=int(it[0]),int(it[1]); o+=[f"s_add_u32 m0, s55, {8192*p}","s_nop 0",f"buffer_load_dwordx4 v{12+h}, s[{SW}:{SW+3}], s{78+p} offen offset:{1024*h}{G.QLP} lds"]
        o+=["s_and_b32 s58, s58, 15","s_cmp_eq_u32 s59, s47","s_cselect_b32 s58, s58, s59","s_add_u32 s59, s58, 1","s_and_b32 s59, s59, 15",f"s_add_u32 s{S_SLOT}, s{S_SLOT}, {STG}",f"s_cmp_ge_u32 s{S_SLOT}, {NS*STG}",f"s_cselect_b32 s{S_SLOT}, 0, s{S_SLOT}"]
        return o
    def rep(tag,n,code): k(f"s_mov_b32 s{S_CNT}, {n}"); k.label(tag); k(code,f"s_sub_u32 s{S_CNT}, s{S_CNT}, 1",f"s_cmp_lg_u32 s{S_CNT}, 0",f"s_cbranch_scc1 {k.lab(tag)}")
    P0=G.QP0
    rep("lpro",P0,issue())
    for j in range(NS-1-P0): k(f"s_waitcnt vmcnt({(P0-1+j)*LW})","s_barrier",issue(),issue())
    rep("lloop",S-(NS-1)-(NS-1-P0),[f"s_waitcnt vmcnt({(NS-2)*LW})","s_barrier",issue()])
    k(f"s_waitcnt vmcnt({2*LW})","s_barrier",srd(SF,52,0,256),"s_mov_b32 s43, 0")
    if G.STAMP: k("s_memtime s[70:71]")
    poll(k,"d",43,G.NCT,256//G.NCT,sh={2:7,4:6,8:5}[G.NCT])
    if G.STAMP: k("s_memtime s[72:73]")
    k(srd(SA,P_WS,0,0x200000),f"s_and_b32 s3, s{S_WAVE}, 1","s_lshl_b32 s3, s3, 6","v_add_u32 v20, s3, v0",f"s_add_u32 s44, s{S_NI}, {WS_CP>>14}",f"s_cmp_lt_u32 s{S_WAVE}, 2",f"s_cselect_b32 s43, s{S_MI}, s44","s_lshl_b32 s43, s43, 14","v_lshlrev_b32 v21, 3, v20")
    for p in range(16): k(f"buffer_load_dwordx2 {vr(24+2*p,2)}, v21, s[{SA}:{SA+3}], s43 offen sc1","s_add_u32 s43, s43, 1024")
    k(srd(SX,62,0,1024*2048),srd(SW,P_WS,WS_WO,1024*2048),"s_mov_b32 s35, 2048"); relayout_addr(k,8,9,35,None,None)
    k("s_lshr_b32 s41, s2, 3","s_and_b32 s42, s2, 7","s_lshl_b32 s42, s42, 2",f"s_add_u32 s42, s42, s{S_WAVE}","s_lshl_b32 s43, s41, 16","s_lshl_b32 s3, s42, 6","s_add_u32 s43, s43, s3","s_add_u32 s44, s43, 32768",
      f"s_lshl_b32 s45, s{S_WAVE}, 11","s_add_u32 s45, s45, 8192","s_mov_b32 m0, s45","v_lshrrev_b32 v7, 4, v0",f"buffer_load_dwordx4 v8, s[{SX}:{SX+3}], s43 offen nt lds","s_add_u32 m0, s45, 1024",
      "v_lshl_add_u32 v9, v7, 9, v9",f"buffer_load_dwordx4 v8, s[{SX}:{SX+3}], s44 offen nt lds","v_add_u32 v9, s45, v9","v_lshlrev_b32 v10, 4, v0")
    k("s_barrier","s_barrier","s_waitcnt vmcnt(2)")
    for p in range(1,16): k(f"v_pk_add_f32 v[24:25], v[24:25], {vr(24+2*p,2)}")
    k(f"s_cmp_lt_u32 s{S_WAVE}, 2",f"s_cbranch_scc1 {k.lab('rows2')}","ds_write_b64 v21, v[24:25] offset:1024",f"s_branch {k.lab('rc2')}")
    k.label("rows2"); rstd_from(k,24,25,26); k("v_lshlrev_b32 v21, 2, v20","ds_write_b32 v21, v24","ds_write_b32 v21, v26 offset:512")
    k.label("rc2")
    if G.STAMP:
        k("s_memtime s[74:75]","s_lshl_b32 s62, s2, 7",f"s_add_u32 s62, s62, {0x2f00000+65536+64+20}","s_waitcnt lgkmcnt(0)","v_mov_b32 v255, s62")
        for j,r in enumerate((68,70,72,74)): k(f"v_mov_b32 v254, s{r}",f"global_store_dword v255, v254, s[4:5] offset:{4*j}")
    k("s_waitcnt lgkmcnt(0)","s_barrier",
      "s_lshr_b32 s43, s42, 1","s_lshl_b32 s43, s43, 17","s_and_b32 s3, s42, 1","s_lshl_b32 s3, s3, 12","s_add_u32 s43, s43, s3","s_lshr_b32 s3, s41, 1","s_lshl_b32 s3, s3, 13","s_add_u32 s43, s43, s3",
      "s_and_b32 s3, s41, 1","s_lshl_b32 s3, s3, 10","s_add_u32 s43, s43, s3","s_waitcnt vmcnt(0)")
    for t in range(2): k(f"ds_read_b64_tr_b16 {vr(12+4*t,2)}, v9 offset:{8*t}",f"ds_read_b64_tr_b16 {vr(14+4*t,2)}, v9 offset:{8*t+256}")
    k("s_waitcnt lgkmcnt(0)")
    for t in range(2): k(f"buffer_store_dwordx4 {vr(12+4*t,4)}, v10, s[{SW}:{SW+3}], s43 offen offset:{2048*t} sc1")
    k(f"s_branch {k.lab('end')}")
    k.label("cons")
    ACC=12; FR=ACC+96; FSZ=40; VX,VW,VX0,VW0=2,4,6,8
    k(f"s_lshr_b32 s{S_WM}, s{S_WAVE}, 1",f"s_and_b32 s{S_WN}, s{S_WAVE}, 1",
      "v_and_b32 v1, 15, v0","v_lshrrev_b32 v10, 4, v0","v_lshrrev_b32 v11, 1, v1","v_xor_b32 v11, v11, v10",f"v_lshlrev_b32 v{VX0}, 7, v1",f"v_lshl_add_u32 v{VX0}, v11, 4, v{VX0}",
      f"s_lshl_b32 s3, s{S_WM}, 13",f"v_add_u32 v{VX0}, s3, v{VX0}",f"v_xor_b32 v{VX0+1}, 64, v{VX0}",
      "v_bfe_u32 v11, v0, 3, 2",f"s_lshl_b32 s3, s{S_WN}, 1","v_xor_b32 v11, s3, v11",f"v_lshlrev_b32 v{VW0}, 5, v11",f"v_lshl_add_u32 v{VW0}, v10, 10, v{VW0}",
      "v_bfe_u32 v11, v0, 2, 2",f"v_lshl_add_u32 v{VW0}, v11, 7, v{VW0}","v_and_b32 v11, 3, v0",f"v_lshl_add_u32 v{VW0}, v11, 3, v{VW0}",f"v_add_u32 v{VW0}, 16384, v{VW0}",f"v_xor_b32 v{VW0+1}, 32, v{VW0}")
    for i in range(2): k(f"v_mov_b32 v{VX+i}, v{VX0+i}",f"v_mov_b32 v{VW+i}, v{VW0+i}")
    for i in range(96): k(f"v_mov_b32 v{ACC+i}, 0")
    k(f"s_mov_b32 s{S_SLOT}, 0",f"s_mov_b32 s{S_CNT}, {S}","s_waitcnt lgkmcnt(0)")
    fsrd(k); k("s_lshl_b32 s3, s2, 2",f"s_add_u32 s3, s3, s{S_WAVE}","s_lshl_b32 s3, s3, 10","v_lshlrev_b32 v11, 4, v0",f"buffer_store_dwordx4 {vr(ACC,4)}, v11, s[{SF}:{SF+3}], s3 offen sc1")
    if G.WRM:
        k("s_lshr_b32 s3, s2, 3","v_lshlrev_b32 v248, 5, v0","v_add_u32 v248, s3, v248",f"v_lshlrev_b32 v249, {G.WRM}, v248")
        jobs=[[(4,0x4d00000),(52,256)],[(80,1024*7168),(84,3584*2048),(62,1024*2048)],[(78,0x400000),(48,0x400000),(50,1024*6144)]]
        for w,J in enumerate(jobs):
            k(f"s_cmp_lg_u32 s{S_WAVE}, {w}",f"s_cbranch_scc1 {k.lab('w%d'%w)}")
            for p,n in J: k(srd(SA,p,0,n),f"buffer_load_dword v250, v249, s[{SA}:{SA+3}], 0 offen sc1")
            k.label("w%d"%w)
        k(f"s_cmp_lg_u32 s{S_WAVE}, 3",f"s_cbranch_scc1 {k.lab('w3')}","v_lshlrev_b32 v249, 7, v248",srd(SA,82,0,7168),f"buffer_load_dword v250, v249, s[{SA}:{SA+3}], 0 offen",
          srd(SA,86,0,2048),f"buffer_load_dword v250, v249, s[{SA}:{SA+3}], 0 offen")
        if G.WRC: k("s_getpc_b64 s[54:55]",k.lab("pc")+":",f"v_min_u32 v249, fused_kernel_last-{k.lab('pc')}, v249","v_mov_b32 v247, s55","v_add_co_u32 v246, vcc, s54, v249","s_nop 1","v_addc_co_u32 v247, vcc, 0, v247, vcc","global_load_dword v250, v[246:247], off")
        k.label("w3")
    stamp(k,1,True)
    ONE,T=190,196
    for i in range(4): k(f"v_mov_b32 v{ONE+i}, 0x3f803f80")
    k(srd(SA,P_WS,0,0x200000),srd(SB,52,0,256),f"s_lshl_b32 s3, s{S_WN}, 12",f"v_add_u32 v240, s3, v{VX0}",f"v_add_u32 v241, s3, v{VX0+1}",
      f"s_cmp_eq_u32 s{S_WM}, 0","s_cselect_b64 vcc, -1, 0",f"v_add_u32 v242, 8192, v{VW0+1}",f"v_add_u32 v243, 16384, v{VW0}",f"v_add_u32 v244, 16384, v{VW0+1}",f"v_add_u32 v245, 8192, v{VW0}",
      f"v_cndmask_b32 v242, v242, v{VW0}, vcc",f"v_cndmask_b32 v243, v243, v{VW0+1}, vcc","v_cndmask_b32 v244, v244, v245, vcc",
      f"s_lshl_b32 s41, s{S_MI}, 4","s_add_u32 s41, s41, s58","s_lshl_b32 s41, s41, 10",f"s_lshl_b32 s3, s{S_WAVE}, 8","s_add_u32 s41, s41, s3",
      f"s_lshl_b32 s42, s{S_NI}, 4","s_add_u32 s42, s42, s58","s_lshl_b32 s42, s42, 10",f"s_lshl_b32 s3, s{S_WN}, 9","s_add_u32 s42, s42, s3",f"s_lshl_b32 s3, s{S_WM}, 8","s_add_u32 s42, s42, s3",f"s_add_u32 s42, s42, {WS_CP}",
      "v_lshlrev_b32 v246, 3, v1","v_lshlrev_b32 v247, 4, v10","v_and_b32 v11, 3, v0","v_lshl_add_u32 v247, v11, 6, v247","v_cmp_eq_u32 s[54:55], 1, v11","v_cmp_eq_u32 s[56:57], 2, v11","v_cmp_eq_u32 s[60:61], 3, v11" if not G.STAMP else "v_cmp_eq_u32 s[76:77], 3, v11")
    M3="s[76:77]" if G.STAMP else "s[60:61]"
    k("s_barrier"); stamp(k,2)
    for kk in range(2):
        for t in range(2): k(f"ds_read_b128 {vr(FR+20*kk+4*t,4)}, v{240+kk} offset:{2048*t}")
        for t in range(3): k(f"ds_read_b64_tr_b16 {vr(FR+20*kk+8+4*t,2)}, v{242+t} offset:{4096*kk}",f"ds_read_b64_tr_b16 {vr(FR+20*kk+10+4*t,2)}, v{242+t} offset:{4096*kk+512}")
    for kk in range(2):
        k(f"s_waitcnt lgkmcnt({8-8*kk})")
        c=lambda d:(vr(d,4) if kk else "0")
        for t in range(2):
            x=vr(FR+20*kk+4*t,4)
            k(f"v_mfma_f32_16x16x32_bf16 {vr(T+8*t,4)}, {vr(ONE,4)}, {x}, {c(T+8*t)}",f"v_mfma_f32_16x16x32_bf16 {vr(T+8*t+4,4)}, {x}, {x}, {c(T+8*t+4)}")
        for t in range(3): k(f"v_mfma_f32_16x16x32_bf16 {vr(T+16+4*t,4)}, {vr(FR+20*kk+8+4*t,4)}, {vr(ONE,4)}, {c(T+16+4*t)}")
    def xf(b,tm): return FR+b*FSZ+4*tm
    def wf(b,tn): return FR+b*FSZ+16+4*tn
    def reads(b):
        X=[(f"ds_read_b128 {vr(xf(b,tm),4)}, v{VX+b} offset:{tm*2048}",xf(b,tm)) for tm in range(4)]
        W=[(f"ds_read_b64_tr_b16 {vr(wf(b,tn)+2*j,2)}, v{VW+tn%2} offset:{(tn//2)*8192+b*4096+j*512}",wf(b,tn)) for tn in range(6) for j in range(2)]
        return W[:2]+X+W[2:]
    q=[]
    for ins,d in reads(0): k(ins); q.append(d)
    for t in range(2):
        a=T+8*t
        k(f"v_cndmask_b32 v{a+1}, v{a+4}, v{a+5}, s[54:55]",f"v_cndmask_b32 v{a+1}, v{a+1}, v{a+6}, s[56:57]",f"v_cndmask_b32 v{a+1}, v{a+1}, v{a+7}, {M3}")
    for r in range(4): k(f"v_cndmask_b32 v{T+16+r}, v{T+16+r}, v{T+20+r}, s[54:55]",f"v_cndmask_b32 v{T+16+r}, v{T+16+r}, v{T+24+r}, s[56:57]")
    k("s_mov_b32 exec_lo, 0x00f0000f","s_mov_b32 exec_hi, 0xf0000f00")
    for t in range(2): k(f"buffer_store_dwordx2 {vr(T+8*t,2)}, v246, s[{SA}:{SA+3}], s41 offen offset:{128*t} sc1")
    k(f"buffer_store_dwordx4 {vr(T+16,4)}, v247, s[{SA}:{SA+3}], s42 offen sc1")
    k("s_mov_b64 exec, -1",".p2align 3"); k.label("cloop")
    k(f"s_sub_u32 s3, s{S_CNT}, {G.SGA}","s_cmp_lt_u32 s3, 4",f"s_cbranch_scc1 {k.lab('aux')}"); k.label("auxd")
    done=[0]
    def need(regs):
        idx=max([i for i,d in enumerate(q) if d in regs],default=-1)
        if idx>=done[0]:
            n=min(15,len(q)-1-idx); k(f"s_waitcnt lgkmcnt({n})"); done[0]=len(q)-n
    for hh in range(4):
        b=hh%2; RD=reads(1-b); p=0; j=0; first=G.BP if b else 0
        for tn in range(6):
            for tm in range(4):
                a=ACC+4*(tm*6+tn); x,w=xf(b,tm),wf(b,tn); A,B=(x,w) if tn>=4 else (w,x)
                need((x,w)); k(f"v_mfma_f32_16x16x32_bf16 {vr(a,4)}, {vr(A,4)}, {vr(B,4)}, {vr(a,4)}")
                if b and j==0: k(f"s_add_u32 s{S_SLOT}, s{S_SLOT}, {STG}",f"s_cmp_ge_u32 s{S_SLOT}, {NS*STG}",f"s_cselect_b32 s{S_SLOT}, 0, s{S_SLOT}",f"v_add_u32 v{VX}, s{S_SLOT}, v{VX0}",f"v_add_u32 v{VX+1}, s{S_SLOT}, v{VX0+1}")
                if b and j==first: k(f"v_add_u32 v{VW}, s{S_SLOT}, v{VW0}",f"v_add_u32 v{VW+1}, s{S_SLOT}, v{VW0+1}","s_waitcnt lgkmcnt(0)","s_barrier"); done[0]=len(q)
                if hh==3 and j==22: k(f"s_sub_u32 s{S_CNT}, s{S_CNT}, 2",f"s_cmp_lg_u32 s{S_CNT}, 0")
                if j>=first and p<len(RD): k(RD[p][0]); q.append(RD[p][1]); p+=1
                j+=1
        assert p==len(RD)
    k(f"s_cbranch_scc1 {k.lab('cloop')}","s_waitcnt lgkmcnt(0)"); stamp(k,3)
    L=k.L; k.L=k.ool; k.label("aux")
    k("s_waitcnt vmcnt(0)",f"s_cmp_eq_u32 s{S_CNT}, {G.SGA}",f"s_cbranch_scc0 {k.lab('auxd')}",f"s_cmp_eq_u32 s{S_WAVE}, 0",f"s_cbranch_scc0 {k.lab('auxd')}",
      "v_mov_b32 v240, 0","v_mov_b32 v241, 1",f"s_and_b32 s3, s2, {G.NCT-1}",f"s_mul_i32 s3, s3, {256//G.NCT}","s_mov_b64 exec, 1",f"buffer_atomic_add v241, v240, s[{SB}:{SB+3}], s3 offen sc1","s_mov_b64 exec, -1",f"s_branch {k.lab('auxd')}"); k.L=L
    CS,TK,VC,VT=FR,FR+16,FR+32,FR+36
    k(f"s_lshl_b32 s3, s{S_WN}, 9","v_lshl_add_u32 v2, v10, 4, s3","v_lshl_add_u32 v3, v1, 2, s3",f"s_lshl_b32 s3, s{S_WM}, 8","v_lshl_add_u32 v4, v1, 2, s3","v_lshl_add_u32 v5, v10, 4, s3")
    for tn in range(4): k(f"ds_read_b128 {vr(CS+4*tn,4)}, v2 offset:{1024+256*(tn//3)+64*(tn%3)}")
    for tm in range(4): k(f"ds_read_b32 v{TK+4*tm}, v4 offset:{64*tm}",f"ds_read_b32 v{TK+4*tm+2}, v4 offset:{512+64*tm}")
    k("s_waitcnt lgkmcnt(0)")
    for t in range(2): k(f"ds_read_b32 v{VC+2*t}, v3 offset:{1024+256+64+64*t}")
    for tm in range(4): k(f"ds_read_b128 {vr(VT+8*tm,4)}, v5 offset:{64*tm}",f"ds_read_b128 {vr(VT+8*tm+4,4)}, v5 offset:{512+64*tm}")
    k(srd(SO,P_WS,WS_QF,0x400000),srd(SA,P_WS,WS_KV,0x800000),f"s_lshl_b32 s{S_T}, s{S_MI}, 2",f"s_lshl_b32 s3, s{S_WM}, 1",f"s_add_u32 s{S_T}, s{S_T}, s3")
    for p in range(3): k(f"s_add_u32 s3, s{S_NI}, {PSH*p}","s_and_b32 s3, s3, 15","s_lshl_b32 s3, s3, 1",f"s_add_u32 s3, s3, s{S_WN}","s_lshl_b32 s3, s3, 6",f"s_add_u32 s3, s3, s{S_T}",f"s_lshl_b32 s{41+2*p}, s3, {12 if p else 11}",f"s_add_u32 s{42+2*p}, s{41+2*p}, {4096 if p else 2048}")
    k("v_lshlrev_b32 v2, 9, v10","v_lshl_add_u32 v2, v1, 4, v2","s_waitcnt lgkmcnt(0)")
    B="op_sel_hi:[1,0,1]"; d=FR+68; P=lambda r,i:vr(r+2*i,2)
    for tm in range(4):
        a=ACC+24*tm; m,r=vr(TK+4*tm,2),vr(TK+4*tm+2,2)
        for i in range(8): k(f"v_pk_fma_f32 {P(a,i)}, {P(CS,i)}, {m}, {P(a,i)} {B}")
        for i in range(4): k(f"v_pk_fma_f32 {P(a+16,i)}, {P(VT+8*tm,i%2)}, {vr(VC+2*(i//2),2)}, {P(a+16,i)} {B}")
        for i in range(4,8): k(f"v_pk_mul_f32 {P(a,i)}, {P(a,i)}, {r} op_sel_hi:[1,0]")
        k(f"v_mul_f32 v{TK+4*tm+2}, {f2u(math.log2(math.e)/math.sqrt(32))}, v{TK+4*tm+2}")
        for i in range(4): k(f"v_pk_mul_f32 {P(a+16,i)}, {P(a+16,i)}, {P(VT+8*tm+4,i%2)}")
        for i in range(4): k(f"v_pk_mul_f32 {P(a,i)}, {P(a,i)}, {r} op_sel_hi:[1,0]")
        pack(k,d,a+8,8); k(f"buffer_store_dwordx4 {vr(d,4)}, v2, s[{SA}:{SA+3}], s{43+tm//2} offen offset:{256*(tm%2)}{G.STF}"); d+=4
        if tm%2:
            for t in range(2):
                pack(k,d,a-24+16+4*t,4); pack(k,d+2,a+16+4*t,4)
                k(f"buffer_store_dwordx4 {vr(d,4)}, v2, s[{SA}:{SA+3}], s{45+tm//2} offen offset:{2048+256*t}{G.STF}"); d+=4
        pack(k,d,a,8); k(f"buffer_store_dwordx4 {vr(d,4)}, v2, s[{SO}:{SO+3}], s{41+tm//2} offen offset:{256*(tm%2)}{G.STF}"); d+=4
    k(f"s_lshl_b32 s43, s{S_NI}, 1",f"s_add_u32 s43, s43, s{S_WN}","s_lshl_b32 s43, s43, 5",f"s_lshl_b32 s3, s{S_MI}, 1","s_add_u32 s43, s43, s3",f"s_add_u32 s43, s43, s{S_WM}","s_lshl_b32 s92, s43, 7")
    stamp(k,4)
    k.label("end")
    return k
```

```python
from lib import *
from gemm import *
import gemm as G
def k_attn(km=None):
    mega=km is not None; P=G.LDP if mega else ''
    k=begin(km,"attn",163840)
    Q=8; NM=24; SB_=56; O=120; L=152; KF=160; VF=176; SEL=192; IDX=196; VC,VN,VL,VP=2,3,4,201
    S_HEAD,S_QT,S_KH,S_QG,S_NMAX,S_GO,S_M0,S_CUR,S_NXT=31,32,33,35,36,39,40,41,42
    k(
      f"s_load_dwordx2 s[6:7], s[0:1], {A_DBG}",f"s_load_dwordx2 s[48:49], s[0:1], {A_W1}",f"s_load_dwordx2 s[50:51], s[0:1], {A_W2}",
      "s_and_b32 s3, s2, 7","s_lshr_b32 s37, s2, 3",
      f"s_lshl_b32 s{S_HEAD}, s3, 2","s_lshr_b32 s3, s37, 3",f"s_add_u32 s{S_HEAD}, s{S_HEAD}, s3",
      f"s_and_b32 s{S_QG}, s{S_WAVE}, 3",f"s_lshr_b32 s{S_KH}, s{S_WAVE}, 2",
      f"s_and_b32 s{S_QT}, s37, 7",f"s_lshl_b32 s{S_QT}, s{S_QT}, 2",f"s_add_u32 s{S_QT}, s{S_QT}, s{S_QG}",f"s_lshl_b32 s{S_QT}, s{S_QT}, 1",
      f"v_lshlrev_b32 v{VL}, 4, v0",
      f"v_and_b32 v{VP}, 0x23, v0","v_bfe_u32 v5, v0, 2, 1",f"v_lshl_or_b32 v{VP}, v5, 4, v{VP}","v_bfe_u32 v5, v0, 3, 2",f"v_lshl_or_b32 v{VP}, v5, 2, v{VP}",f"v_lshlrev_b32 v{VP}, 4, v{VP}",f"s_mov_b32 s{S_NMAX}, 1","s_waitcnt lgkmcnt(0)",
      srd(8,4,WS_QF,0x400000),srd(12,4,WS_KV,0x800000),srd(16,4,WS_OF,0x400000))
    stamp(k,1,True)
    k.label("retry")
    SJ_SRC,SJ_STEP,SJ_DST,SJ_DA,SJ_DB,SJ_DT,SJ_RS,SJ_LDS=70,71,72,73,74,75,76,77
    VS,VT1,VT2,WF,CSA,ONE=198,199,200,204,212,220
    k("s_cmp_lt_u32 s2, 112",f"s_cbranch_scc0 {k.lab('sj2')}",
      srd(20,48,0,1024*7168),srd(24,4,WS_W1,1024*7168),
      f"s_mul_i32 s37, s2, 2341","s_lshr_b32 s37, s37, 16","s_mul_i32 s43, s37, 28","s_sub_u32 s43, s2, s43","s_lshl_b32 s43, s43, 2",f"s_add_u32 s43, s43, s{S_QG}",
      f"s_mul_i32 s{SJ_SRC}, s37, {256*7168}","s_lshl_b32 s44, s43, 6",f"s_add_u32 s{SJ_SRC}, s{SJ_SRC}, s44",f"s_mov_b32 s{SJ_STEP}, {32*7168}",f"s_mov_b32 s{SJ_RS}, 7168",
      f"s_mul_i32 s78, s37, {3584*4}","s_lshl_b32 s44, s43, 7","s_add_u32 s78, s78, s44",
      "s_mul_i32 s44, s43, 9363","s_lshr_b32 s44, s44, 16","s_mul_i32 s45, s44, 7","s_sub_u32 s45, s43, s45",
      f"s_mul_i32 s{SJ_DST}, s44, {16*28672}",f"s_mul_i32 s44, s37, {4*28672}",f"s_add_u32 s{SJ_DST}, s{SJ_DST}, s44",
      "s_lshl_b32 s44, s45, 1","s_cmp_gt_u32 s45, 3","s_cselect_b32 s46, 1, 0","s_sub_u32 s44, s44, s46","s_lshl_b32 s44, s44, 11",f"s_add_u32 s{SJ_DST}, s{SJ_DST}, s44",
      "s_cmp_eq_u32 s45, 3",f"s_cselect_b32 s{SJ_DT}, 7, 1","s_cselect_b32 s47, 1, 0",f"s_lshl_b32 s{SJ_DT}, s{SJ_DT}, 11",f"s_mov_b32 s{SJ_DA}, 1024",f"s_mov_b32 s{SJ_DB}, {28672-1024}","s_mov_b32 s44, 0",f"s_branch {k.lab('sjd')}")
    k.label("sj2")
    k(srd(20,50,0,3584*2048),srd(24,4,WS_W2,3584*2048),"s_sub_u32 s37, s2, 112",f"s_mov_b32 s45, {56*8192}","s_mov_b32 s44, 0")
    k(f"s_lshl_b32 s{SJ_SRC}, s37, 16",f"s_lshl_b32 s43, s{S_QG}, 9",f"s_add_u32 s{SJ_SRC}, s{SJ_SRC}, s43",f"s_mov_b32 s{SJ_STEP}, 64",f"s_mov_b32 s{SJ_RS}, 2048",
      f"s_lshl_b32 s43, s{S_QG}, 2",f"s_mul_i32 s{SJ_DST}, s43, s45","s_lshr_b32 s43, s37, 1","s_lshl_b32 s43, s43, 13",f"s_add_u32 s{SJ_DST}, s{SJ_DST}, s43",
      "s_and_b32 s43, s37, 1","s_lshl_b32 s43, s43, 10",f"s_add_u32 s{SJ_DST}, s{SJ_DST}, s43",f"s_mov_b32 s{SJ_DT}, 2048",f"s_mov_b32 s{SJ_DA}, 4096",f"s_sub_u32 s{SJ_DB}, s45, 4096","s_mov_b32 s78, 0","s_mov_b32 s47, 0")
    k.label("sjd")
    relayout_addr(k,VS,VT1,SJ_RS,None,None)
    k(f"s_lshl_b32 s{SJ_LDS}, s{S_QG}, 14",f"s_add_u32 s{SJ_LDS}, s{SJ_LDS}, 98304","s_lshr_b32 s45, 512, s44","s_lshl_b32 s46, 256, s44",
      "v_lshrrev_b32 v7, 5, v0",f"v_lshl_add_u32 v{VT1}, v7, 10, v{VT1}","v_bfe_u32 v7, v0, 4, 1","v_mul_lo_u32 v7, s45, v7",f"v_add3_u32 v{VT1}, v{VT1}, v7, s{SJ_LDS}","v_and_b32 v7, 3, v0","v_lshlrev_b32 v7, 3, v7","v_mul_lo_u32 v7, s47, v7",f"v_sub_u32 v{VT1}, v{VT1}, v7",f"v_add_u32 v{VT2}, s46, v{VT1}",
      "s_lshl_b32 s85, s47, 1","s_lshl_b32 s85, 8, s85",f"v_add_u32 v{VT1+3}, s85, v{VT1}",f"v_add_u32 v{VT2+3}, s85, v{VT2}",
      f"s_lshl_b32 s{SJ_RS}, s{SJ_RS}, 4",srd(80,4,WS_CS,4*3584*4))
    for i in range(8): k(f"v_mov_b32 v{CSA+i}, 0")
    for i in range(4): k(f"v_mov_b32 v{ONE+i}, 0x3f803f80")
    def sj_rd(off):
        o=[]
        for t in range(2): o+=[f"ds_read_b64_tr_b16 {vr(WF+4*t,2)}, v{VT1+3*t} offset:{off}",f"ds_read_b64_tr_b16 {vr(WF+4*t+2,2)}, v{VT2+3*t} offset:{off}"]
        return o
    def sj_st(adv):
        o=[f"s_add_u32 s37, s{SJ_DST}, s{SJ_DT}",f"buffer_store_dwordx4 {vr(WF,4)}, v{VL}, s[24:27], s{SJ_DST} offen{G.STW}",f"buffer_store_dwordx4 {vr(WF+4,4)}, v{VL}, s[24:27], s37 offen{G.STW}"]
        for t in range(2): o+=[f"v_mfma_f32_16x16x32_bf16 {vr(CSA+4*t,4)}, {vr(WF+4*t,4)}, {vr(ONE,4)}, {vr(CSA+4*t,4)}"]
        o+=[f"s_add_u32 s{SJ_DST}, s{SJ_DST}, s{SJ_DA}",f"s_mov_b32 s37, s{SJ_DA}",f"s_mov_b32 s{SJ_DA}, s{SJ_DB}",f"s_mov_b32 s{SJ_DB}, s37"]
        if adv: o+=[f"v_add_u32 v{r}, 4096, v{r}" for r in (VT1,VT2,VT1+3,VT2+3)]
        return o
    def sj_load():
        return [f"s_mov_b32 m0, s{SJ_LDS}",f"s_add_u32 s37, s{SJ_SRC}, s{SJ_RS}",f"buffer_load_dwordx4 v{VS}, s[20:23], s{SJ_SRC} offen{G.SJP} lds",f"s_add_u32 m0, s{SJ_LDS}, 1024",
                f"s_add_u32 s{SJ_SRC}, s{SJ_SRC}, s{SJ_STEP}",f"buffer_load_dwordx4 v{VS}, s[20:23], s37 offen{G.SJP} lds",f"s_add_u32 s{SJ_LDS}, s{SJ_LDS}, 2048"]
    S_MODE,S_MT=79,84
    def site(n,mode,code):
        l=k.lab(f"h{n}_{mode}")
        return [f"s_cmp_eq_u32 s{S_MODE}, {mode}",f"s_cbranch_scc0 {l}"]+code+[l+":"]
    k(f"v_mov_b32 v{IDX}, 0xdddddddd","v_bfe_u32 v5, v0, 2, 1","v_cmp_eq_u32 vcc, 0, v5","v_mov_b32 v6, 0x3f803f80","s_nop 0",
      f"v_cndmask_b32 v{SEL}, 0, v6, vcc",f"v_cndmask_b32 v{SEL+1}, 0, v6, vcc",f"v_sub_u32 v{SEL+2}, v6, v{SEL}",f"v_sub_u32 v{SEL+3}, v6, v{SEL}",
      f"s_lshl_b32 s37, s{S_KH}, 14",f"v_add_u32 v5, s37, v{VP}",f"v_mov_b32 v{VC}, v5",f"v_add_u32 v{VN}, 32768, v5",f"s_mov_b32 s{S_CUR}, 0",
      "v_mov_b32 v6, 0xff800000","v_mov_b32 v7, 0xff800000")
    for i in range(40): k(f"v_mov_b32 v{O+i}, 0")
    for i in range(16): k(f"v_mov_b32 v{SB_+48+i}, 0")
    for i in range(16): k(f"v_mov_b32 v{VF+i}, 0")
    k(f"s_cmp_lg_u32 s{S_NMAX}, 1",f"s_cbranch_scc1 {k.lab('go')}")
    fsrd(k)
    k(f"s_cmp_lt_u32 s{S_WAVE}, 4",f"s_cbranch_scc0 {k.lab('ns')}"); signal(k,92); k(f"s_branch {k.lab('pdx')}"); k.label("ns")
    if G.TLB:
        k(f"s_cmp_lg_u32 s{S_WAVE}, 6",f"s_cbranch_scc1 {k.lab('nt')}",f"s_load_dwordx2 s[60:61], s[0:1], {A_OUT}",srd(56,4,0x1000000,0x3500000),f"v_lshlrev_b32 v240, {G.TLB}, v0")
        for j in range(1<<(20-G.TLB)): k(f"s_mov_b32 s43, {j<<(6+G.TLB)}","buffer_load_dword v241, v240, s[56:59], s43 offen sc1")
        k("s_waitcnt lgkmcnt(0)",srd(56,60,0,0x400000),"v_lshlrev_b32 v240, 16, v0","buffer_load_dword v241, v240, s[56:59], 0 offen sc1","s_waitcnt vmcnt(0)"); k.label("nt")
    k(f"s_cmp_lg_u32 s{S_WAVE}, 4",f"s_cbranch_scc1 {k.lab('pdx')}",f"s_lshl_b32 s43, s{S_HEAD}, 12")
    poll(k,"x",43,32,1)
    k("s_barrier"); k.label("go")
    k(f"s_lshl_b32 s37, s{S_HEAD}, 6",f"s_add_u32 s37, s37, s{S_QT}","s_lshl_b32 s37, s37, 11")
    for j in range(4): k(f"buffer_load_dwordx4 {vr(Q+4*j,4)}, v{VL}, s[8:11], s37 offen offset:{1024*j}{P}")
    k(f"s_lshl_b32 s38, s{S_HEAD}, 18")
    for j in range(2): k(f"buffer_load_dwordx4 {vr(KF+4*j,4)}, v{VL}, s[12:15], s38 offen offset:{1024*j}{P}")
    k(f"s_lshl_b32 s{S_GO}, s{S_KH}, 5",f"s_add_u32 s{S_GO}, s{S_GO}, s{S_QG}",f"s_lshl_b32 s{S_GO}, s{S_GO}, 12",f"s_add_u32 s{S_GO}, s{S_GO}, s38",
      f"s_lshl_b32 s{S_M0}, s{S_WAVE}, 12")
    def dma():
        return [f"buffer_load_dwordx4 v{VL}, s[12:15], s{S_GO} offen offset:{1024*j}{P} lds" for j in range(4)]+[f"s_add_u32 s{S_GO}, s{S_GO}, 16384"]
    k(f"s_mov_b32 m0, s{S_M0}","s_nop 0",dma(),f"s_add_u32 m0, s{S_M0}, 32768","s_nop 0",dma())
    k(f"s_mov_b32 s{S_CNT}, s{S_NMAX}","s_waitcnt vmcnt(8)")
    k.label("mx")
    for u in range(2):
        k(f"v_mfma_f32_32x32x16_bf16 {vr(SB_+16*u,16)}, {vr(KF,4)}, {vr(Q+8*u,4)}, 0",f"v_mfma_f32_32x32x16_bf16 {vr(SB_+16*u,16)}, {vr(KF+4,4)}, {vr(Q+8*u+4,4)}, {vr(SB_+16*u,16)}")
    k("s_nop 15")
    for u in range(2):
        for i in range(8): k(f"v_max3_f32 v{6+u}, v{SB_+16*u+2*i}, v{SB_+16*u+2*i+1}, v{6+u}")
    k(f"s_sub_u32 s{S_CNT}, s{S_CNT}, 1",f"s_cmp_eq_u32 s{S_CNT}, 0",f"s_cbranch_scc1 {k.lab('mxd')}","s_add_u32 s38, s38, 4096")
    for j in range(2): k(f"buffer_load_dwordx4 {vr(KF+4*j,4)}, v{VL}, s[12:15], s38 offen offset:{1024*j}{P}")
    k("s_waitcnt vmcnt(0)",f"s_branch {k.lab('mx')}")
    k.label("mxd")
    k(f"v_mov_b32 v{NM}, v6",f"v_mov_b32 v{NM+16}, v7","s_nop 1",f"v_permlane32_swap_b32 v6, v{NM}",f"v_permlane32_swap_b32 v7, v{NM+16}","s_nop 1",
      f"v_max_f32 v6, v6, v{NM}",f"v_max_f32 v7, v7, v{NM+16}")
    for u in range(2):
        for i in range(16): k(f"v_sub_f32 v{NM+16*u+i}, 0, v{6+u}")
    k(f"s_cmp_eq_u32 s{S_KH}, 0",f"s_cbranch_scc1 {k.lab('w4')}","s_waitcnt vmcnt(0)"); k.label("w4")
    k("s_waitcnt vmcnt(4)","s_barrier"); stamp(k,2)
    def rdK(t):
        a,o=(VC,t*4096) if t<4 else (VN,(t-4)*4096)
        return [f"ds_read_b128 {vr(KF+8*(t%2)+4*j,4)}, v{a} offset:{o+1024*j}" for j in range(2)]
    def rdV(t): return [f"ds_read_b128 {vr(VF+8*(t%2)+4*j,4)}, v{VC} offset:{t*4096+2048+1024*j}" for j in range(2)]
    def qk(n):
        t,u=n//2,n%2; b=SB_+16*(n%4); kf=KF+8*(t%2)
        return [f"v_mfma_f32_32x32x16_bf16 {vr(b,16)}, {vr(kf,4)}, {vr(Q+8*u,4)}, {vr(NM+16*u,16)}",
                f"v_mfma_f32_32x32x16_bf16 {vr(b,16)}, {vr(kf+4,4)}, {vr(Q+8*u+4,4)}, {vr(b,16)}"]
    def pv(n):
        t,u=n//2,n%2; b=SB_+16*(n%4); vf=VF+8*(t%2)
        return [f"v_smfmac_f32_32x32x32_bf16 {vr(O+16*u,16)}, {vr(vf+4*j,4)}, {vr(b+8*j,8)}, v{IDX}" for j in range(2)]
    def sm(n):
        u=n%2; b=SB_+16*(n%4)
        return [f"v_smfmac_f32_16x16x64_bf16 {vr(L+4*u,4)}, {vr(SEL,4)}, {vr(b+8*j,8)}, v{IDX}" for j in range(2)]
    k(rdK(0),rdK(1),"s_waitcnt lgkmcnt(2)",qk(0),qk(1),f"s_mov_b32 s{S_CNT}, 0","s_nop 7","s_nop 1")
    k(f"s_cmp_eq_u32 s{S_KH}, 0",f"s_cbranch_scc1 {k.lab('mt')}",
      f"s_add_u32 s37, s{S_NMAX}, s{S_WAVE}","s_cmp_lg_u32 s37, 5",f"s_cbranch_scc1 {k.lab('mt')}",srd(56,6,0,256),"s_and_b32 s37, s2, 3","s_lshl_b32 s37, s37, 6",
      "v_mov_b32 v240, 4","v_mov_b32 v241, 1","s_mov_b64 exec, 1","buffer_atomic_add v241, v240, s[56:59], s37 offen sc1","s_mov_b64 exec, -1"); k.label("mt")
    if G.APRIO: k(f"s_cmp_eq_u32 s{S_KH}, {G.APRIO-1}",f"s_cbranch_scc0 {k.lab('np')}","s_setprio 1"); k.label("np")
    def loop(role,upto):
        k(f".p2align {G.AAL}"); k.label(f"loop{role}")
        for n in range(8):
            b=SB_+16*(n%4); e=[f"v_exp_f32 v{b+i}, v{b+i}" for i in range(16)]
            a,p,s=qk(n+2),pv(n-1),sm(n-1)
            rd=[[x] for x in (rdV(n//2) if n%2==0 else rdK(n//2+2))]
            bar=(["s_waitcnt vmcnt(0)"] if role==1 else [])+["s_barrier"]
            bn=4 if role==1 else G.ABN
            if n==bn and G.ABP==0: k(bar)
            if n==bn and G.ABP==1: rd[0]=bar+rd[0]
            if n==bn and G.ABP==2: a[0]=[a[0]]+bar
            if role==1 and n in (4,5):
                if n==4: pre=[f"s_cmp_ge_u32 s{S_CNT}, 6",f"s_cselect_b32 s{S_GO}, 0x7f000000, s{S_GO}",f"s_add_u32 s37, s{S_CUR}, 65536","s_sub_u32 s38, s37, 98304","s_cmp_ge_u32 s37, 98304","s_cselect_b32 s37, s38, s37",f"s_add_u32 m0, s37, s{S_M0}","s_nop 0"]
                else: pre=["s_add_u32 m0, m0, 16384",f"s_add_u32 s{S_GO}, s{S_GO}, 131072"]
                ld=[f"buffer_load_dwordx4 v{VL}, s[12:15], s{S_GO} offen offset:{1024*j}{P} lds" for j in range(4)]
                rd[0]+=pre+ld[:2]; rd[1]+=ld[2:]+([f"s_sub_u32 s{S_GO}, s{S_GO}, {131072-16384}"] if n==5 else [])
            if role==2 and n in G.SJL: rd[1]+=sj_load()
            if role==3 and n%4==0: rd[1]+=(["s_waitcnt vmcnt(12)"] if n==0 else [])+sj_rd(2048*(n//4))
            if role==3 and n%4==2: rd[1]+=sj_st(n==6)
            if n==7: rd[1]+=[f"s_add_u32 s{S_CUR}, s{S_CUR}, 32768",f"s_cmp_ge_u32 s{S_CUR}, 98304",f"s_cselect_b32 s{S_CUR}, 0, s{S_CUR}",
                             f"s_add_u32 s38, s{S_CUR}, 32768","s_cmp_ge_u32 s38, 98304","s_cselect_b32 s38, 0, s38",f"v_mov_b32 v{VC}, v{VN}",f"v_add_u32 v{VN}, s38, v5",
                             f"s_add_u32 s{S_CNT}, s{S_CNT}, 1",f"s_cmp_lt_u32 s{S_CNT}, {upto}"]
            k("s_waitcnt lgkmcnt(0)",a[0],e[0:4],p[0],rd[0],e[4:7],s[0],e[7:8],a[1],e[8:12],p[1],rd[1],e[12:15],s[1],e[15:16])
        k(f"s_cbranch_scc1 {k.lab('loop%d'%role)}")
    k(f"s_cmp_eq_u32 s{S_KH}, 0",f"s_cbranch_scc1 {k.lab('loop1')}","s_cmp_lt_u32 s2, 224","s_cselect_b32 s26, s26, 0")
    loop(2,4); loop(3,8); k(f"s_branch {k.lab('ld')}"); loop(1,8); k("s_waitcnt vmcnt(0)"); k.label("ld"); k("s_nop 1")
    k(pv(7),sm(7),"s_waitcnt lgkmcnt(0)","s_barrier"); stamp(k,3)
    k("s_cmp_lt_u32 s2, 112",f"s_cbranch_scc0 {k.lab('nocs')}",f"s_cmp_eq_u32 s{S_KH}, 1",f"s_cbranch_scc0 {k.lab('nocs')}","v_lshrrev_b32 v7, 4, v0","s_sub_u32 s37, 5, s47","v_lshlrev_b32 v7, s37, v7","s_lshl_b32 s85, s85, 1","v_and_b32 v6, 1, v0","v_cmp_eq_u32 vcc, 1, v6","v_mul_lo_u32 v6, s85, v6","v_add_u32 v7, v6, v7",
      [f"v_cndmask_b32 v{WF+r}, v{CSA+r}, v{CSA+4+r}, vcc" for r in range(4)],"s_mov_b32 exec_lo, 0x30003","s_mov_b32 exec_hi, 0x30003",
      f"buffer_store_dwordx4 {vr(WF,4)}, v7, s[80:83], s78 offen sc1","s_mov_b64 exec, -1")
    k.label("nocs")
    k(f"s_mul_i32 s37, s{S_WAVE}, 5120",f"s_xor_b32 s38, s{S_WAVE}, 4","s_mul_i32 s38, s38, 5120",f"v_add_u32 v6, s37, v{VL}",f"v_add_u32 v7, s38, v{VL}","s_nop 7",
      f"s_cmp_eq_u32 s{S_KH}, 0",f"s_cbranch_scc1 {k.lab('kh0')}")
    for j in range(4): k(f"ds_write_b128 v6, {vr(O+4*j,4)} offset:{1024*j}")
    k(f"ds_write_b128 v6, {vr(L,4)} offset:4096")
    k("s_nop 1")
    for i in range(16): k(f"v_mov_b32 v{O+i}, v{O+16+i}")
    k(f"v_mov_b32 v{L}, v{L+4}",f"s_branch {k.lab('khd')}")
    k.label("kh0")
    for j in range(4): k(f"ds_write_b128 v6, {vr(O+16+4*j,4)} offset:{1024*j}")
    k(f"ds_write_b128 v6, {vr(L+4,4)} offset:4096")
    k.label("khd")
    k("v_mov_b32 v1, 0","v_mov_b32 v197, 163776","ds_write_b32 v197, v1","s_waitcnt lgkmcnt(0)","s_barrier")
    for j in range(4): k(f"ds_read_b128 {vr(SB_+4*j,4)}, v7 offset:{1024*j}")
    k(f"ds_read_b128 {vr(SB_+16,4)}, v7 offset:4096","s_waitcnt lgkmcnt(0)",f"v_add_f32 v{L}, v{L}, v{SB_+16}",f"v_rcp_f32 v{L+2}, v{L}")
    for i in range(8): k(f"v_pk_add_f32 {vr(O+2*i,2)}, {vr(O+2*i,2)}, {vr(SB_+2*i,2)}")
    k(f"v_mov_b32 v{L+3}, v{L+2}")
    for i in range(8): k(f"v_pk_mul_f32 {vr(O+2*i,2)}, {vr(O+2*i,2)}, {vr(L+2,2)}")
    pack(k,SB_,O)
    k(f"s_add_u32 s37, s{S_QT}, s{S_KH}","s_lshr_b32 s38, s37, 2","s_lshl_b32 s38, s38, 18","s_and_b32 s37, s37, 3","s_lshl_b32 s37, s37, 12","s_add_u32 s37, s37, s38",
      f"s_lshr_b32 s38, s{S_HEAD}, 1","s_lshl_b32 s38, s38, 14","s_add_u32 s37, s37, s38",f"s_and_b32 s38, s{S_HEAD}, 1","s_lshl_b32 s38, s38, 10","s_add_u32 s37, s37, s38",
      "v_and_b32 v6, 15, v0","v_lshlrev_b32 v6, 4, v6","v_bfe_u32 v7, v0, 4, 1","v_lshl_add_u32 v6, v7, 11, v6","v_lshrrev_b32 v7, 5, v0","v_lshl_add_u32 v6, v7, 9, v6")
    for j in range(2): k(f"buffer_store_dwordx4 {vr(SB_+4*j,4)}, v6, s[16:19], s37 offen offset:{256*j}{G.STF}")
    k(f"s_cmp_lg_u32 s{S_NMAX}, 1",f"s_cbranch_scc1 {k.lab('ok')}")
    for i in range(16): k(f"v_fma_f32 v{L}, v{O+i}, 0, v{L}")
    k(f"v_mov_b32 v7, {f2u(2.0**60)}",f"v_cmp_nlt_f32 vcc, v{L}, v7","s_nop 4","s_cmp_eq_u64 vcc, 0",f"s_cbranch_scc1 {k.lab('ok')}",
      "v_mov_b32 v1, 1","ds_write_b32 v197, v1")
    k.label("ok")
    k(f"s_cmp_eq_u32 s{S_KH}, 0",f"s_cbranch_scc1 {k.lab('pdw')}",srd(56,6,0,256),"s_mov_b32 s43, 4"); poll(k,"w",43,4,64,sh=6,SF=56)
    k("s_waitcnt vmcnt(0) lgkmcnt(0)","s_barrier","ds_read_b32 v1, v197","s_waitcnt lgkmcnt(0)","v_readfirstlane_b32 s37, v1","s_nop 3","s_cmp_eq_u32 s37, 0",f"s_cbranch_scc1 {k.lab('store')}",
      f"s_mov_b32 s{S_NMAX}, 64","s_barrier",f"s_branch {k.lab('retry')}")
    k.label("store")
    if mega:
        k("s_setprio 0",f"s_add_u32 s43, s{S_QT}, s{S_KH}","s_lshl_b32 s43, s43, 5",f"s_add_u32 s43, s43, s{S_HEAD}","s_lshl_b32 s43, s43, 7",f"s_add_u32 s43, s43, {F2}"); signal(k,43)
        k(f"s_cmp_eq_u32 s{S_WAVE}, 0",f"s_cbranch_scc0 {k.lab('nsj')}","s_lshl_b32 s43, s2, 2",f"s_add_u32 s43, s43, {F5}",
          "s_mov_b64 exec, 1",f"buffer_store_dword v241, v240, s[{SF}:{SF+3}], s43 offen sc1","s_mov_b64 exec, -1")
        k.label("nsj")
    if G.STAMP and not mega: k("s_waitcnt vmcnt(0)")
    stamp(k,4)
    return k if mega else finish(k)
```

```python
from lib import *
import gemm as G
from gemm import *
import math
def mkcfg(**kw):
    c=Cfg(); c.aarg=None; c.barg=None; c.loader_head=None; c.loader_tail=None; c.lds_extra=0; c.swap=lambda tn:False; c.acc0=8; c.vmax=252; c.barpos=G.BP; c.rstep=G.RS; c.UNR=G.UNR; c.aux=None; c.auxat=0; c.P0=G.P0; c.R=1; c.xflag=None; c.wflag=None; c.sig=None; c.wlate=False; c.split=False; c.gate=G.GATE
    c.__dict__.update(kw); return c
def unpack(k,dst,src,n):
    for i in range(n): k(f"v_lshlrev_b32 v{dst+2*i}, 16, v{src+i}",f"v_and_b32 v{dst+2*i+1}, 0xffff0000, v{src+i}")
def rstd_from(k,s,q,out):
    k(f"v_mul_f32 v{s}, {f2u(-1/1024)}, v{s}",f"v_mul_f32 v{q}, {f2u(1/1024)}, v{q}",f"v_fma_f32 v{q}, -v{s}, v{s}, v{q}",f"v_max_f32 v{q}, 0, v{q}",
      f"v_add_f32 v{q}, {f2u(1e-5)}, v{q}",f"v_rsq_f32 v{out}, v{q}")
def k_qkv(km=None):
    def epi(k,ACC,FR,X):
        k(srd(SO,P_WS,WS_QF,0x400000),srd(SA,P_WS,WS_KV,0x800000))
        k(f"s_lshl_b32 s{S_T}, s{S_MI}, 2",f"s_lshl_b32 s3, s{S_WM}, 1",f"s_add_u32 s{S_T}, s{S_T}, s3",
          f"s_lshl_b32 s{S_T2}, s{S_NI}, 1",f"s_add_u32 s{S_T2}, s{S_T2}, s{S_WN}",f"s_lshl_b32 s{S_T2}, s{S_T2}, 6",f"s_add_u32 s{S_T}, s{S_T}, s{S_T2}",
          f"s_lshl_b32 s41, s{S_T}, 11",f"s_lshl_b32 s42, s{S_T}, 12","s_add_u32 s43, s42, 4096",
          f"s_mov_b32 s52, {f2u(math.log2(math.e)/math.sqrt(32))}",f"s_mov_b32 s53, s52",
          "v_lshrrev_b32 v4, 4, v0","v_lshlrev_b32 v4, 9, v4","v_and_b32 v5, 15, v0","v_lshl_add_u32 v2, v5, 4, v4",
          )
        d=FR
        for tm in range(4):
            a=ACC+24*tm; sk=42+tm//2
            pack(k,d,a+8,8); k(f"buffer_store_dwordx4 {vr(d,4)}, v2, s[{SA}:{SA+3}], s{sk} offen offset:{256*(tm%2)}{G.STF}"); d+=4
            if tm%2:
                for t in range(2):
                    pack(k,d,a-24+16+4*t,4); pack(k,d+2,a+16+4*t,4)
                    k(f"buffer_store_dwordx4 {vr(d,4)}, v2, s[{SA}:{SA+3}], s{sk} offen offset:{2048+256*t}{G.STF}"); d+=4
            for i in range(4): k(f"v_pk_mul_f32 {vr(a+2*i,2)}, {vr(a+2*i,2)}, s[52:53]")
            pack(k,d,a,8); k(f"buffer_store_dwordx4 {vr(d,4)}, v2, s[{SO}:{SO+3}], s41 offen offset:{2048*(tm//2)+256*(tm%2)}{G.STF}"); d+=4
    def sig(k):
        k(f"s_lshl_b32 s43, s{S_NI}, 1",f"s_add_u32 s43, s43, s{S_WN}","s_lshl_b32 s43, s43, 5",f"s_lshl_b32 s3, s{S_MI}, 1","s_add_u32 s43, s43, s3",f"s_add_u32 s43, s43, s{S_WM}","s_lshl_b32 s43, s43, 7"); signal(k,43)
    c=mkcfg(sig=sig,TM=4,TN=6,WM=2,WN=2,NS=4,K=1024,woff=WS_WQ,xoff=WS_XN,map="8x4",swap=lambda tn:tn>=4,prologue=zero_acc(96),epilogue=epi)
    return gemm("qkv",c,km)
def rowmajor_addr(k,v,sdst):
    k(f"s_lshl_b32 s{sdst}, s{S_MI}, 2",f"s_add_u32 s{sdst}, s{sdst}, s{S_WM}",f"s_lshl_b32 s{sdst}, s{sdst}, 16",f"s_lshl_b32 s3, s{S_NI}, 7",f"s_add_u32 s{sdst}, s{sdst}, s3",
      f"s_add_u32 s{sdst+1}, s{sdst}, 32768",f"v_and_b32 v{v}, 15, v0",f"v_lshlrev_b32 v{v}, 11, v{v}","v_lshrrev_b32 v1, 4, v0",f"v_lshl_add_u32 v{v}, v1, 4, v{v}")
def hunit_addr(k,sdst):
    k(f"s_lshl_b32 s{sdst}, s{S_MI}, 18",f"s_lshl_b32 s3, s{S_NI}, 14",f"s_add_u32 s{sdst}, s{sdst}, s3",f"s_lshl_b32 s3, s{S_WM}, 12",f"s_add_u32 s{sdst}, s{sdst}, s3")
def k_oproj(km=None):
    def pro(k):
        k(srd(SA,P_A,0,0x400000)); rowmajor_addr(k,7,41)
        for j in range(4): k(f"buffer_load_dwordx4 {vr(100+4*j,4)}, v7, s[{SA}:{SA+3}], s{41+j//2} offen offset:{64*(j%2)}")
    def epi(k,ACC,FR,X):
        k(srd(SO,P_WS,WS_HF,0x400000),srd(SB,P_WS,WS_ST,2048*128)); hunit_addr(k,41)
        k("s_waitcnt vmcnt(0)"); unpack(k,120,100,16)
        for i in range(16): k(f"v_pk_add_f32 {vr(ACC+2*i,2)}, {vr(ACC+2*i,2)}, {vr(120+2*i,2)}")
        pack(k,FR,ACC,32)
        for j in range(4): k(f"buffer_store_dwordx4 {vr(FR+4*j,4)}, v2, s[{SO}:{SO+3}], s41 offen offset:{1024*j}{G.STF}")
        for tm in range(2):
            a=ACC+16*tm; s_,q_=100+4*tm,102+4*tm
            k(f"v_pk_add_f32 {vr(s_,2)}, {vr(a,2)}, {vr(a+2,2)}",f"v_pk_mul_f32 {vr(q_,2)}, {vr(a,2)}, {vr(a,2)}",f"v_pk_fma_f32 {vr(q_,2)}, {vr(a+2,2)}, {vr(a+2,2)}, {vr(q_,2)}")
            for i in range(2,8): k(f"v_pk_add_f32 {vr(s_,2)}, {vr(s_,2)}, {vr(a+2*i,2)}",f"v_pk_fma_f32 {vr(q_,2)}, {vr(a+2*i,2)}, {vr(a+2*i,2)}, {vr(q_,2)}")
            k(f"v_add_f32 v{s_}, v{s_}, v{s_+1}",f"v_add_f32 v{q_}, v{q_}, v{q_+1}")
        k(f"s_lshl_b32 s42, s{S_MI}, 2",f"s_add_u32 s42, s42, s{S_WM}","s_lshl_b32 s42, s42, 12",f"s_lshl_b32 s3, s{S_NI}, 8","s_add_u32 s42, s42, s3",
          "v_permlane32_swap_b32 v100, v104","v_permlane32_swap_b32 v102, v106","v_and_b32 v3, 15, v0","v_lshlrev_b32 v3, 3, v3",
          "v_add_f32 v100, v100, v104","v_add_f32 v102, v102, v106","v_lshrrev_b32 v4, 5, v0","v_lshl_add_u32 v3, v4, 7, v3",
          "v_permlane16_swap_b32 v100, v102","v_bfe_u32 v4, v0, 4, 1","v_lshl_add_u32 v3, v4, 2, v3","v_add_f32 v100, v100, v102",
          f"buffer_store_dword v100, v3, s[{SB}:{SB+3}], s42 offen sc1")
    def sig(k):
        k(f"s_lshl_b32 s43, s{S_MI}, 2",f"s_add_u32 s43, s43, s{S_WM}","s_lshl_b32 s43, s43, 4",f"s_add_u32 s43, s43, s{S_NI}","s_lshl_b32 s43, s43, 7",f"s_add_u32 s43, s43, {F3}"); signal(k,43)
    k=begin(km,"oproj",0); D=G.XD; ACC=8; FR=40; XR=256-16-8*D
    k(f"s_load_dwordx2 s[{P_A}:{P_A+1}], s[0:1], {A_X}",f"s_and_b32 s{S_T}, s2, 7",f"s_lshr_b32 s{S_T2}, s2, 3"); wgmap(k,"4x8")
    k("v_lshlrev_b32 v2, 4, v0",f"s_cmp_lt_u32 s{S_WAVE}, 4",f"s_cbranch_scc1 {k.lab('cons')}")
    k(srd(SW,P_WS,WS_WO,1024*2048),f"s_sub_u32 s41, s{S_WAVE}, 4","s_lshl_b32 s41, s41, 12",f"s_lshl_b32 s42, s{S_NI}, 17","s_add_u32 s42, s42, s41")
    for it in range(8):
        k("s_mov_b32 m0, s41","s_add_u32 s41, s41, 16384",[f"buffer_load_dwordx4 v2, s[{SW}:{SW+3}], s42 offen offset:{1024*u} sc1 lds" for u in range(4)],"s_add_u32 s42, s42, 16384")
        if G.WSP and it==4: k("s_waitcnt vmcnt(4)","s_barrier")
    k("s_waitcnt vmcnt(0)","s_barrier","s_barrier",f"s_branch {k.lab('end')}")
    k.label("cons")
    k(f"s_mov_b32 s{S_WM}, s{S_WAVE}",srd(SX,P_WS,WS_OF,0x400000),f"s_lshl_b32 s{S_XO}, s{S_MI}, 18",f"s_lshl_b32 s3, s{S_WM}, 12",f"s_add_u32 s{S_XO}, s{S_XO}, s3",
      f"s_lshl_b32 s43, s{S_MI}, 2",f"s_add_u32 s43, s43, s{S_WM}","s_lshl_b32 s43, s43, 12",f"s_add_u32 s43, s43, {F2}","v_add_u32 v3, 65536, v2","s_waitcnt lgkmcnt(0)")
    zero_acc(32)(k,ACC,FR); stamp(k,1,True); pro(k); poll(k,"x",43,32,1)
    def xl(t): return [f"buffer_load_dwordx4 {vr(XR+8*(t%D)+4*tm,4)}, v2, s[{SX}:{SX+3}], s{S_XO} offen offset:{2048*tm+1024*(t%2)} sc1" for tm in range(2)]+([f"s_add_u32 s{S_XO}, s{S_XO}, 16384"] if t%2 else [])
    def wr(t): return [f"ds_read_b128 {vr(FR+16*(t%2)+4*tn,4)}, v{2+t//16} offset:{((t//2)%8)*8192+tn*2048+(t%2)*1024}" for tn in range(4)]
    for t in range(D): k(xl(t))
    k("s_barrier"); stamp(k,2); k(wr(0))
    for t in range(32):
        n=2*(min(32,t+D)-t-1)+(2 if G.STAMP and t<D else 0)
        if G.WSP and t==15: k("s_barrier")
        k(wr(t+1) if t<31 else [],f"s_waitcnt vmcnt({n}) lgkmcnt({4 if t<31 else 0})")
        if t==31: k("s_barrier")
        for tn in range(4):
            for tm in range(2): a=ACC+4*(tm*4+tn); k(f"v_mfma_f32_16x16x32_bf16 {vr(a,4)}, {vr(FR+16*(t%2)+4*tn,4)}, {vr(XR+8*(t%D)+4*tm,4)}, {vr(a,4)}")
        if t+D<32: k(xl(t+D))
    k("s_nop 7"); stamp(k,3); epi(k,ACC,FR,0); sig(k); stamp(k,4); k.label("end")
    return k
def k_ffn1(km=None):
    def lhead(k):
        k(srd(SA,P_WS,WS_CS,4*3584*4),srd(SB,P_A,0,3584*2),f"s_lshl_b32 s{S_T}, s{S_WAVE}, 6",f"v_add_u32 v20, s{S_T}, v0",
          f"s_mul_i32 s{S_T}, s{S_NI}, 224",f"v_add_u32 v21, s{S_T}, v20","v_lshlrev_b32 v22, 2, v21","v_lshlrev_b32 v21, 1, v21",
          f"buffer_load_ushort v40, v21, s[{SB}:{SB+3}], 0 offen")
        for p in range(4): k(f"s_mov_b32 s{S_T}, {p*3584*4}",f"buffer_load_dword v{24+p}, v22, s[{SA}:{SA+3}], s{S_T} offen sc1")
        k(srd(SB,P_WS,WS_ST,2048*128),"v_and_b32 v41, 127, v20","v_lshrrev_b32 v42, 5, v41","v_and_b32 v43, 31, v41","v_lshlrev_b32 v43, 3, v43","v_lshl_add_u32 v42, v42, 12, v43",f"s_lshl_b32 s{S_T}, s{S_MI}, 14")
        for p in range(16): k(f"buffer_load_dwordx2 {vr(44+2*p,2)}, v42, s[{SB}:{SB+3}], s{S_T} offen offset:{256*p} sc1")
        return 21
    def ltail(k,X):
        for p in range(1,4): k(f"v_add_f32 v24, v24, v{24+p}")
        for p in range(1,16): k(f"v_pk_add_f32 v[44:45], v[44:45], {vr(44+2*p,2)}")
        rstd_from(k,44,45,46); k("v_lshlrev_b32 v41, 2, v41",f"v_add_u32 v41, {X+2048}, v41","ds_write_b32 v41, v44","ds_write_b32 v41, v46 offset:512")
        k("v_lshlrev_b32 v40, 16, v40","v_lshrrev_b32 v21, 5, v20","v_bfe_u32 v22, v20, 2, 1","v_lshl_add_u32 v25, v21, 1, v22",
          "v_bfe_u32 v28, v20, 3, 2","v_bfe_u32 v29, v20, 2, 2","v_bfe_u32 v22, v20, 4, 1",
          "v_cmp_lt_u32 vcc, 3, v21","v_subrev_u32 v26, 1, v25","v_mul_u32_u24 v27, 7, v22","v_cndmask_b32 v25, v25, v26, vcc","v_cmp_eq_u32 vcc, 3, v21","v_add_u32 v27, 6, v27","s_nop 0","v_cndmask_b32 v25, v25, v27, vcc","v_cndmask_b32 v28, v28, v29, vcc",
          "v_cmp_eq_u32 vcc, 7, v21","v_mov_b32 v27, 15","s_nop 0","v_cndmask_b32 v25, v25, v27, vcc",
          "v_lshlrev_b32 v25, 6, v25","v_lshl_add_u32 v25, v28, 4, v25","v_and_b32 v26, 3, v20","v_lshl_add_u32 v25, v26, 2, v25",
          f"v_add_u32 v25, {X}, v25","ds_write_b32 v25, v24","ds_write_b32 v25, v40 offset:1024","s_waitcnt lgkmcnt(0)")
    ST=208
    def epi(k,ACC,FR,X):
        k(srd(SO,P_WS,WS_GF,2048*3584*2))
        CSR=FR; BR=FR+28; T=FR+56
        k(f"s_mul_i32 s3, s{S_WN}, 448",f"s_add_u32 s3, s3, {X}","v_lshrrev_b32 v3, 4, v0","v_lshlrev_b32 v3, 4, v3","v_add_u32 v3, s3, v3")
        for tn in range(7): k(f"ds_read_b128 {vr(CSR+4*tn,4)}, v3 offset:{64*tn}",f"ds_read_b128 {vr(BR+4*tn,4)}, v3 offset:{1024+64*tn}")
        k(f"s_lshl_b32 s3, s{S_WM}, 8",f"s_add_u32 s3, s3, {X+2048}","v_and_b32 v1, 15, v0","v_lshl_add_u32 v1, v1, 2, s3","s_waitcnt lgkmcnt(4)")
        for tm in range(4): k(f"ds_read_b32 v{ST+8*tm}, v1 offset:{64*tm}",f"ds_read_b32 v{ST+8*tm+2}, v1 offset:{512+64*tm}")
        k(f"s_mul_i32 s41, s{S_MI}, {3584*256}",f"s_lshl_b32 s3, s{S_WM}, 13","s_add_u32 s41, s41, s3",f"s_mul_i32 s42, s{S_NI}, 7",f"s_lshl_b32 s43, s{S_WN}, 2")
        for p in range(4):
            if p<3: k(f"s_add_u32 s3, s42, s43",f"s_add_u32 s3, s3, {p}")
            else: k("s_add_u32 s3, s42, 3")
            k(f"s_lshr_b32 s{54+p}, s3, 1",f"s_lshl_b32 s{54+p}, s{54+p}, 14","s_and_b32 s3, s3, 1","s_lshl_b32 s3, s3, 10",f"s_add_u32 s{54+p}, s{54+p}, s3",f"s_add_u32 s{54+p}, s{54+p}, s41")
        k(f"s_lshl_b32 s3, s{S_WN}, 9","s_add_u32 s57, s57, s3","v_add_u32 v7, 4096, v2",
          "v_and_b32 v6, 15, v0","v_lshlrev_b32 v6, 4, v6","v_bfe_u32 v1, v0, 4, 1","v_lshl_add_u32 v6, v1, 11, v6","v_lshrrev_b32 v1, 5, v0","v_lshl_add_u32 v6, v1, 8, v6")
        a_=-2*0.7978845608028654*math.log2(math.e); b_=a_*0.044715
        k(f"s_mov_b32 s52, {f2u(b_)}",f"s_mov_b32 s53, {f2u(b_)}",f"v_mov_b32 v4, {f2u(a_)}",f"v_mov_b32 v5, {f2u(a_)}","s_waitcnt lgkmcnt(0)")
        fsrd(k)
        k(f"s_lshl_b32 s43, s{S_MI}, 1",f"s_add_u32 s43, s43, s{S_WM}","s_lshl_b32 s43, s43, 5",f"s_lshl_b32 s3, s{S_NI}, 1","s_add_u32 s43, s43, s3",f"s_add_u32 s43, s43, s{S_WN}","s_lshl_b32 s43, s43, 7",
          f"s_add_u32 s92, s43, {F4}",f"s_add_u32 s43, s43, {F8}")
        for p in range(4):
            n=4 if p<3 else 2; I=[(tm,i) for tm in range(4) for i in range(n)]
            A=lambda tm,i:vr(ACC+28*tm+8*p+2*i,2); TT=lambda tm,i:vr(T+2*(n*tm+i),2)
            for tm,i in I: k(f"v_pk_fma_f32 {A(tm,i)}, {vr(CSR+8*p+2*i,2)}, {vr(ST+8*tm,2)}, {A(tm,i)} op_sel_hi:[1,0,1]")
            for tm,i in I: k(f"v_pk_fma_f32 {A(tm,i)}, {A(tm,i)}, {vr(ST+8*tm+2,2)}, {vr(BR+8*p+2*i,2)} op_sel_hi:[1,0,1]")
            for tm,i in I: k(f"v_pk_mul_f32 {TT(tm,i)}, {A(tm,i)}, {A(tm,i)}")
            for tm,i in I: k(f"v_pk_fma_f32 {TT(tm,i)}, {TT(tm,i)}, s[52:53], v[4:5]")
            for tm,i in I: k(f"v_pk_mul_f32 {TT(tm,i)}, {TT(tm,i)}, {A(tm,i)}")
            for i in range(8*n): k(f"v_exp_f32 v{T+i}, v{T+i}")
            for tm,i in I: k(f"v_pk_add_f32 {TT(tm,i)}, {TT(tm,i)}, 1.0 op_sel_hi:[1,0]")
            for i in range(8*n): k(f"v_rcp_f32 v{T+i}, v{T+i}")
            for tm,i in I: k(f"v_pk_mul_f32 {TT(tm,i)}, {TT(tm,i)}, {A(tm,i)}")
            if p==2 and G.EARLY and G.SPLIT: signal(k,43)
            for tm in range(4):
                if p<3:
                    d=ACC+28*tm+8*p; pack(k,d,T+8*tm,8)
                    k(f"buffer_store_dwordx4 {vr(d,4)}, v{2 if tm<2 else 7}, s[{SO}:{SO+3}], s{54+p} offen offset:{2048*(tm%2)}{G.STF}")
                else: pack(k,ACC+28*(tm&~1)+24+2*(tm%2),T+4*tm,4)
            if p==3:
                k("s_nop 1")
                for h in range(2):
                    sg=ACC+56*h+24
                    k(f"v_permlane16_swap_b32 v{sg}, v{sg+2}",f"v_permlane16_swap_b32 v{sg+1}, v{sg+3}",f"buffer_store_dwordx4 {vr(sg,4)}, v6, s[{SO}:{SO+3}], s57 offen{G.STF}","s_add_u32 s57, s57, 4096")
    def sig(k):
        if not (G.EARLY and G.SPLIT): signal(k,92)
    c=mkcfg(sig=sig,xflag=(F3,16,0),wflag=(F5,56,True),TM=4,TN=7,WM=2,WN=2,NS=3,K=1024,aarg=A_B1,woff=WS_W1,xoff=WS_HF,map="8x4",prologue=zero_acc(112),epilogue=epi,loader_head=lhead,loader_tail=ltail,lds_extra=2048,vmax=208)
    return gemm("ffn1",c,km)
def k_ffn2(km=None):
    A=140 if G.SPLIT else 100
    def pro(k):
        k(srd(SA,P_WS,WS_HF,0x400000),srd(SB,P_A,0,2048)); hunit_addr(k,41)
        k(f"s_lshl_b32 s42, s{S_NI}, 7","v_lshrrev_b32 v7, 4, v0","v_lshlrev_b32 v7, 4, v7")
        for j in range(4): k(f"buffer_load_dwordx4 {vr(A+4*j,4)}, v2, s[{SA}:{SA+3}], s41 offen offset:{1024*j} sc1")
        for j in range(2): k(f"buffer_load_dwordx4 {vr(A+16+4*j,4)}, v7, s[{SB}:{SB+3}], s42 offen offset:{64*j}")
    def epi(k,ACC,FR,X):
        if G.SPLIT:
            k(srd(SA,P_WS,WS_EX,0x800000),"s_lshl_b32 s44, s94, 13","s_add_u32 s45, s44, 4096",f"s_cmp_eq_u32 s{S_KH}, 0",f"s_cbranch_scc1 {k.lab('nsw')}")
            for i in range(32): k(f"v_swap_b32 v{ACC+i}, v{ACC+32+i}")
            k.label("nsw")
            for j in range(8): k(f"buffer_store_dwordx4 {vr(ACC+32+4*j,4)}, v2, s[{SA}:{SA+3}], s{44+j//4} offen offset:{1024*(j%4)} sc1")
            k("s_waitcnt vmcnt(8)")
        else: k("s_waitcnt vmcnt(0)")
        k(srd(SO,P_B,0,0x400000)); rowmajor_addr(k,7,41)
        unpack(k,A+30,A,24)
        for i in range(16): k(f"v_pk_add_f32 {vr(ACC+2*i,2)}, {vr(ACC+2*i,2)}, {vr(A+62+2*(i%8),2)}")
        for i in range(16): k(f"v_pk_add_f32 {vr(ACC+2*i,2)}, {vr(ACC+2*i,2)}, {vr(A+30+2*i,2)}")
        if G.SPLIT:
            fsrd(k); k("s_lshl_b32 s43, s94, 7",f"s_add_u32 s43, s43, {F7}"); signal(k,43)
            k("s_xor_b32 s94, s94, 1","s_lshl_b32 s43, s94, 7",f"s_add_u32 s43, s43, {F7}","s_lshl_b32 s44, s94, 13","s_add_u32 s45, s44, 4096")
            G.SLP,o=1,G.SLP; poll(k,"e",43,1,1); G.SLP=o
            for j in range(8): k(f"buffer_load_dwordx4 {vr(ACC+32+4*j,4)}, v2, s[{SA}:{SA+3}], s{44+j//4} offen offset:{1024*(j%4)} sc1")
        for j in range(4):
            if G.SPLIT:
                k(f"s_waitcnt vmcnt({6-j})")
                for i in range(4*j,4*j+4): k(f"v_pk_add_f32 {vr(ACC+2*i,2)}, {vr(ACC+2*i,2)}, {vr(ACC+32+2*i,2)}")
            pack(k,FR+4*j,ACC+8*j,8)
            k(f"buffer_store_dwordx4 {vr(FR+4*j,4)}, v7, s[{SO}:{SO+3}], s{41+j//2} offen offset:{64*(j%2)}{G.OUTP}")
    if G.SPLIT: c=mkcfg(xflag=(F4,32,1),split=True,TM=4,TN=4,WM=2,WN=2,NS=4,K=3584,aarg=A_B2,barg=A_OUT,woff=WS_W2,xoff=WS_GF,map="4x8",prologue=zero_acc(64),aux=pro,auxat=2,epilogue=epi,vmax=140)
    else: c=mkcfg(xflag=(F4,32,1),TM=2,TN=4,WM=4,WN=1,NS=6//G.R6,R=G.R6,K=3584,aarg=A_B2,barg=A_OUT,woff=WS_W2,xoff=WS_GF,map="4x8",prologue=zero_acc(32),aux=pro,auxat=G.AUX6//G.R6,epilogue=epi,barpos=1,rstep=1,UNR=G.UNR6,vmax=100)
    return gemm("ffn2",c,km)
def k_prep():
    k=K("prep_kernel",256,512,256+4*8192,nv=256 if G.STAMP else 64)
    stamp0(k)
    k("s_cmp_ge_u32 s2, 256",f"s_cbranch_scc1 {k.lab('end')}",f"s_load_dwordx2 s[4:5], s[0:1], {A_WS}",f"s_load_dwordx4 s[48:51], s[0:1], {A_X}",f"s_load_dwordx2 s[56:57], s[0:1], {A_WO}",f"s_load_dwordx2 s[52:53], s[0:1], {A_B1}",f"s_load_dwordx2 s[54:55], s[0:1], {A_B2}",
      "v_lshrrev_b32 v1, 6, v0","v_and_b32 v0, 63, v0","s_nop 0",f"v_readfirstlane_b32 s30, v1","s_nop 1","s_cmp_ge_u32 s30, 4",f"s_cbranch_scc1 {k.lab('w')}")
    k("v_and_b32 v2, 7, v0","v_lshrrev_b32 v3, 3, v0","v_lshlrev_b32 v4, 11, v2","v_lshl_add_u32 v4, v3, 4, v4","s_lshl_b32 s31, s2, 14","s_lshl_b32 s32, s30, 9","s_add_u32 s31, s31, s32",
      "s_waitcnt lgkmcnt(0)",srd(8,48,0,0x400000))
    for i in range(4): k(f"buffer_load_dwordx4 {vr(8+4*i,4)}, v4, s[8:11], s31 offen offset:{128*i}")
    k(srd(16,4,WS_FL,FLN),"s_lshl_b32 s35, s2, 2","s_add_u32 s35, s35, s30","s_lshl_b32 s35, s35, 10","v_lshlrev_b32 v6, 4, v0","v_mov_b32 v28, 0","v_mov_b32 v29, 0","v_mov_b32 v30, 0","v_mov_b32 v31, 0",
      f"buffer_store_dwordx4 v[28:31], v6, s[16:19], s35 offen{G.STF}")
    stamp(k,1,True)
    k(srd(12,4,WS_XN,0x400000),"s_lshr_b32 s33, s2, 4","s_lshl_b32 s33, s33, 18","s_bfe_u32 s34, s2, 0x30001","s_lshl_b32 s34, s34, 11","s_add_u32 s33, s33, s34",
      "s_and_b32 s34, s2, 1","s_lshl_b32 s34, s34, 7","s_add_u32 s33, s33, s34","s_lshl_b32 s34, s30, 16","s_add_u32 s33, s33, s34",
      "v_lshlrev_b32 v5, 8, v3","v_lshl_add_u32 v5, v2, 4, v5","s_waitcnt vmcnt(1)")
    stamp(k,2)
    unpack(k,32,8,16)
    k("v_pk_add_f32 v[24:25], v[32:33], v[34:35]","v_pk_mul_f32 v[26:27], v[32:33], v[32:33]","v_pk_fma_f32 v[26:27], v[34:35], v[34:35], v[26:27]")
    for i in range(2,16): k(f"v_pk_add_f32 v[24:25], v[24:25], {vr(32+2*i,2)}",f"v_pk_fma_f32 v[26:27], {vr(32+2*i,2)}, {vr(32+2*i,2)}, v[26:27]")
    k("v_add_f32 v24, v24, v25","v_add_f32 v25, v26, v27","s_nop 1","v_add_f32_dpp v24, v24, v24 row_ror:8 row_mask:0xf bank_mask:0xf","v_add_f32_dpp v25, v25, v25 row_ror:8 row_mask:0xf bank_mask:0xf")
    for op in ("v_permlane16_swap_b32","v_permlane32_swap_b32"):
        k("v_mov_b32 v26, v24","v_mov_b32 v27, v25","s_nop 1",f"{op} v24, v26",f"{op} v25, v27","s_nop 1","v_add_f32 v24, v24, v26","v_add_f32 v25, v25, v27")
    k("s_lshl_b32 s34, s30, 6","v_lshlrev_b32 v6, 3, v2","v_add_u32 v7, s34, v6","ds_write_b64 v7, v[24:25]","s_waitcnt lgkmcnt(0)","s_barrier")
    for w in range(4): k(f"ds_read_b64 {vr(8+2*w,2)}, v6 offset:{64*w}")
    k("s_waitcnt lgkmcnt(0)","v_pk_add_f32 v[8:9], v[8:9], v[10:11]","v_pk_add_f32 v[12:13], v[12:13], v[14:15]","v_pk_add_f32 v[24:25], v[8:9], v[12:13]")
    rstd_from(k,24,25,26); k("v_mov_b32 v25, v24","v_mov_b32 v27, v26")
    for i in range(16): k(f"v_pk_add_f32 {vr(32+2*i,2)}, {vr(32+2*i,2)}, v[24:25]")
    for i in range(16): k(f"v_pk_mul_f32 {vr(32+2*i,2)}, {vr(32+2*i,2)}, v[26:27]")
    pack(k,8,32,32)
    for i in range(4): k(f"buffer_store_dwordx4 {vr(8+4*i,4)}, v5, s[12:15], s33 offen{G.STF}","s_add_u32 s33, s33, 16384")
    stamp(k,3)
    if G.STAMP: k("s_waitcnt vmcnt(0)")
    stamp(k,4)
    k("s_endpgm")
    k.label("w")
    k("s_sub_u32 s30, s30, 4","s_mov_b32 s35, 6144"); relayout_addr(k,2,3,35,None,None)
    k("v_lshrrev_b32 v7, 4, v0","v_lshl_add_u32 v3, v7, 9, v3","s_lshl_b32 s36, s30, 13","s_add_u32 s36, s36, 256","v_add_u32 v3, s36, v3","v_lshlrev_b32 v4, 4, v0",
      "s_lshr_b32 s31, s2, 3","s_and_b32 s32, s2, 7","s_mul_i32 s32, s32, 12","s_mul_i32 s33, s30, 3","s_add_u32 s32, s32, s33",
      f"s_mul_i32 s33, s31, {32*6144}","s_lshl_b32 s34, s32, 6","s_add_u32 s33, s33, s34",f"s_add_u32 s34, s33, {16*6144}",
      "s_waitcnt lgkmcnt(0)",srd(8,50,0,1024*6144),srd(12,4,WS_WQ,1024*6144))
    for it in range(3):
        k(f"s_add_u32 m0, s36, {2048*it}","s_nop 0","buffer_load_dwordx4 v2, s[8:11], s33 offen lds",f"s_add_u32 m0, s36, {2048*it+1024}","s_add_u32 s33, s33, 64",
          "buffer_load_dwordx4 v2, s[8:11], s34 offen lds","s_add_u32 s34, s34, 64")
    k(srd(16,56,0,1024*2048),srd(20,4,WS_WO,1024*2048),"s_mov_b32 s35, 2048"); relayout_addr(k,40,41,35,None,None)
    k("s_and_b32 s42, s2, 7","s_lshl_b32 s42, s42, 2","s_add_u32 s42, s42, s30","s_lshl_b32 s33, s31, 16","s_lshl_b32 s34, s42, 6","s_add_u32 s33, s33, s34","s_add_u32 s34, s33, 32768",
      "s_add_u32 m0, s36, 6144","v_lshrrev_b32 v7, 5, v0","buffer_load_dwordx4 v40, s[16:19], s33 offen lds","s_add_u32 m0, s36, 7168","v_lshl_add_u32 v41, v7, 10, v41","buffer_load_dwordx4 v40, s[16:19], s34 offen lds",
      "v_bfe_u32 v7, v0, 4, 1","v_lshl_add_u32 v41, v7, 8, v41","v_add_u32 v41, s36, v41",
      "s_lshr_b32 s43, s42, 1","s_lshl_b32 s43, s43, 17","s_and_b32 s42, s42, 1","s_lshl_b32 s42, s42, 12","s_add_u32 s43, s43, s42","s_lshr_b32 s42, s31, 1","s_lshl_b32 s42, s42, 13","s_add_u32 s43, s43, s42",
      "s_and_b32 s42, s31, 1","s_lshl_b32 s42, s42, 10","s_add_u32 s43, s43, s42")
    k("s_barrier","s_lshr_b32 s37, s31, 1","s_mul_i32 s37, s37, 24576","s_and_b32 s31, s31, 1","s_lshl_b32 s31, s31, 10","s_add_u32 s37, s37, s31")
    for it in range(3):
        k("s_waitcnt vmcnt(6)")
        for t in range(2):
            k(f"ds_read_b64_tr_b16 {vr(8+8*it+4*t,2)}, v3 offset:{2048*it+8*t}",f"ds_read_b64_tr_b16 {vr(10+8*it+4*t,2)}, v3 offset:{2048*it+8*t+256}")
        k("s_lshr_b32 s39, s32, 5","s_bfe_u32 s40, s32, 0x40001",f"s_mul_i32 s40, s40, {16*24576}","s_and_b32 s41, s32, 1","s_mul_i32 s41, s41, 3","s_add_u32 s39, s39, s41","s_lshl_b32 s39, s39, 12",
          "s_add_u32 s39, s39, s40","s_add_u32 s39, s39, s37","s_add_u32 s32, s32, 1","s_waitcnt lgkmcnt(0)")
        for t in range(2): k(f"buffer_store_dwordx4 {vr(8+8*it+4*t,4)}, v4, s[12:15], s39 offen offset:{2048*t}{G.STF}")
    k("s_waitcnt vmcnt(6)")
    for t in range(2): k(f"ds_read_b64_tr_b16 {vr(32+4*t,2)}, v41 offset:{6144+8*t}",f"ds_read_b64_tr_b16 {vr(34+4*t,2)}, v41 offset:{6144+8*t+512}")
    k("s_waitcnt lgkmcnt(0)")
    for t in range(2): k(f"buffer_store_dwordx4 {vr(32+4*t,4)}, v4, s[20:23], s43 offen offset:{2048*t}{G.STF}")
    k("s_cmp_lg_u32 s2, 0",f"s_cbranch_scc1 {k.lab('end')}",srd(8,52,0,7168),srd(12,54,0,2048),"v_lshlrev_b32 v4, 7, v0",
      "buffer_load_dword v5, v4, s[8:11], 0 offen","buffer_load_dword v6, v4, s[12:15], 0 offen","s_waitcnt vmcnt(0)")
    k.label("end"); k("s_endpgm")
    return k
```

```python
from lib import *
WS_XN=0x0; WS_QF=0x400000; WS_KV=0x800000; WS_OF=0x1000000; WS_HF=0x1400000; WS_GF=0x1800000; WS_ST=0x2600000; WS_CS=0x2700000
WS_WQ=0x2800000; WS_WO=0x3200000; WS_W1=0x3400000; WS_W2=0x3c00000
import os
if os.environ.get('OVL','0')=='1': WS_OF=0; WS_GF=0; WS_HF=WS_WQ; WS_WO=WS_WQ+0x400000
P0=2; AUX6=4; R6=2; MEGA=1; NOPREP=1; WRM=16; SPLIT=1; SPM=0; WRC=2; WLATE=0; TLB=0; NCT=4; OUTP=''; DSTAMP=0; LAT=1; SGA=12; QLP=''; QORD='x0 00 10 x1 20 01 x2 11 x3 21'.split(); XOF=2; SK=0; SKM=3; PSH=0; QP0=2; UNR=2; UNR6=1; BP=2; RS=1; ALN=3; GATE=1; LDP=' sc1'; SLP=6
WS_FL=0x4400000; F1,F2,F3,F4,F5=0,0x20000,0x60000,0x80000,0xa0000; F6=0xa0400; F7=0xa1400; F8=0xc1400; FLN=0xe1400; EARLY=0; XD=8; AAL=3; ABP=0; ANP=0; ABN=4; WSP=1; WS_EX=0x4500000; S_KH=93; SF=88; S_W8=29
AORD=4; APRIO=0; SJL=(6,7); SJP=' nt'; XNB=0; XND=0; XNR=0; SJ=3
STW=' sc1'
STF=' sc1'
A_X,A_WQKV,A_WO,A_W1,A_B1,A_W2,A_B2,A_OUT,A_DBG,A_WS=0,8,16,32,40,48,56,64,72,80
S_WAVE,S_MI,S_NI,S_SLOT,S_CNT,S_XO,S_WO,S_T,S_T2,S_WM,S_WN=30,31,32,33,34,35,36,37,38,39,40
SX,SW,SO,SA,SB,SC=8,12,16,20,24,44
P_WS,P_W,P_A,P_B=4,6,48,50
STAMP=False
KID={"prep":0,"qkv":1,"attn":2,"oproj":3,"ffn1":4,"ffn2":5}
def stamp0(k):
    if STAMP: k("s_memrealtime s[66:67]","s_memtime s[68:69]")
def stamp(k,idx,pre=False):
    if DSTAMP and idx in (2,3,4) or DSTAMP and idx==1 and k.pre=="qkv":
        n=0 if idx==1 else (KID[k.pre]-1)*3+idx-1
        k("s_memrealtime s[64:65]","s_waitcnt lgkmcnt(0)",f"v_writelane_b32 v252, s64, {n}")
        if n==15: k("s_cmp_lg_u32 s2, 9",f"s_cbranch_scc1 {k.lab('ds')}",f"s_cmp_lg_u32 s{S_W8}, 0",f"s_cbranch_scc1 {k.lab('ds')}","s_load_dwordx2 s[62:63], s[0:1], 72","v_readlane_b32 s64, v252, 0","v_lshlrev_b32 v251, 2, v0","s_waitcnt lgkmcnt(0)",
                    "v_subrev_u32 v252, s64, v252","s_mov_b64 exec, 0xffff","global_store_dword v251, v252, s[62:63]"); k.label("ds")
    if not STAMP: return
    base=0x2f00000+KID[k.pre]*65536
    k("s_memtime s[60:61]","s_memrealtime s[64:65]","s_lshl_b32 s62, s2, 7",f"s_add_u32 s62, s62, {base+4*idx}","s_waitcnt lgkmcnt(0)",
      "v_mov_b32 v255, s62","v_mov_b32 v254, s60","v_mov_b32 v253, s64","global_store_dword v255, v254, s[4:5] offset:64","global_store_dword v255, v253, s[4:5]")
    if pre: k("v_mov_b32 v254, s68","v_mov_b32 v253, s66","global_store_dword v255, v254, s[4:5] offset:60","global_store_dword v255, v253, s[4:5] offset:-4")

class Cfg: pass
def begin(k,name,lds):
    first = k is None or not k.L
    if k is None: k=K(name+"_kernel",256,512,lds)
    k.pre=name; stamp0(k)
    if first:
        k("s_cmp_ge_u32 s2, 256",f"s_cbranch_scc1 {k.name}_exit",f"s_load_dwordx2 s[{P_WS}:{P_WS+1}], s[0:1], {A_WS}",
          "v_lshrrev_b32 v1, 6, v0","v_and_b32 v0, 63, v0","s_nop 0",f"v_readfirstlane_b32 s{S_W8}, v1","s_nop 1")
        if WRC==2:
            k(f"s_cmp_lg_u32 s{S_W8}, 3",f"s_cbranch_scc1 {k.lab('nc')}","s_getpc_b64 s[54:55]",k.lab("pc")+":","s_lshr_b32 s3, s2, 3","v_lshl_add_u32 v249, v0, 5, s3","v_lshlrev_b32 v249, 7, v249",
              f"v_min_u32 v249, fused_kernel_last-{k.lab('pc')}, v249","v_mov_b32 v247, s55","v_add_co_u32 v246, vcc, s54, v249","s_nop 1","v_addc_co_u32 v247, vcc, 0, v247, vcc","global_load_dword v250, v[246:247], off"); k.label("nc")
    k(f"s_mov_b32 s{S_WAVE}, s{S_W8}")
    return k
def finish(k):
    k.L.append(f"{k.name}_exit:"); k("s_endpgm"); k(k.ool); k.L.insert(len(k.L)-1,f"{k.name}_last:"); return k
def fsrd(k): k(srd(SF,P_WS,WS_FL,FLN))
def poll(k,tag,soff,nlanes,expect,x4=False,v=240,sh=7,hi=None,SF=SF):
    k(f"v_min_u32 v{v+4}, {nlanes-1}, v0",f"v_lshlrev_b32 v{v+4}, {4 if x4 else sh}, v{v+4}","s_mov_b32 s87, 0x40000",f"s_mov_b32 s86, {hex(expect)}")
    if hi: k(f"v_and_b32 v{v+4}, 31, v0",f"v_lshlrev_b32 v{v+4}, 7, v{v+4}",f"v_mov_b32 v{v}, s{hi[0]}",f"v_mov_b32 v{v+1}, s{hi[1]}","v_cmp_gt_u32 vcc, 32, v0","s_nop 1",f"v_cndmask_b32 v{v}, v{v+1}, v{v}, vcc",f"v_add_u32 v{v+4}, v{v}, v{v+4}")
    k.label("pl"+tag)
    if x4: k(f"buffer_load_dwordx4 {vr(v,4)}, v{v+4}, s[{SF}:{SF+3}], s{soff} offen sc1","s_waitcnt vmcnt(0)",f"v_and_b32 v{v}, v{v}, v{v+1}",f"v_and_b32 v{v+2}, v{v+2}, v{v+3}",f"v_and_b32 v{v}, v{v}, v{v+2}")
    else: k(f"buffer_load_dword v{v}, v{v+4}, s[{SF}:{SF+3}], s{soff} offen sc1","s_waitcnt vmcnt(0)")
    k(f"v_cmp_ne_u32 vcc, s86, v{v}","s_sub_u32 s87, s87, 1","s_nop 3",f"s_cbranch_vccz {k.lab('pd'+tag)}",f"s_sleep {SLP}","s_cmp_lg_u32 s87, 0",f"s_cbranch_scc1 {k.lab('pl'+tag)}")
    k.label("pd"+tag)
def signal(k,soff,n=1,v=240,byte=False,vm=0):
    k(f"v_lshlrev_b32 v{v}, 7, v0",f"v_mov_b32 v{v+1}, 1",f"s_waitcnt vmcnt({vm})",f"s_mov_b64 exec, {(1<<n)-1}",
      f"buffer_store_{'byte' if byte else 'dword'} v{v+1}, v{v}, s[{SF}:{SF+3}], s{soff} offen sc1","s_mov_b64 exec, -1")

def wgmap(k,kind):
    if kind=="8x4":
        k(f"s_and_b32 s{S_MI}, s{S_T}, 1",f"s_lshl_b32 s{S_MI}, s{S_MI}, 3",f"s_and_b32 s3, s{S_T2}, 7",f"s_add_u32 s{S_MI}, s{S_MI}, s3",
          f"s_lshr_b32 s{S_NI}, s{S_T}, 1",f"s_lshl_b32 s{S_NI}, s{S_NI}, 2",f"s_lshr_b32 s3, s{S_T2}, 3",f"s_add_u32 s{S_NI}, s{S_NI}, s3")
    else:
        k(f"s_and_b32 s{S_MI}, s{S_T}, 3",f"s_lshl_b32 s{S_MI}, s{S_MI}, 2",f"s_and_b32 s3, s{S_T2}, 3",f"s_add_u32 s{S_MI}, s{S_MI}, s3",
          f"s_lshr_b32 s{S_NI}, s{S_T}, 2",f"s_lshl_b32 s{S_NI}, s{S_NI}, 3",f"s_lshr_b32 s3, s{S_T2}, 2",f"s_add_u32 s{S_NI}, s{S_NI}, s3")
def gemm(name, c, km=None):
    TM,TN,WM,WN,NS,KD=c.TM,c.TN,c.WM,c.WN,c.NS,c.K
    R=c.R; NT=TN*WN; WB=NT*2048; SG1=16384+WB; STG=SG1*R; S1=KD//64; S=S1//R//(2 if c.split else 1); NWL=NT//2; LW=(4+NWL)*R
    XTRA=147456; mega=km is not None
    k=begin(km,name,max(NS*STG,XTRA+c.lds_extra if c.lds_extra else 0))
    if c.aarg is not None: k(f"s_load_dwordx2 s[{P_A}:{P_A+1}], s[0:1], {c.aarg}")
    if c.barg is not None: k(f"s_load_dwordx2 s[{P_B}:{P_B+1}], s[0:1], {c.barg}")
    k(f"s_and_b32 s{S_T}, s2, 7",f"s_lshr_b32 s{S_T2}, s2, 3")
    wgmap(k,c.map)
    if c.split:
        if SPM: k(f"s_and_b32 s{S_KH}, s{S_NI}, 1",f"s_lshr_b32 s{S_NI}, s{S_NI}, 1")
        else: k(f"s_lshr_b32 s{S_KH}, s{S_NI}, 3",f"s_and_b32 s{S_NI}, s{S_NI}, 7")
    k("v_lshlrev_b32 v2, 4, v0",f"s_cmp_lt_u32 s{S_WAVE}, 4",f"s_cbranch_scc1 {k.lab('cons')}")
    k(f"s_sub_u32 s{S_WAVE}, s{S_WAVE}, 4",f"s_lshl_b32 s41, s{S_WAVE}, 12",f"s_mul_i32 s42, s{S_WAVE}, {NWL*1024}",
      f"s_mul_i32 s{S_XO}, s{S_MI}, {KD*256}",f"s_add_u32 s{S_XO}, s{S_XO}, s41",
      f"s_mul_i32 s{S_WO}, s{S_NI}, {S1*WB}",f"s_add_u32 s{S_WO}, s{S_WO}, s42","s_add_u32 s42, s42, 16384",f"s_mov_b32 s{S_SLOT}, 0",
      "s_waitcnt lgkmcnt(0)",srd(SX,P_WS,c.xoff,2048*KD*2),srd(SW,P_WS,c.woff,16*S1*WB))
    WST=WB
    if c.split:
        WST=WB//2
        k(f"s_mul_i32 s3, s{S_KH}, {S*16384}",f"s_add_u32 s{S_XO}, s{S_XO}, s3",f"s_lshl_b32 s{S_WO}, s{S_NI}, 1",f"s_lshr_b32 s3, s{S_WAVE}, 1",f"s_add_u32 s{S_WO}, s{S_WO}, s3",f"s_mul_i32 s{S_WO}, s{S_WO}, {S1*WST}",
          f"s_and_b32 s3, s{S_WAVE}, 1","s_lshl_b32 s3, s3, 12",f"s_add_u32 s{S_WO}, s{S_WO}, s3",f"s_mul_i32 s3, s{S_KH}, {S*WST}",f"s_add_u32 s{S_WO}, s{S_WO}, s3",f"s_mov_b32 s{SW+2}, {16*S1*WST}")
    dep=mega and c.xflag is not None
    P=LDP if dep else ''
    def issue(w=True,x=True): return [issue1(w,x) for r in range(R)]
    early=c.split and EARLY
    if early:
        E=[0,2,7,9,14,16,21,23]; seq=E+[t for t in range(28) if t not in E]
        tbl=sum(((seq[i+1]-seq[i])%28)<<(4*i) for i in range(27))
        def tinit(): return ["s_mov_b32 s95, 0"]+[f"s_mov_b32 s{96+i}, {hex((tbl>>(32*i))&0xffffffff)}" for i in range(4)]
        k(f"s_mov_b32 s46, s{S_XO}",f"s_mov_b32 s47, s{S_WO}",tinit())
    def issue1(w,x):
        o=[]
        if early: o+=[f"s_lshl_b32 s{S_XO}, s95, 14",f"s_add_u32 s{S_XO}, s{S_XO}, s46",f"s_lshl_b32 s{S_WO}, s95, 13",f"s_add_u32 s{S_WO}, s{S_WO}, s47",
                      "s_and_b32 s3, s96, 15","s_add_u32 s95, s95, s3","s_lshr_b64 s[96:97], s[96:97], 4","s_lshl_b32 s3, s98, 28","s_or_b32 s97, s97, s3","s_lshr_b64 s[98:99], s[98:99], 4",
                      "s_sub_u32 s3, s95, 28","s_cmp_ge_u32 s95, 28","s_cselect_b32 s95, s3, s95"]
        if w:
            o+=[f"s_add_u32 m0, s{S_SLOT}, s42",f"s_add_u32 s{S_T2}, s{S_WO}, 4096"]
            for j in range(NWL):
                if j==4: o+=["s_add_u32 m0, m0, 4096","s_nop 0"]
                o+=[f"buffer_load_dwordx4 v2, s[{SW}:{SW+3}], s{S_WO if j<4 else S_T2} offen offset:{(j%4)*1024}{P} lds"]
            o+=[f"s_add_u32 s{S_WO}, s{S_WO}, {WST}"]
        if x:
            o+=[f"s_add_u32 m0, s{S_SLOT}, s41","s_nop 0"]
            for u in range(4): o+=[f"buffer_load_dwordx4 v2, s[{SX}:{SX+3}], s{S_XO} offen offset:{u*1024}{P} lds"]
            o+=[f"s_add_u32 s{S_XO}, s{S_XO}, 16384"]
        o+=[f"s_add_u32 s{S_SLOT}, s{S_SLOT}, {SG1}",f"s_cmp_ge_u32 s{S_SLOT}, {NS*STG}",f"s_cselect_b32 s{S_SLOT}, 0, s{S_SLOT}"]
        return o
    def rep(tag,n,code): k(f"s_mov_b32 s{S_CNT}, {n}"); k.label(tag); k(code,f"s_sub_u32 s{S_CNT}, s{S_CNT}, 1",f"s_cmp_lg_u32 s{S_CNT}, 0",f"s_cbranch_scc1 {k.lab(tag)}")
    if STAMP: k("s_memtime s[70:71]")
    if dep:
        fsrd(k)
        if c.wflag: k(f"s_mov_b32 s43, {c.wflag[0]}"); poll(k,"w",43,c.wflag[1],1,c.wflag[2])
        if not c.wlate: rep("lpw",(NS-1)*R,issue1(True,False))
        k(f"s_lshl_b32 s43, s{S_MI}, 2",f"s_add_u32 s43, s43, s{S_WAVE}",f"s_lshr_b32 s43, s43, {c.xflag[2]}",f"s_mul_i32 s43, s43, {c.xflag[1]*128}",f"s_add_u32 s43, s43, {c.xflag[0]}",f"s_mov_b32 s{S_SLOT}, 0")
        if c.gate and not early: k("s_barrier")
        if c.wlate: k(f"s_mov_b32 s44, {F6}","s_mov_b32 s45, 0"); poll(k,"x",45,64,1,hi=(43,44))
        elif c.split: k(f"s_lshl_b32 s3, s{S_KH}, 11","s_add_u32 s43, s43, s3",f"s_add_u32 s45, s43, {F8-F4 if early else 0}",tinit() if early else []); poll(k,"x",45,16,1)
        else: poll(k,"x",43,c.xflag[1],1)
        if STAMP: k("s_memtime s[72:73]")
        rep("lpx",(NS-1)*R,issue1(c.wlate,True))
        if STAMP: k("s_memtime s[74:75]")
        for j in range(NS-1): k(f"s_waitcnt vmcnt({(NS-2-j)*(LW if c.wlate else 4*R)+j*LW})","s_barrier",issue())
        P0=0
        if early:
            rep("le",2,[f"s_waitcnt vmcnt({(NS-2)*LW})","s_barrier",issue()]); poll(k,"y",43,16,1); P0=-2
    else:
        P0=min(c.P0,NS-1)
        rep("lpro",P0,issue())
        if STAMP: k("s_memtime s[72:73]",f"s_waitcnt vmcnt({(P0-1)*LW})","s_memtime s[74:75]")
        for j in range(NS-1-P0): k(f"s_waitcnt vmcnt({(P0-1+j)*LW})","s_barrier",issue(),issue())
    k(f"s_mov_b32 s{S_CNT}, {S-(NS-1)-(NS-1-P0)}"); k.label("lloop")
    k(f"s_waitcnt vmcnt({(NS-2)*LW})","s_barrier",issue(),f"s_sub_u32 s{S_CNT}, s{S_CNT}, 1",f"s_cmp_lg_u32 s{S_CNT}, 0",f"s_cbranch_scc1 {k.lab('lloop')}")
    nh=c.loader_head(k) if c.loader_head else 0
    for j in range(NS-1): k(f"s_waitcnt vmcnt({(NS-2-j)*LW+nh})","s_barrier")
    if nh: k("s_waitcnt vmcnt(0)")
    if c.loader_tail: c.loader_tail(k,XTRA)
    if STAMP:
        k("s_lshl_b32 s62, s2, 7",f"s_add_u32 s62, s62, {0x2f00000+KID[k.pre]*65536+64+20}","s_waitcnt lgkmcnt(0)","v_mov_b32 v255, s62")
        for j,r in enumerate((68,70,72,74)): k(f"v_mov_b32 v254, s{r}",f"global_store_dword v255, v254, s[4:5] offset:{4*j}")
    k("s_barrier",f"s_branch {k.lab('end')}" if mega and c.sig else "s_endpgm")
    k.label("cons")
    ACC=c.acc0; FR=ACC+4*TM*TN; FSZ=4*(TM+TN)
    VX,VW,VX0,VW0=6,3,4,5
    assert FR+2*FSZ<=c.vmax,(FR+2*FSZ)
    if WN==2: k(f"s_lshr_b32 s{S_WM}, s{S_WAVE}, 1",f"s_and_b32 s{S_WN}, s{S_WAVE}, 1")
    else: k(f"s_mov_b32 s{S_WM}, s{S_WAVE}",f"s_mov_b32 s{S_WN}, 0")
    k(f"s_mul_i32 s{S_T}, s{S_WM}, {TM*2048}",f"v_add_u32 v{VX0}, s{S_T}, v2",
      f"s_mul_i32 s{S_T}, s{S_WN}, {TN*2048}",f"s_add_u32 s{S_T}, s{S_T}, 16384",f"v_add_u32 v{VW0}, s{S_T}, v2",
      f"v_mov_b32 v{VX}, v{VX0}",f"v_mov_b32 v{VW}, v{VW0}",f"s_mov_b32 s{S_SLOT}, 0",f"s_mov_b32 s{S_CNT}, {S}","s_waitcnt lgkmcnt(0)")
    if c.split:
        k(f"s_lshl_b32 s94, s{S_MI}, 3",f"s_add_u32 s94, s94, s{S_NI}","s_lshl_b32 s94, s94, 2",f"s_add_u32 s94, s94, s{S_WAVE}","s_lshl_b32 s94, s94, 1",f"s_add_u32 s94, s94, s{S_KH}",
          f"s_lshl_b32 s{S_WM}, s{S_WM}, 1",f"s_add_u32 s{S_WM}, s{S_WM}, s{S_KH}",f"s_lshl_b32 s{S_NI}, s{S_NI}, 1",f"s_add_u32 s{S_NI}, s{S_NI}, s{S_WN}")
    if dep and c.gate and not early: k("s_barrier")
    stamp(k,1,True)
    c.prologue(k,ACC,FR)
    def xf(b,tm): return FR+b*FSZ+4*tm
    def wf(b,tn): return FR+b*FSZ+4*TM+4*tn
    def reads(h):
        b=h%2; so=(h//2)*SG1
        X=[(f"ds_read_b128 {vr(xf(b,tm),4)}, v{VX} offset:{so+tm*2048+b*1024}",xf(b,tm)) for tm in range(TM)]
        W=[(f"ds_read_b128 {vr(wf(b,tn),4)}, v{VW} offset:{so+tn*2048+b*1024}",wf(b,tn)) for tn in range(TN)]
        return W[:1]+X+W[1:]
    def mfmas(b):
        o=[]
        for tn in range(TN):
            for tm in range(TM):
                a=ACC+4*(tm*TN+tn); x,w=xf(b,tm),wf(b,tn)
                A,B=(x,w) if c.swap(tn) else (w,x)
                o.append((f"v_mfma_f32_16x16x32_bf16 {vr(a,4)}, {vr(A,4)}, {vr(B,4)}, {vr(a,4)}",(x,w)))
        return o
    k("s_barrier"); stamp(k,2)
    q=[]
    for ins,d in reads(0): k(ins); q.append(d)
    k(f".p2align {ALN}"); k.label("cloop")
    if early:
        k(f"s_cmp_eq_u32 s{S_CNT}, {S-c.UNR}",f"s_cbranch_scc1 {k.lab('sg')}"); k.label("sgd")
        L=k.L; k.L=k.ool; k.label("sg"); signal(k,92); k(f"s_branch {k.lab('sgd')}"); k.L=L
    if c.aux: k(f"s_cmp_eq_u32 s{S_CNT}, {c.auxat}",f"s_cbranch_scc1 {k.lab('aux')}"); k.label("auxd")
    done=[0]
    def need(regs):
        idx=max([i for i,d in enumerate(q) if d in regs],default=-1)
        if idx>=done[0]:
            n=min(15,len(q)-1-idx); k(f"s_waitcnt lgkmcnt({n})"); done[0]=len(q)-n
    for hh in range(2*R*c.UNR):
        h=hh%(2*R); last=h==2*R-1
        M=mfmas(h%2); RD=reads((h+1)%(2*R)); p=0
        bar=c.barpos if last else -1
        first=bar if last else 0
        for j,(ins,regs) in enumerate(M):
            need(regs); k(ins)
            if last and j==0 : k(f"s_add_u32 s{S_SLOT}, s{S_SLOT}, {STG}",f"s_cmp_ge_u32 s{S_SLOT}, {NS*STG}",f"s_cselect_b32 s{S_SLOT}, 0, s{S_SLOT}")
            if j==bar:
                k("s_waitcnt lgkmcnt(0)",f"v_add_u32 v{VX}, s{S_SLOT}, v{VX0}",f"v_add_u32 v{VW}, s{S_SLOT}, v{VW0}","s_barrier"); done[0]=len(q)
            if hh==2*R*c.UNR-1 and j==len(M)-2: k(f"s_sub_u32 s{S_CNT}, s{S_CNT}, {c.UNR}",f"s_cmp_lg_u32 s{S_CNT}, 0")
            if j>=first and (j-first)%c.rstep==0 and p<len(RD):
                k(RD[p][0]); q.append(RD[p][1]); p+=1
        for ins2,d in RD[p:]: k(ins2); q.append(d)
    k(f"s_cbranch_scc1 {k.lab('cloop')}")
    k("s_waitcnt lgkmcnt(0)","s_nop 7"); stamp(k,3)
    c.epilogue(k,ACC,FR,XTRA)
    if mega and c.sig: fsrd(k); c.sig(k)
    if STAMP and not (mega and c.sig): k("s_waitcnt vmcnt(0)")
    stamp(k,4)
    k.label("end")
    if c.aux:
        L=k.L; k.L=k.ool; k.label("aux"); c.aux(k); k(f"s_branch {k.lab('auxd')}"); k.L=L
    return k if mega else finish(k)
def zero_acc(n):
    def f(k,ACC,FR):
        for i in range(n): k(f"v_mov_b32 v{ACC+i}, 0")
    return f
def pack(k,dst,src,n=16):
    for i in range(n//2): k(f"v_cvt_pk_bf16_f32 v{dst+i}, v{src+2*i}, v{src+2*i+1}")
def relayout_addr(k,vsrc,vtr,sstride,g1,g2,vt=7):
    k(f"v_lshrrev_b32 v{vsrc}, 2, v0",f"v_mul_lo_u32 v{vsrc}, s{sstride}, v{vsrc}",f"v_and_b32 v{vt}, 3, v0",f"v_lshl_add_u32 v{vsrc}, v{vt}, 4, v{vsrc}",
      f"v_lshlrev_b32 v{vtr}, 4, v{vt}",f"v_bfe_u32 v{vt}, v0, 2, 2",f"v_lshl_add_u32 v{vtr}, v{vt}, 6, v{vtr}")
```

```python
from lib import *
import gemm as G
from gemm import *
from kern import rstd_from
import math
WS_RP=0x0; WS_CP=0x100000
def k_qkvd(km):
    k=begin(km,"qkv",163840); NS=4; STG=40960; LW=10; S=16; PSH=G.PSH
    k(f"s_load_dwordx4 s[48:51], s[0:1], {A_X}",f"s_load_dwordx2 s[52:53], s[0:1], {A_DBG}",f"s_load_dwordx8 s[80:87], s[0:1], {A_W1}",f"s_load_dwordx2 s[62:63], s[0:1], {A_WO}",f"s_load_dwordx2 s[78:79], s[0:1], {A_OUT}",f"s_and_b32 s{S_T}, s2, 7",f"s_lshr_b32 s{S_T2}, s2, 3")
    wgmap(k,"8x4")
    if G.LAT: k(f"s_and_b32 s58, s{S_MI}, 7","s_lshl_b32 s58, s58, 1",f"s_lshr_b32 s3, s{S_MI}, 3","s_add_u32 s58, s58, s3")
    else: k(f"s_mov_b32 s58, s{S_MI}")
    k(f"s_add_u32 s58, s58, s{S_NI}","s_and_b32 s58, s58, 15",
      f"s_cmp_lt_u32 s{S_WAVE}, 4",f"s_cbranch_scc1 {k.lab('cons')}")
    k(f"s_sub_u32 s{S_WAVE}, s{S_WAVE}, 4","v_lshrrev_b32 v3, 3, v0","v_and_b32 v4, 7, v0","v_lshrrev_b32 v5, 1, v3","v_xor_b32 v6, v4, v5","v_lshlrev_b32 v7, 11, v3")
    for u in range(4): k(f"v_xor_b32 v1, {4*(u%2)}, v6",f"v_lshl_add_u32 v{8+u}, v1, 4, v7",f"v_add_u32 v{8+u}, {u*(16384-1024)}, v{8+u}")
    k("v_and_b32 v5, 2, v3","v_xor_b32 v6, v4, v5","v_mul_u32_u24 v7, 6144, v3","v_lshl_add_u32 v12, v6, 4, v7","v_xor_b32 v6, 4, v6","v_lshl_add_u32 v13, v6, 4, v7",f"v_add_u32 v13, {8*6144-1024}, v13",
      f"s_lshl_b32 s41, s{S_WAVE}, 12",f"s_lshl_b32 s42, s{S_WAVE}, 11","s_add_u32 s42, s42, 16384",
      f"s_lshl_b32 s43, s{S_MI}, 2",f"s_add_u32 s43, s43, s{S_WAVE}","s_lshl_b32 s43, s43, 16",f"s_mul_i32 s3, s{S_WAVE}, {16*6144}")
    for p in range(3): k(f"s_add_u32 s{44+p}, s{S_NI}, {PSH*p}",f"s_and_b32 s{44+p}, s{44+p}, 15",f"s_lshl_b32 s{44+p}, s{44+p}, 7",f"s_add_u32 s{44+p}, s{44+p}, s3",f"s_add_u32 s{44+p}, s{44+p}, {2048*p}")
    k("s_mov_b32 s47, s58","s_and_b32 s59, s2, 7",f"s_mul_i32 s59, s59, {G.XOF}",f"s_and_b32 s3, s{S_MI}, {G.SKM}",f"s_mul_i32 s3, s3, {G.SK}","s_add_u32 s59, s59, s3","s_and_b32 s59, s59, 15")
    if G.SK<0: k("s_mov_b32 s59, s58")
    k(f"s_mov_b32 s{S_SLOT}, 0","s_waitcnt lgkmcnt(0)",srd(SX,48,0,0x400000),srd(SW,50,0,1024*6144))
    def issue():
        o=[f"s_mul_i32 s{S_WO}, s58, {64*6144}",f"s_lshl_b32 s{S_XO}, s58, 7",f"s_add_u32 s{S_XO}, s{S_XO}, s43",f"s_add_u32 m0, s{S_SLOT}, s41","s_add_u32 s58, s59, 1"]
        o+=[f"s_add_u32 s54, s{S_SLOT}, s41",f"s_add_u32 s55, s{S_SLOT}, s42"]+[f"s_add_u32 s{78+p}, s{S_WO}, s{44+p}" for p in range(3)]
        for it in G.QORD:
            if it[0]=="x": u=int(it[1]); o+=["s_mov_b32 m0, s54","s_nop 0",f"buffer_load_dwordx4 v{8+u}, s[{SX}:{SX+3}], s{S_XO} offen offset:{1024*u}{G.QLP} lds"]
            else: p,h=int(it[0]),int(it[1]); o+=[f"s_add_u32 m0, s55, {8192*p}","s_nop 0",f"buffer_load_dwordx4 v{12+h}, s[{SW}:{SW+3}], s{78+p} offen offset:{1024*h}{G.QLP} lds"]
        o+=["s_and_b32 s58, s58, 15","s_cmp_eq_u32 s59, s47","s_cselect_b32 s58, s58, s59","s_add_u32 s59, s58, 1","s_and_b32 s59, s59, 15",f"s_add_u32 s{S_SLOT}, s{S_SLOT}, {STG}",f"s_cmp_ge_u32 s{S_SLOT}, {NS*STG}",f"s_cselect_b32 s{S_SLOT}, 0, s{S_SLOT}"]
        return o
    def rep(tag,n,code): k(f"s_mov_b32 s{S_CNT}, {n}"); k.label(tag); k(code,f"s_sub_u32 s{S_CNT}, s{S_CNT}, 1",f"s_cmp_lg_u32 s{S_CNT}, 0",f"s_cbranch_scc1 {k.lab(tag)}")
    P0=G.QP0
    rep("lpro",P0,issue())
    for j in range(NS-1-P0): k(f"s_waitcnt vmcnt({(P0-1+j)*LW})","s_barrier",issue(),issue())
    rep("lloop",S-(NS-1)-(NS-1-P0),[f"s_waitcnt vmcnt({(NS-2)*LW})","s_barrier",issue()])
    k(f"s_waitcnt vmcnt({2*LW})","s_barrier",srd(SF,52,0,256),"s_mov_b32 s43, 0")
    if G.STAMP: k("s_memtime s[70:71]")
    poll(k,"d",43,G.NCT,256//G.NCT,sh={2:7,4:6,8:5}[G.NCT])
    if G.STAMP: k("s_memtime s[72:73]")
    k(srd(SA,P_WS,0,0x200000),f"s_and_b32 s3, s{S_WAVE}, 1","s_lshl_b32 s3, s3, 6","v_add_u32 v20, s3, v0",f"s_add_u32 s44, s{S_NI}, {WS_CP>>14}",f"s_cmp_lt_u32 s{S_WAVE}, 2",f"s_cselect_b32 s43, s{S_MI}, s44","s_lshl_b32 s43, s43, 14","v_lshlrev_b32 v21, 3, v20")
    for p in range(16): k(f"buffer_load_dwordx2 {vr(24+2*p,2)}, v21, s[{SA}:{SA+3}], s43 offen sc1","s_add_u32 s43, s43, 1024")
    k(srd(SX,62,0,1024*2048),srd(SW,P_WS,WS_WO,1024*2048),"s_mov_b32 s35, 2048"); relayout_addr(k,8,9,35,None,None)
    k("s_lshr_b32 s41, s2, 3","s_and_b32 s42, s2, 7","s_lshl_b32 s42, s42, 2",f"s_add_u32 s42, s42, s{S_WAVE}","s_lshl_b32 s43, s41, 16","s_lshl_b32 s3, s42, 6","s_add_u32 s43, s43, s3","s_add_u32 s44, s43, 32768",
      f"s_lshl_b32 s45, s{S_WAVE}, 11","s_add_u32 s45, s45, 8192","s_mov_b32 m0, s45","v_lshrrev_b32 v7, 4, v0",f"buffer_load_dwordx4 v8, s[{SX}:{SX+3}], s43 offen nt lds","s_add_u32 m0, s45, 1024",
      "v_lshl_add_u32 v9, v7, 9, v9",f"buffer_load_dwordx4 v8, s[{SX}:{SX+3}], s44 offen nt lds","v_add_u32 v9, s45, v9","v_lshlrev_b32 v10, 4, v0")
    k("s_barrier","s_barrier","s_waitcnt vmcnt(2)")
    for p in range(1,16): k(f"v_pk_add_f32 v[24:25], v[24:25], {vr(24+2*p,2)}")
    k(f"s_cmp_lt_u32 s{S_WAVE}, 2",f"s_cbranch_scc1 {k.lab('rows2')}","ds_write_b64 v21, v[24:25] offset:1024",f"s_branch {k.lab('rc2')}")
    k.label("rows2"); rstd_from(k,24,25,26); k("v_lshlrev_b32 v21, 2, v20","ds_write_b32 v21, v24","ds_write_b32 v21, v26 offset:512")
    k.label("rc2")
    if G.STAMP:
        k("s_memtime s[74:75]","s_lshl_b32 s62, s2, 7",f"s_add_u32 s62, s62, {0x2f00000+65536+64+20}","s_waitcnt lgkmcnt(0)","v_mov_b32 v255, s62")
        for j,r in enumerate((68,70,72,74)): k(f"v_mov_b32 v254, s{r}",f"global_store_dword v255, v254, s[4:5] offset:{4*j}")
    k("s_waitcnt lgkmcnt(0)","s_barrier",
      "s_lshr_b32 s43, s42, 1","s_lshl_b32 s43, s43, 17","s_and_b32 s3, s42, 1","s_lshl_b32 s3, s3, 12","s_add_u32 s43, s43, s3","s_lshr_b32 s3, s41, 1","s_lshl_b32 s3, s3, 13","s_add_u32 s43, s43, s3",
      "s_and_b32 s3, s41, 1","s_lshl_b32 s3, s3, 10","s_add_u32 s43, s43, s3","s_waitcnt vmcnt(0)")
    for t in range(2): k(f"ds_read_b64_tr_b16 {vr(12+4*t,2)}, v9 offset:{8*t}",f"ds_read_b64_tr_b16 {vr(14+4*t,2)}, v9 offset:{8*t+256}")
    k("s_waitcnt lgkmcnt(0)")
    for t in range(2): k(f"buffer_store_dwordx4 {vr(12+4*t,4)}, v10, s[{SW}:{SW+3}], s43 offen offset:{2048*t} sc1")
    k(f"s_branch {k.lab('end')}")
    k.label("cons")
    ACC=12; FR=ACC+96; FSZ=40; VX,VW,VX0,VW0=2,4,6,8
    k(f"s_lshr_b32 s{S_WM}, s{S_WAVE}, 1",f"s_and_b32 s{S_WN}, s{S_WAVE}, 1",
      "v_and_b32 v1, 15, v0","v_lshrrev_b32 v10, 4, v0","v_lshrrev_b32 v11, 1, v1","v_xor_b32 v11, v11, v10",f"v_lshlrev_b32 v{VX0}, 7, v1",f"v_lshl_add_u32 v{VX0}, v11, 4, v{VX0}",
      f"s_lshl_b32 s3, s{S_WM}, 13",f"v_add_u32 v{VX0}, s3, v{VX0}",f"v_xor_b32 v{VX0+1}, 64, v{VX0}",
      "v_bfe_u32 v11, v0, 3, 2",f"s_lshl_b32 s3, s{S_WN}, 1","v_xor_b32 v11, s3, v11",f"v_lshlrev_b32 v{VW0}, 5, v11",f"v_lshl_add_u32 v{VW0}, v10, 10, v{VW0}",
      "v_bfe_u32 v11, v0, 2, 2",f"v_lshl_add_u32 v{VW0}, v11, 7, v{VW0}","v_and_b32 v11, 3, v0",f"v_lshl_add_u32 v{VW0}, v11, 3, v{VW0}",f"v_add_u32 v{VW0}, 16384, v{VW0}",f"v_xor_b32 v{VW0+1}, 32, v{VW0}")
    for i in range(2): k(f"v_mov_b32 v{VX+i}, v{VX0+i}",f"v_mov_b32 v{VW+i}, v{VW0+i}")
    for i in range(96): k(f"v_mov_b32 v{ACC+i}, 0")
    k(f"s_mov_b32 s{S_SLOT}, 0",f"s_mov_b32 s{S_CNT}, {S}","s_waitcnt lgkmcnt(0)")
    fsrd(k); k("s_lshl_b32 s3, s2, 2",f"s_add_u32 s3, s3, s{S_WAVE}","s_lshl_b32 s3, s3, 10","v_lshlrev_b32 v11, 4, v0",f"buffer_store_dwordx4 {vr(ACC,4)}, v11, s[{SF}:{SF+3}], s3 offen sc1")
    def warm():
        if G.WRM:
            k("s_lshr_b32 s3, s2, 3","v_lshlrev_b32 v248, 5, v0","v_add_u32 v248, s3, v248",f"v_lshlrev_b32 v249, {G.WRM}, v248")
            jobs=[[(4,0x4d00000),(52,256)],[(80,1024*7168),(84,3584*2048),(62,1024*2048)],[(78,0x400000),(48,0x400000),(50,1024*6144)]]
            for w,J in enumerate(jobs):
                k(f"s_cmp_lg_u32 s{S_WAVE}, {w}",f"s_cbranch_scc1 {k.lab('w%d'%w)}")
                for p,n in J: k(srd(SC,p,0,n),f"buffer_load_dword v250, v249, s[{SC}:{SC+3}], 0 offen sc1")
                k.label("w%d"%w)
            k(f"s_cmp_lg_u32 s{S_WAVE}, 3",f"s_cbranch_scc1 {k.lab('w3')}","v_lshlrev_b32 v249, 7, v248",srd(SC,82,0,7168),f"buffer_load_dword v250, v249, s[{SC}:{SC+3}], 0 offen",
              srd(SC,86,0,2048),f"buffer_load_dword v250, v249, s[{SC}:{SC+3}], 0 offen")
            if G.WRC==1: k("s_getpc_b64 s[54:55]",k.lab("pc")+":",f"v_min_u32 v249, fused_kernel_last-{k.lab('pc')}, v249","v_mov_b32 v247, s55","v_add_co_u32 v246, vcc, s54, v249","s_nop 1","v_addc_co_u32 v247, vcc, 0, v247, vcc","global_load_dword v250, v[246:247], off")
            k.label("w3")
    if not G.WLATE: warm()
    stamp(k,1,True)
    ONE,T=190,196
    for i in range(4): k(f"v_mov_b32 v{ONE+i}, 0x3f803f80")
    k(srd(SA,P_WS,0,0x200000),srd(SB,52,0,256),f"s_lshl_b32 s3, s{S_WN}, 12",f"v_add_u32 v240, s3, v{VX0}",f"v_add_u32 v241, s3, v{VX0+1}",
      f"s_cmp_eq_u32 s{S_WM}, 0","s_cselect_b64 vcc, -1, 0",f"v_add_u32 v242, 8192, v{VW0+1}",f"v_add_u32 v243, 16384, v{VW0}",f"v_add_u32 v244, 16384, v{VW0+1}",f"v_add_u32 v245, 8192, v{VW0}",
      f"v_cndmask_b32 v242, v242, v{VW0}, vcc",f"v_cndmask_b32 v243, v243, v{VW0+1}, vcc","v_cndmask_b32 v244, v244, v245, vcc",
      f"s_lshl_b32 s41, s{S_MI}, 4","s_add_u32 s41, s41, s58","s_lshl_b32 s41, s41, 10",f"s_lshl_b32 s3, s{S_WAVE}, 8","s_add_u32 s41, s41, s3",
      f"s_lshl_b32 s42, s{S_NI}, 4","s_add_u32 s42, s42, s58","s_lshl_b32 s42, s42, 10",f"s_lshl_b32 s3, s{S_WN}, 9","s_add_u32 s42, s42, s3",f"s_lshl_b32 s3, s{S_WM}, 8","s_add_u32 s42, s42, s3",f"s_add_u32 s42, s42, {WS_CP}",
      "v_lshlrev_b32 v246, 3, v1","v_lshlrev_b32 v247, 4, v10","v_and_b32 v11, 3, v0","v_lshl_add_u32 v247, v11, 6, v247","v_cmp_eq_u32 s[54:55], 1, v11","v_cmp_eq_u32 s[56:57], 2, v11","v_cmp_eq_u32 s[60:61], 3, v11" if not G.STAMP else "v_cmp_eq_u32 s[76:77], 3, v11")
    M3="s[76:77]" if G.STAMP else "s[60:61]"
    k("s_barrier"); stamp(k,2)
    for kk in range(2):
        for t in range(2): k(f"ds_read_b128 {vr(FR+20*kk+4*t,4)}, v{240+kk} offset:{2048*t}")
        for t in range(3): k(f"ds_read_b64_tr_b16 {vr(FR+20*kk+8+4*t,2)}, v{242+t} offset:{4096*kk}",f"ds_read_b64_tr_b16 {vr(FR+20*kk+10+4*t,2)}, v{242+t} offset:{4096*kk+512}")
    for kk in range(2):
        k(f"s_waitcnt lgkmcnt({8-8*kk})")
        c=lambda d:(vr(d,4) if kk else "0")
        for t in range(2):
            x=vr(FR+20*kk+4*t,4)
            k(f"v_mfma_f32_16x16x32_bf16 {vr(T+8*t,4)}, {vr(ONE,4)}, {x}, {c(T+8*t)}",f"v_mfma_f32_16x16x32_bf16 {vr(T+8*t+4,4)}, {x}, {x}, {c(T+8*t+4)}")
        for t in range(3): k(f"v_mfma_f32_16x16x32_bf16 {vr(T+16+4*t,4)}, {vr(FR+20*kk+8+4*t,4)}, {vr(ONE,4)}, {c(T+16+4*t)}")
    def xf(b,tm): return FR+b*FSZ+4*tm
    def wf(b,tn): return FR+b*FSZ+16+4*tn
    def reads(b):
        X=[(f"ds_read_b128 {vr(xf(b,tm),4)}, v{VX+b} offset:{tm*2048}",xf(b,tm)) for tm in range(4)]
        W=[(f"ds_read_b64_tr_b16 {vr(wf(b,tn)+2*j,2)}, v{VW+tn%2} offset:{(tn//2)*8192+b*4096+j*512}",wf(b,tn)) for tn in range(6) for j in range(2)]
        return W[:2]+X+W[2:]
    q=[]
    for ins,d in reads(0): k(ins); q.append(d)
    for t in range(2):
        a=T+8*t
        k(f"v_cndmask_b32 v{a+1}, v{a+4}, v{a+5}, s[54:55]",f"v_cndmask_b32 v{a+1}, v{a+1}, v{a+6}, s[56:57]",f"v_cndmask_b32 v{a+1}, v{a+1}, v{a+7}, {M3}")
    for r in range(4): k(f"v_cndmask_b32 v{T+16+r}, v{T+16+r}, v{T+20+r}, s[54:55]",f"v_cndmask_b32 v{T+16+r}, v{T+16+r}, v{T+24+r}, s[56:57]")
    k("s_mov_b32 exec_lo, 0x00f0000f","s_mov_b32 exec_hi, 0xf0000f00")
    for t in range(2): k(f"buffer_store_dwordx2 {vr(T+8*t,2)}, v246, s[{SA}:{SA+3}], s41 offen offset:{128*t} sc1")
    k(f"buffer_store_dwordx4 {vr(T+16,4)}, v247, s[{SA}:{SA+3}], s42 offen sc1")
    k("s_mov_b64 exec, -1")
    if G.WLATE: warm()
    k(".p2align 3"); k.label("cloop")
    k(f"s_sub_u32 s3, s{S_CNT}, {G.SGA}","s_cmp_lt_u32 s3, 4",f"s_cbranch_scc1 {k.lab('aux')}"); k.label("auxd")
    done=[0]
    def need(regs):
        idx=max([i for i,d in enumerate(q) if d in regs],default=-1)
        if idx>=done[0]:
            n=min(15,len(q)-1-idx); k(f"s_waitcnt lgkmcnt({n})"); done[0]=len(q)-n
    for hh in range(4):
        b=hh%2; RD=reads(1-b); p=0; j=0; first=G.BP if b else 0
        for tn in range(6):
            for tm in range(4):
                a=ACC+4*(tm*6+tn); x,w=xf(b,tm),wf(b,tn); A,B=(x,w) if tn>=4 else (w,x)
                need((x,w)); k(f"v_mfma_f32_16x16x32_bf16 {vr(a,4)}, {vr(A,4)}, {vr(B,4)}, {vr(a,4)}")
                if b and j==0: k(f"s_add_u32 s{S_SLOT}, s{S_SLOT}, {STG}",f"s_cmp_ge_u32 s{S_SLOT}, {NS*STG}",f"s_cselect_b32 s{S_SLOT}, 0, s{S_SLOT}",f"v_add_u32 v{VX}, s{S_SLOT}, v{VX0}",f"v_add_u32 v{VX+1}, s{S_SLOT}, v{VX0+1}")
                if b and j==first: k(f"v_add_u32 v{VW}, s{S_SLOT}, v{VW0}",f"v_add_u32 v{VW+1}, s{S_SLOT}, v{VW0+1}","s_waitcnt lgkmcnt(0)","s_barrier"); done[0]=len(q)
                if hh==3 and j==22: k(f"s_sub_u32 s{S_CNT}, s{S_CNT}, 2",f"s_cmp_lg_u32 s{S_CNT}, 0")
                if j>=first and p<len(RD): k(RD[p][0]); q.append(RD[p][1]); p+=1
                j+=1
        assert p==len(RD)
    k(f"s_cbranch_scc1 {k.lab('cloop')}","s_waitcnt lgkmcnt(0)"); stamp(k,3)
    L=k.L; k.L=k.ool; k.label("aux")
    k("s_waitcnt vmcnt(0)",f"s_cmp_eq_u32 s{S_CNT}, {G.SGA}",f"s_cbranch_scc0 {k.lab('auxd')}",f"s_cmp_eq_u32 s{S_WAVE}, 0",f"s_cbranch_scc0 {k.lab('auxd')}",
      "v_mov_b32 v240, 0","v_mov_b32 v241, 1",f"s_and_b32 s3, s2, {G.NCT-1}",f"s_mul_i32 s3, s3, {256//G.NCT}","s_mov_b64 exec, 1",f"buffer_atomic_add v241, v240, s[{SB}:{SB+3}], s3 offen sc1","s_mov_b64 exec, -1",f"s_branch {k.lab('auxd')}"); k.L=L
    CS,TK,VC,VT=FR,FR+16,FR+32,FR+36
    k(f"s_lshl_b32 s3, s{S_WN}, 9","v_lshl_add_u32 v2, v10, 4, s3","v_lshl_add_u32 v3, v1, 2, s3",f"s_lshl_b32 s3, s{S_WM}, 8","v_lshl_add_u32 v4, v1, 2, s3","v_lshl_add_u32 v5, v10, 4, s3")
    for tn in range(4): k(f"ds_read_b128 {vr(CS+4*tn,4)}, v2 offset:{1024+256*(tn//3)+64*(tn%3)}")
    for tm in range(4): k(f"ds_read_b32 v{TK+4*tm}, v4 offset:{64*tm}",f"ds_read_b32 v{TK+4*tm+2}, v4 offset:{512+64*tm}")
    k("s_waitcnt lgkmcnt(0)")
    for t in range(2): k(f"ds_read_b32 v{VC+2*t}, v3 offset:{1024+256+64+64*t}")
    for tm in range(4): k(f"ds_read_b128 {vr(VT+8*tm,4)}, v5 offset:{64*tm}",f"ds_read_b128 {vr(VT+8*tm+4,4)}, v5 offset:{512+64*tm}")
    k(srd(SO,P_WS,WS_QF,0x400000),srd(SA,P_WS,WS_KV,0x800000),f"s_lshl_b32 s{S_T}, s{S_MI}, 2",f"s_lshl_b32 s3, s{S_WM}, 1",f"s_add_u32 s{S_T}, s{S_T}, s3")
    for p in range(3): k(f"s_add_u32 s3, s{S_NI}, {PSH*p}","s_and_b32 s3, s3, 15","s_lshl_b32 s3, s3, 1",f"s_add_u32 s3, s3, s{S_WN}","s_lshl_b32 s3, s3, 6",f"s_add_u32 s3, s3, s{S_T}",f"s_lshl_b32 s{41+2*p}, s3, {12 if p else 11}",f"s_add_u32 s{42+2*p}, s{41+2*p}, {4096 if p else 2048}")
    k("v_lshlrev_b32 v2, 9, v10","v_lshl_add_u32 v2, v1, 4, v2","s_waitcnt lgkmcnt(0)")
    B="op_sel_hi:[1,0,1]"; d=FR+68; P=lambda r,i:vr(r+2*i,2)
    for tm in range(4):
        a=ACC+24*tm; m,r=vr(TK+4*tm,2),vr(TK+4*tm+2,2)
        for i in range(8): k(f"v_pk_fma_f32 {P(a,i)}, {P(CS,i)}, {m}, {P(a,i)} {B}")
        for i in range(4): k(f"v_pk_fma_f32 {P(a+16,i)}, {P(VT+8*tm,i%2)}, {vr(VC+2*(i//2),2)}, {P(a+16,i)} {B}")
        for i in range(4,8): k(f"v_pk_mul_f32 {P(a,i)}, {P(a,i)}, {r} op_sel_hi:[1,0]")
        k(f"v_mul_f32 v{TK+4*tm+2}, {f2u(math.log2(math.e)/math.sqrt(32))}, v{TK+4*tm+2}")
        for i in range(4): k(f"v_pk_mul_f32 {P(a+16,i)}, {P(a+16,i)}, {P(VT+8*tm+4,i%2)}")
        for i in range(4): k(f"v_pk_mul_f32 {P(a,i)}, {P(a,i)}, {r} op_sel_hi:[1,0]")
        pack(k,d,a+8,8); k(f"buffer_store_dwordx4 {vr(d,4)}, v2, s[{SA}:{SA+3}], s{43+tm//2} offen offset:{256*(tm%2)}{G.STF}"); d+=4
        if tm%2:
            for t in range(2):
                pack(k,d,a-24+16+4*t,4); pack(k,d+2,a+16+4*t,4)
                k(f"buffer_store_dwordx4 {vr(d,4)}, v2, s[{SA}:{SA+3}], s{45+tm//2} offen offset:{2048+256*t}{G.STF}"); d+=4
        pack(k,d,a,8); k(f"buffer_store_dwordx4 {vr(d,4)}, v2, s[{SO}:{SO+3}], s{41+tm//2} offen offset:{256*(tm%2)}{G.STF}"); d+=4
    k(f"s_lshl_b32 s43, s{S_NI}, 1",f"s_add_u32 s43, s43, s{S_WN}","s_lshl_b32 s43, s43, 5",f"s_lshl_b32 s3, s{S_MI}, 1","s_add_u32 s43, s43, s3",f"s_add_u32 s43, s43, s{S_WM}","s_lshl_b32 s92, s43, 7")
    stamp(k,4)
    k.label("end")
    return k
```

```python
from lib import *
WS_XN=0x0; WS_QF=0x400000; WS_KV=0x800000; WS_OF=0x1000000; WS_HF=0x1400000; WS_GF=0x1800000; WS_ST=0x2600000; WS_CS=0x2700000
WS_WQ=0x2800000; WS_WO=0x3200000; WS_W1=0x3400000; WS_W2=0x3c00000
import os
if os.environ.get('OVL','0')=='1': WS_OF=0; WS_GF=0; WS_HF=WS_WQ; WS_WO=WS_WQ+0x400000
P0=2; AUX6=4; R6=2; MEGA=1; NOPREP=1; WRM=21; NS2=4; EXB=1; EXL=0; AX2=2; SPLIT=1; SPM=0; WRC=2; WLATE=0; TLB=0; NCT=4; OUTP=''; DSTAMP=0; LAT=1; SGA=12; QLP=''; QORD='x0 00 10 x1 20 01 x2 11 x3 21'.split(); XOF=2; SK=0; SKM=3; PSH=0; QP0=2; UNR=2; UNR6=1; BP=2; RS=1; ALN=3; GATE=1; LDP=' sc1'; SLP=6
WS_FL=0x4400000; F1,F2,F3,F4,F5=0,0x20000,0x60000,0x80000,0xa0000; F6=0xa0400; F7=0xa1400; F8=0xc1400; FLN=0xe1400; EARLY=0; XD=8; AAL=3; ABP=0; ANP=0; ABN=4; WSP=1; WS_EX=0x4500000; S_KH=93; SF=88; S_W8=29
AORD=4; APRIO=0; SJL=(6,7); SJP=' nt'; XNB=0; XND=0; XNR=0; SJ=3
STW=' sc1'
STF=' sc1'
A_X,A_WQKV,A_WO,A_W1,A_B1,A_W2,A_B2,A_OUT,A_DBG,A_WS=0,8,16,32,40,48,56,64,72,80
S_WAVE,S_MI,S_NI,S_SLOT,S_CNT,S_XO,S_WO,S_T,S_T2,S_WM,S_WN=30,31,32,33,34,35,36,37,38,39,40
SX,SW,SO,SA,SB,SC=8,12,16,20,24,44
P_WS,P_W,P_A,P_B=4,6,48,50
STAMP=False
KID={"prep":0,"qkv":1,"attn":2,"oproj":3,"ffn1":4,"ffn2":5}
def stamp0(k):
    if STAMP: k("s_memrealtime s[66:67]","s_memtime s[68:69]")
def stamp(k,idx,pre=False):
    if DSTAMP and idx in (2,3,4) or DSTAMP and idx==1 and k.pre=="qkv":
        n=0 if idx==1 else (KID[k.pre]-1)*3+idx-1
        k("s_memrealtime s[64:65]","s_waitcnt lgkmcnt(0)",f"v_writelane_b32 v252, s64, {n}")
        if n==15: k("s_cmp_lg_u32 s2, 9",f"s_cbranch_scc1 {k.lab('ds')}",f"s_cmp_lg_u32 s{S_W8}, 0",f"s_cbranch_scc1 {k.lab('ds')}","s_load_dwordx2 s[62:63], s[0:1], 72","v_readlane_b32 s64, v252, 0","v_lshlrev_b32 v251, 2, v0","s_waitcnt lgkmcnt(0)",
                    "v_subrev_u32 v252, s64, v252","s_mov_b64 exec, 0xffff","global_store_dword v251, v252, s[62:63]"); k.label("ds")
    if not STAMP: return
    base=0x2f00000+KID[k.pre]*65536
    k("s_memtime s[60:61]","s_memrealtime s[64:65]","s_lshl_b32 s62, s2, 7",f"s_add_u32 s62, s62, {base+4*idx}","s_waitcnt lgkmcnt(0)",
      "v_mov_b32 v255, s62","v_mov_b32 v254, s60","v_mov_b32 v253, s64","global_store_dword v255, v254, s[4:5] offset:64","global_store_dword v255, v253, s[4:5]")
    if pre: k("v_mov_b32 v254, s68","v_mov_b32 v253, s66","global_store_dword v255, v254, s[4:5] offset:60","global_store_dword v255, v253, s[4:5] offset:-4")

class Cfg: pass
def begin(k,name,lds):
    first = k is None or not k.L
    if k is None: k=K(name+"_kernel",256,512,lds)
    k.pre=name; stamp0(k)
    if first:
        k("s_cmp_ge_u32 s2, 256",f"s_cbranch_scc1 {k.name}_exit",f"s_load_dwordx2 s[{P_WS}:{P_WS+1}], s[0:1], {A_WS}",
          "v_lshrrev_b32 v1, 6, v0","v_and_b32 v0, 63, v0","s_nop 0",f"v_readfirstlane_b32 s{S_W8}, v1","s_nop 1")
        if WRC==2:
            k(f"s_cmp_lg_u32 s{S_W8}, 3",f"s_cbranch_scc1 {k.lab('nc')}","s_getpc_b64 s[54:55]",k.lab("pc")+":","s_lshr_b32 s3, s2, 3","v_lshl_add_u32 v249, v0, 5, s3","v_lshlrev_b32 v249, 7, v249",
              f"v_min_u32 v249, fused_kernel_last-{k.lab('pc')}, v249","v_mov_b32 v247, s55","v_add_co_u32 v246, vcc, s54, v249","s_nop 1","v_addc_co_u32 v247, vcc, 0, v247, vcc","global_load_dword v250, v[246:247], off"); k.label("nc")
    k(f"s_mov_b32 s{S_WAVE}, s{S_W8}")
    return k
def finish(k):
    k.L.append(f"{k.name}_exit:"); k("s_endpgm"); k(k.ool); k.L.insert(len(k.L)-1,f"{k.name}_last:"); return k
def fsrd(k): k(srd(SF,P_WS,WS_FL,FLN))
def poll(k,tag,soff,nlanes,expect,x4=False,v=240,sh=7,hi=None,SF=SF):
    k(f"v_min_u32 v{v+4}, {nlanes-1}, v0",f"v_lshlrev_b32 v{v+4}, {4 if x4 else sh}, v{v+4}","s_mov_b32 s87, 0x40000",f"s_mov_b32 s86, {hex(expect)}")
    if hi: k(f"v_and_b32 v{v+4}, 31, v0",f"v_lshlrev_b32 v{v+4}, 7, v{v+4}",f"v_mov_b32 v{v}, s{hi[0]}",f"v_mov_b32 v{v+1}, s{hi[1]}","v_cmp_gt_u32 vcc, 32, v0","s_nop 1",f"v_cndmask_b32 v{v}, v{v+1}, v{v}, vcc",f"v_add_u32 v{v+4}, v{v}, v{v+4}")
    k.label("pl"+tag)
    if x4: k(f"buffer_load_dwordx4 {vr(v,4)}, v{v+4}, s[{SF}:{SF+3}], s{soff} offen sc1","s_waitcnt vmcnt(0)",f"v_and_b32 v{v}, v{v}, v{v+1}",f"v_and_b32 v{v+2}, v{v+2}, v{v+3}",f"v_and_b32 v{v}, v{v}, v{v+2}")
    else: k(f"buffer_load_dword v{v}, v{v+4}, s[{SF}:{SF+3}], s{soff} offen sc1","s_waitcnt vmcnt(0)")
    k(f"v_cmp_ne_u32 vcc, s86, v{v}","s_sub_u32 s87, s87, 1","s_nop 3",f"s_cbranch_vccz {k.lab('pd'+tag)}",f"s_sleep {SLP}","s_cmp_lg_u32 s87, 0",f"s_cbranch_scc1 {k.lab('pl'+tag)}")
    k.label("pd"+tag)
def signal(k,soff,n=1,v=240,byte=False,vm=0):
    k(f"v_lshlrev_b32 v{v}, 7, v0",f"v_mov_b32 v{v+1}, 1",f"s_waitcnt vmcnt({vm})",f"s_mov_b64 exec, {(1<<n)-1}",
      f"buffer_store_{'byte' if byte else 'dword'} v{v+1}, v{v}, s[{SF}:{SF+3}], s{soff} offen sc1","s_mov_b64 exec, -1")

def wgmap(k,kind):
    if kind=="8x4":
        k(f"s_and_b32 s{S_MI}, s{S_T}, 1",f"s_lshl_b32 s{S_MI}, s{S_MI}, 3",f"s_and_b32 s3, s{S_T2}, 7",f"s_add_u32 s{S_MI}, s{S_MI}, s3",
          f"s_lshr_b32 s{S_NI}, s{S_T}, 1",f"s_lshl_b32 s{S_NI}, s{S_NI}, 2",f"s_lshr_b32 s3, s{S_T2}, 3",f"s_add_u32 s{S_NI}, s{S_NI}, s3")
    else:
        k(f"s_and_b32 s{S_MI}, s{S_T}, 3",f"s_lshl_b32 s{S_MI}, s{S_MI}, 2",f"s_and_b32 s3, s{S_T2}, 3",f"s_add_u32 s{S_MI}, s{S_MI}, s3",
          f"s_lshr_b32 s{S_NI}, s{S_T}, 2",f"s_lshl_b32 s{S_NI}, s{S_NI}, 3",f"s_lshr_b32 s3, s{S_T2}, 2",f"s_add_u32 s{S_NI}, s{S_NI}, s3")
def gemm(name, c, km=None):
    TM,TN,WM,WN,NS,KD=c.TM,c.TN,c.WM,c.WN,c.NS,c.K
    R=c.R; NT=TN*WN; WB=NT*2048; SG1=16384+WB; STG=SG1*R; S1=KD//64; S=S1//R//(2 if c.split else 1); NWL=NT//2; LW=(4+NWL)*R
    XTRA=147456; mega=km is not None
    k=begin(km,name,max(NS*STG,XTRA+c.lds_extra if c.lds_extra else 0))
    if c.aarg is not None: k(f"s_load_dwordx2 s[{P_A}:{P_A+1}], s[0:1], {c.aarg}")
    if c.barg is not None: k(f"s_load_dwordx2 s[{P_B}:{P_B+1}], s[0:1], {c.barg}")
    k(f"s_and_b32 s{S_T}, s2, 7",f"s_lshr_b32 s{S_T2}, s2, 3")
    wgmap(k,c.map)
    if c.split:
        if SPM: k(f"s_and_b32 s{S_KH}, s{S_NI}, 1",f"s_lshr_b32 s{S_NI}, s{S_NI}, 1")
        else: k(f"s_lshr_b32 s{S_KH}, s{S_NI}, 3",f"s_and_b32 s{S_NI}, s{S_NI}, 7")
    k("v_lshlrev_b32 v2, 4, v0",f"s_cmp_lt_u32 s{S_WAVE}, 4",f"s_cbranch_scc1 {k.lab('cons')}")
    k(f"s_sub_u32 s{S_WAVE}, s{S_WAVE}, 4",f"s_lshl_b32 s41, s{S_WAVE}, 12",f"s_mul_i32 s42, s{S_WAVE}, {NWL*1024}",
      f"s_mul_i32 s{S_XO}, s{S_MI}, {KD*256}",f"s_add_u32 s{S_XO}, s{S_XO}, s41",
      f"s_mul_i32 s{S_WO}, s{S_NI}, {S1*WB}",f"s_add_u32 s{S_WO}, s{S_WO}, s42","s_add_u32 s42, s42, 16384",f"s_mov_b32 s{S_SLOT}, 0",
      "s_waitcnt lgkmcnt(0)",srd(SX,P_WS,c.xoff,2048*KD*2),srd(SW,P_WS,c.woff,16*S1*WB))
    WST=WB
    if c.split:
        WST=WB//2
        k(f"s_mul_i32 s3, s{S_KH}, {S*16384}",f"s_add_u32 s{S_XO}, s{S_XO}, s3",f"s_lshl_b32 s{S_WO}, s{S_NI}, 1",f"s_lshr_b32 s3, s{S_WAVE}, 1",f"s_add_u32 s{S_WO}, s{S_WO}, s3",f"s_mul_i32 s{S_WO}, s{S_WO}, {S1*WST}",
          f"s_and_b32 s3, s{S_WAVE}, 1","s_lshl_b32 s3, s3, 12",f"s_add_u32 s{S_WO}, s{S_WO}, s3",f"s_mul_i32 s3, s{S_KH}, {S*WST}",f"s_add_u32 s{S_WO}, s{S_WO}, s3",f"s_mov_b32 s{SW+2}, {16*S1*WST}")
    dep=mega and c.xflag is not None
    P=LDP if dep else ''
    def issue(w=True,x=True): return [issue1(w,x) for r in range(R)]
    early=c.split and EARLY
    if early:
        E=[0,2,7,9,14,16,21,23]; seq=E+[t for t in range(28) if t not in E]
        tbl=sum(((seq[i+1]-seq[i])%28)<<(4*i) for i in range(27))
        def tinit(): return ["s_mov_b32 s95, 0"]+[f"s_mov_b32 s{96+i}, {hex((tbl>>(32*i))&0xffffffff)}" for i in range(4)]
        k(f"s_mov_b32 s46, s{S_XO}",f"s_mov_b32 s47, s{S_WO}",tinit())
    def issue1(w,x):
        o=[]
        if early: o+=[f"s_lshl_b32 s{S_XO}, s95, 14",f"s_add_u32 s{S_XO}, s{S_XO}, s46",f"s_lshl_b32 s{S_WO}, s95, 13",f"s_add_u32 s{S_WO}, s{S_WO}, s47",
                      "s_and_b32 s3, s96, 15","s_add_u32 s95, s95, s3","s_lshr_b64 s[96:97], s[96:97], 4","s_lshl_b32 s3, s98, 28","s_or_b32 s97, s97, s3","s_lshr_b64 s[98:99], s[98:99], 4",
                      "s_sub_u32 s3, s95, 28","s_cmp_ge_u32 s95, 28","s_cselect_b32 s95, s3, s95"]
        if w:
            o+=[f"s_add_u32 m0, s{S_SLOT}, s42",f"s_add_u32 s{S_T2}, s{S_WO}, 4096"]
            for j in range(NWL):
                if j==4: o+=["s_add_u32 m0, m0, 4096","s_nop 0"]
                o+=[f"buffer_load_dwordx4 v2, s[{SW}:{SW+3}], s{S_WO if j<4 else S_T2} offen offset:{(j%4)*1024}{P} lds"]
            o+=[f"s_add_u32 s{S_WO}, s{S_WO}, {WST}"]
        if x:
            o+=[f"s_add_u32 m0, s{S_SLOT}, s41","s_nop 0"]
            for u in range(4): o+=[f"buffer_load_dwordx4 v2, s[{SX}:{SX+3}], s{S_XO} offen offset:{u*1024}{P} lds"]
            o+=[f"s_add_u32 s{S_XO}, s{S_XO}, 16384"]
        o+=[f"s_add_u32 s{S_SLOT}, s{S_SLOT}, {SG1}",f"s_cmp_ge_u32 s{S_SLOT}, {NS*STG}",f"s_cselect_b32 s{S_SLOT}, 0, s{S_SLOT}"]
        return o
    def rep(tag,n,code): k(f"s_mov_b32 s{S_CNT}, {n}"); k.label(tag); k(code,f"s_sub_u32 s{S_CNT}, s{S_CNT}, 1",f"s_cmp_lg_u32 s{S_CNT}, 0",f"s_cbranch_scc1 {k.lab(tag)}")
    if STAMP: k("s_memtime s[70:71]")
    if dep:
        fsrd(k)
        if c.wflag: k(f"s_mov_b32 s43, {c.wflag[0]}"); poll(k,"w",43,c.wflag[1],1,c.wflag[2])
        if not c.wlate: rep("lpw",(NS-1)*R,issue1(True,False))
        k(f"s_lshl_b32 s43, s{S_MI}, 2",f"s_add_u32 s43, s43, s{S_WAVE}",f"s_lshr_b32 s43, s43, {c.xflag[2]}",f"s_mul_i32 s43, s43, {c.xflag[1]*128}",f"s_add_u32 s43, s43, {c.xflag[0]}",f"s_mov_b32 s{S_SLOT}, 0")
        if c.gate and not early: k("s_barrier")
        if c.wlate: k(f"s_mov_b32 s44, {F6}","s_mov_b32 s45, 0"); poll(k,"x",45,64,1,hi=(43,44))
        elif c.split: k(f"s_lshl_b32 s3, s{S_KH}, 11","s_add_u32 s43, s43, s3",f"s_add_u32 s45, s43, {F8-F4 if early else 0}",tinit() if early else []); poll(k,"x",45,16,1)
        else: poll(k,"x",43,c.xflag[1],1)
        if STAMP: k("s_memtime s[72:73]")
        rep("lpx",(NS-1)*R,issue1(c.wlate,True))
        if STAMP: k("s_memtime s[74:75]")
        for j in range(NS-1): k(f"s_waitcnt vmcnt({(NS-2-j)*(LW if c.wlate else 4*R)+j*LW})","s_barrier",issue())
        P0=0
        if early:
            rep("le",2,[f"s_waitcnt vmcnt({(NS-2)*LW})","s_barrier",issue()]); poll(k,"y",43,16,1); P0=-2
    else:
        P0=min(c.P0,NS-1)
        rep("lpro",P0,issue())
        if STAMP: k("s_memtime s[72:73]",f"s_waitcnt vmcnt({(P0-1)*LW})","s_memtime s[74:75]")
        for j in range(NS-1-P0): k(f"s_waitcnt vmcnt({(P0-1+j)*LW})","s_barrier",issue(),issue())
    k(f"s_mov_b32 s{S_CNT}, {S-(NS-1)-(NS-1-P0)}"); k.label("lloop")
    k(f"s_waitcnt vmcnt({(NS-2)*LW})","s_barrier",issue(),f"s_sub_u32 s{S_CNT}, s{S_CNT}, 1",f"s_cmp_lg_u32 s{S_CNT}, 0",f"s_cbranch_scc1 {k.lab('lloop')}")
    nh=c.loader_head(k) if c.loader_head else 0
    for j in range(NS-1): k(f"s_waitcnt vmcnt({(NS-2-j)*LW+nh})","s_barrier")
    if nh: k("s_waitcnt vmcnt(0)")
    if c.loader_tail: c.loader_tail(k,XTRA)
    if STAMP:
        k("s_lshl_b32 s62, s2, 7",f"s_add_u32 s62, s62, {0x2f00000+KID[k.pre]*65536+64+20}","s_waitcnt lgkmcnt(0)","v_mov_b32 v255, s62")
        for j,r in enumerate((68,70,72,74)): k(f"v_mov_b32 v254, s{r}",f"global_store_dword v255, v254, s[4:5] offset:{4*j}")
    k("s_barrier")
    if c.post: c.post(k)
    k(f"s_branch {k.lab('end')}" if mega and c.sig else "s_endpgm")
    k.label("cons")
    ACC=c.acc0; FR=ACC+4*TM*TN; FSZ=4*(TM+TN)
    VX,VW,VX0,VW0=6,3,4,5
    assert FR+2*FSZ<=c.vmax,(FR+2*FSZ)
    if WN==2: k(f"s_lshr_b32 s{S_WM}, s{S_WAVE}, 1",f"s_and_b32 s{S_WN}, s{S_WAVE}, 1")
    else: k(f"s_mov_b32 s{S_WM}, s{S_WAVE}",f"s_mov_b32 s{S_WN}, 0")
    k(f"s_mul_i32 s{S_T}, s{S_WM}, {TM*2048}",f"v_add_u32 v{VX0}, s{S_T}, v2",
      f"s_mul_i32 s{S_T}, s{S_WN}, {TN*2048}",f"s_add_u32 s{S_T}, s{S_T}, 16384",f"v_add_u32 v{VW0}, s{S_T}, v2",
      f"v_mov_b32 v{VX}, v{VX0}",f"v_mov_b32 v{VW}, v{VW0}",f"s_mov_b32 s{S_SLOT}, 0",f"s_mov_b32 s{S_CNT}, {S}","s_waitcnt lgkmcnt(0)")
    if c.split:
        k(f"s_lshl_b32 s94, s{S_MI}, 3",f"s_add_u32 s94, s94, s{S_NI}","s_lshl_b32 s94, s94, 2",f"s_add_u32 s94, s94, s{S_WAVE}","s_lshl_b32 s94, s94, 1",f"s_add_u32 s94, s94, s{S_KH}",
          f"s_lshl_b32 s{S_WM}, s{S_WM}, 1",f"s_add_u32 s{S_WM}, s{S_WM}, s{S_KH}",f"s_lshl_b32 s{S_NI}, s{S_NI}, 1",f"s_add_u32 s{S_NI}, s{S_NI}, s{S_WN}")
    if dep and c.gate and not early: k("s_barrier")
    stamp(k,1,True)
    c.prologue(k,ACC,FR)
    def xf(b,tm): return FR+b*FSZ+4*tm
    def wf(b,tn): return FR+b*FSZ+4*TM+4*tn
    def reads(h):
        b=h%2; so=(h//2)*SG1
        X=[(f"ds_read_b128 {vr(xf(b,tm),4)}, v{VX} offset:{so+tm*2048+b*1024}",xf(b,tm)) for tm in range(TM)]
        W=[(f"ds_read_b128 {vr(wf(b,tn),4)}, v{VW} offset:{so+tn*2048+b*1024}",wf(b,tn)) for tn in range(TN)]
        return W[:1]+X+W[1:]
    def mfmas(b):
        o=[]
        for tn in range(TN):
            for tm in range(TM):
                a=ACC+4*(tm*TN+tn); x,w=xf(b,tm),wf(b,tn)
                A,B=(x,w) if c.swap(tn) else (w,x)
                o.append((f"v_mfma_f32_16x16x32_bf16 {vr(a,4)}, {vr(A,4)}, {vr(B,4)}, {vr(a,4)}",(x,w)))
        return o
    k("s_barrier"); stamp(k,2)
    q=[]
    for ins,d in reads(0): k(ins); q.append(d)
    k(f".p2align {ALN}"); k.label("cloop")
    if early:
        k(f"s_cmp_eq_u32 s{S_CNT}, {S-c.UNR}",f"s_cbranch_scc1 {k.lab('sg')}"); k.label("sgd")
        L=k.L; k.L=k.ool; k.label("sg"); signal(k,92); k(f"s_branch {k.lab('sgd')}"); k.L=L
    if c.aux: k(f"s_cmp_eq_u32 s{S_CNT}, {c.auxat}",f"s_cbranch_scc1 {k.lab('aux')}"); k.label("auxd")
    done=[0]
    def need(regs):
        idx=max([i for i,d in enumerate(q) if d in regs],default=-1)
        if idx>=done[0]:
            n=min(15,len(q)-1-idx); k(f"s_waitcnt lgkmcnt({n})"); done[0]=len(q)-n
    for hh in range(2*R*c.UNR):
        h=hh%(2*R); last=h==2*R-1
        M=mfmas(h%2); RD=reads((h+1)%(2*R)); p=0
        bar=c.barpos if last else -1
        first=bar if last else 0
        for j,(ins,regs) in enumerate(M):
            need(regs); k(ins)
            if last and j==0 : k(f"s_add_u32 s{S_SLOT}, s{S_SLOT}, {STG}",f"s_cmp_ge_u32 s{S_SLOT}, {NS*STG}",f"s_cselect_b32 s{S_SLOT}, 0, s{S_SLOT}")
            if j==bar:
                k("s_waitcnt lgkmcnt(0)",f"v_add_u32 v{VX}, s{S_SLOT}, v{VX0}",f"v_add_u32 v{VW}, s{S_SLOT}, v{VW0}","s_barrier"); done[0]=len(q)
            if hh==2*R*c.UNR-1 and j==len(M)-2: k(f"s_sub_u32 s{S_CNT}, s{S_CNT}, {c.UNR}",f"s_cmp_lg_u32 s{S_CNT}, 0")
            if j>=first and (j-first)%c.rstep==0 and p<len(RD):
                k(RD[p][0]); q.append(RD[p][1]); p+=1
        for ins2,d in RD[p:]: k(ins2); q.append(d)
    k(f"s_cbranch_scc1 {k.lab('cloop')}")
    k("s_waitcnt lgkmcnt(0)","s_nop 7"); stamp(k,3)
    c.epilogue(k,ACC,FR,XTRA)
    if mega and c.sig: fsrd(k); c.sig(k)
    if STAMP and not (mega and c.sig): k("s_waitcnt vmcnt(0)")
    stamp(k,4)
    k.label("end")
    if c.aux:
        L=k.L; k.L=k.ool; k.label("aux"); c.aux(k); k(f"s_branch {k.lab('auxd')}"); k.L=L
    return k if mega else finish(k)
def zero_acc(n):
    def f(k,ACC,FR):
        for i in range(n): k(f"v_mov_b32 v{ACC+i}, 0")
    return f
def pack(k,dst,src,n=16):
    for i in range(n//2): k(f"v_cvt_pk_bf16_f32 v{dst+i}, v{src+2*i}, v{src+2*i+1}")
def relayout_addr(k,vsrc,vtr,sstride,g1,g2,vt=7):
    k(f"v_lshrrev_b32 v{vsrc}, 2, v0",f"v_mul_lo_u32 v{vsrc}, s{sstride}, v{vsrc}",f"v_and_b32 v{vt}, 3, v0",f"v_lshl_add_u32 v{vsrc}, v{vt}, 4, v{vsrc}",
      f"v_lshlrev_b32 v{vtr}, 4, v{vt}",f"v_bfe_u32 v{vt}, v0, 2, 2",f"v_lshl_add_u32 v{vtr}, v{vt}, 6, v{vtr}")
```

```python
from lib import *
import gemm as G
from gemm import *
import math
def mkcfg(**kw):
    c=Cfg(); c.aarg=None; c.barg=None; c.loader_head=None; c.loader_tail=None; c.lds_extra=0; c.swap=lambda tn:False; c.acc0=8; c.vmax=252; c.barpos=G.BP; c.rstep=G.RS; c.UNR=G.UNR; c.aux=None; c.auxat=0; c.P0=G.P0; c.R=1; c.xflag=None; c.wflag=None; c.sig=None; c.wlate=False; c.split=False; c.post=None; c.gate=G.GATE
    c.__dict__.update(kw); return c
def unpack(k,dst,src,n):
    for i in range(n): k(f"v_lshlrev_b32 v{dst+2*i}, 16, v{src+i}",f"v_and_b32 v{dst+2*i+1}, 0xffff0000, v{src+i}")
def rstd_from(k,s,q,out):
    k(f"v_mul_f32 v{s}, {f2u(-1/1024)}, v{s}",f"v_mul_f32 v{q}, {f2u(1/1024)}, v{q}",f"v_fma_f32 v{q}, -v{s}, v{s}, v{q}",f"v_max_f32 v{q}, 0, v{q}",
      f"v_add_f32 v{q}, {f2u(1e-5)}, v{q}",f"v_rsq_f32 v{out}, v{q}")
def k_qkv(km=None):
    def epi(k,ACC,FR,X):
        k(srd(SO,P_WS,WS_QF,0x400000),srd(SA,P_WS,WS_KV,0x800000))
        k(f"s_lshl_b32 s{S_T}, s{S_MI}, 2",f"s_lshl_b32 s3, s{S_WM}, 1",f"s_add_u32 s{S_T}, s{S_T}, s3",
          f"s_lshl_b32 s{S_T2}, s{S_NI}, 1",f"s_add_u32 s{S_T2}, s{S_T2}, s{S_WN}",f"s_lshl_b32 s{S_T2}, s{S_T2}, 6",f"s_add_u32 s{S_T}, s{S_T}, s{S_T2}",
          f"s_lshl_b32 s41, s{S_T}, 11",f"s_lshl_b32 s42, s{S_T}, 12","s_add_u32 s43, s42, 4096",
          f"s_mov_b32 s52, {f2u(math.log2(math.e)/math.sqrt(32))}",f"s_mov_b32 s53, s52",
          "v_lshrrev_b32 v4, 4, v0","v_lshlrev_b32 v4, 9, v4","v_and_b32 v5, 15, v0","v_lshl_add_u32 v2, v5, 4, v4",
          )
        d=FR
        for tm in range(4):
            a=ACC+24*tm; sk=42+tm//2
            pack(k,d,a+8,8); k(f"buffer_store_dwordx4 {vr(d,4)}, v2, s[{SA}:{SA+3}], s{sk} offen offset:{256*(tm%2)}{G.STF}"); d+=4
            if tm%2:
                for t in range(2):
                    pack(k,d,a-24+16+4*t,4); pack(k,d+2,a+16+4*t,4)
                    k(f"buffer_store_dwordx4 {vr(d,4)}, v2, s[{SA}:{SA+3}], s{sk} offen offset:{2048+256*t}{G.STF}"); d+=4
            for i in range(4): k(f"v_pk_mul_f32 {vr(a+2*i,2)}, {vr(a+2*i,2)}, s[52:53]")
            pack(k,d,a,8); k(f"buffer_store_dwordx4 {vr(d,4)}, v2, s[{SO}:{SO+3}], s41 offen offset:{2048*(tm//2)+256*(tm%2)}{G.STF}"); d+=4
    def sig(k):
        k(f"s_lshl_b32 s43, s{S_NI}, 1",f"s_add_u32 s43, s43, s{S_WN}","s_lshl_b32 s43, s43, 5",f"s_lshl_b32 s3, s{S_MI}, 1","s_add_u32 s43, s43, s3",f"s_add_u32 s43, s43, s{S_WM}","s_lshl_b32 s43, s43, 7"); signal(k,43)
    c=mkcfg(sig=sig,TM=4,TN=6,WM=2,WN=2,NS=4,K=1024,woff=WS_WQ,xoff=WS_XN,map="8x4",swap=lambda tn:tn>=4,prologue=zero_acc(96),epilogue=epi)
    return gemm("qkv",c,km)
def rowmajor_addr(k,v,sdst):
    k(f"s_lshl_b32 s{sdst}, s{S_MI}, 2",f"s_add_u32 s{sdst}, s{sdst}, s{S_WM}",f"s_lshl_b32 s{sdst}, s{sdst}, 16",f"s_lshl_b32 s3, s{S_NI}, 7",f"s_add_u32 s{sdst}, s{sdst}, s3",
      f"s_add_u32 s{sdst+1}, s{sdst}, 32768",f"v_and_b32 v{v}, 15, v0",f"v_lshlrev_b32 v{v}, 11, v{v}","v_lshrrev_b32 v1, 4, v0",f"v_lshl_add_u32 v{v}, v1, 4, v{v}")
def hunit_addr(k,sdst):
    k(f"s_lshl_b32 s{sdst}, s{S_MI}, 18",f"s_lshl_b32 s3, s{S_NI}, 14",f"s_add_u32 s{sdst}, s{sdst}, s3",f"s_lshl_b32 s3, s{S_WM}, 12",f"s_add_u32 s{sdst}, s{sdst}, s3")
def k_oproj(km=None):
    def pro(k):
        k(srd(SA,P_A,0,0x400000)); rowmajor_addr(k,7,41)
        for j in range(4): k(f"buffer_load_dwordx4 {vr(100+4*j,4)}, v7, s[{SA}:{SA+3}], s{41+j//2} offen offset:{64*(j%2)}")
    def epi(k,ACC,FR,X):
        k(srd(SO,P_WS,WS_HF,0x400000),srd(SB,P_WS,WS_ST,2048*128)); hunit_addr(k,41)
        k("s_waitcnt vmcnt(0)"); unpack(k,120,100,16)
        for i in range(16): k(f"v_pk_add_f32 {vr(ACC+2*i,2)}, {vr(ACC+2*i,2)}, {vr(120+2*i,2)}")
        pack(k,FR,ACC,32)
        for j in range(4): k(f"buffer_store_dwordx4 {vr(FR+4*j,4)}, v2, s[{SO}:{SO+3}], s41 offen offset:{1024*j}{G.STF}")
        for tm in range(2):
            a=ACC+16*tm; s_,q_=100+4*tm,102+4*tm
            k(f"v_pk_add_f32 {vr(s_,2)}, {vr(a,2)}, {vr(a+2,2)}",f"v_pk_mul_f32 {vr(q_,2)}, {vr(a,2)}, {vr(a,2)}",f"v_pk_fma_f32 {vr(q_,2)}, {vr(a+2,2)}, {vr(a+2,2)}, {vr(q_,2)}")
            for i in range(2,8): k(f"v_pk_add_f32 {vr(s_,2)}, {vr(s_,2)}, {vr(a+2*i,2)}",f"v_pk_fma_f32 {vr(q_,2)}, {vr(a+2*i,2)}, {vr(a+2*i,2)}, {vr(q_,2)}")
            k(f"v_add_f32 v{s_}, v{s_}, v{s_+1}",f"v_add_f32 v{q_}, v{q_}, v{q_+1}")
        k(f"s_lshl_b32 s42, s{S_MI}, 2",f"s_add_u32 s42, s42, s{S_WM}","s_lshl_b32 s42, s42, 12",f"s_lshl_b32 s3, s{S_NI}, 8","s_add_u32 s42, s42, s3",
          "v_permlane32_swap_b32 v100, v104","v_permlane32_swap_b32 v102, v106","v_and_b32 v3, 15, v0","v_lshlrev_b32 v3, 3, v3",
          "v_add_f32 v100, v100, v104","v_add_f32 v102, v102, v106","v_lshrrev_b32 v4, 5, v0","v_lshl_add_u32 v3, v4, 7, v3",
          "v_permlane16_swap_b32 v100, v102","v_bfe_u32 v4, v0, 4, 1","v_lshl_add_u32 v3, v4, 2, v3","v_add_f32 v100, v100, v102",
          f"buffer_store_dword v100, v3, s[{SB}:{SB+3}], s42 offen sc1")
    def sig(k):
        k(f"s_lshl_b32 s43, s{S_MI}, 2",f"s_add_u32 s43, s43, s{S_WM}","s_lshl_b32 s43, s43, 4",f"s_add_u32 s43, s43, s{S_NI}","s_lshl_b32 s43, s43, 7",f"s_add_u32 s43, s43, {F3}"); signal(k,43)
    k=begin(km,"oproj",0); D=G.XD; ACC=8; FR=40; XR=256-16-8*D
    k(f"s_load_dwordx2 s[{P_A}:{P_A+1}], s[0:1], {A_X}",f"s_and_b32 s{S_T}, s2, 7",f"s_lshr_b32 s{S_T2}, s2, 3"); wgmap(k,"4x8")
    k("v_lshlrev_b32 v2, 4, v0",f"s_cmp_lt_u32 s{S_WAVE}, 4",f"s_cbranch_scc1 {k.lab('cons')}")
    k(srd(SW,P_WS,WS_WO,1024*2048),f"s_sub_u32 s41, s{S_WAVE}, 4","s_lshl_b32 s41, s41, 12",f"s_lshl_b32 s42, s{S_NI}, 17","s_add_u32 s42, s42, s41")
    for it in range(8):
        k("s_mov_b32 m0, s41","s_add_u32 s41, s41, 16384",[f"buffer_load_dwordx4 v2, s[{SW}:{SW+3}], s42 offen offset:{1024*u} sc1 lds" for u in range(4)],"s_add_u32 s42, s42, 16384")
        if G.WSP and it==4: k("s_waitcnt vmcnt(4)","s_barrier")
    k("s_waitcnt vmcnt(0)","s_barrier","s_barrier",f"s_branch {k.lab('end')}")
    k.label("cons")
    k(f"s_mov_b32 s{S_WM}, s{S_WAVE}",srd(SX,P_WS,WS_OF,0x400000),f"s_lshl_b32 s{S_XO}, s{S_MI}, 18",f"s_lshl_b32 s3, s{S_WM}, 12",f"s_add_u32 s{S_XO}, s{S_XO}, s3",
      f"s_lshl_b32 s43, s{S_MI}, 2",f"s_add_u32 s43, s43, s{S_WM}","s_lshl_b32 s43, s43, 12",f"s_add_u32 s43, s43, {F2}","v_add_u32 v3, 65536, v2","s_waitcnt lgkmcnt(0)")
    zero_acc(32)(k,ACC,FR); stamp(k,1,True); pro(k); poll(k,"x",43,32,1)
    def xl(t): return [f"buffer_load_dwordx4 {vr(XR+8*(t%D)+4*tm,4)}, v2, s[{SX}:{SX+3}], s{S_XO} offen offset:{2048*tm+1024*(t%2)} sc1" for tm in range(2)]+([f"s_add_u32 s{S_XO}, s{S_XO}, 16384"] if t%2 else [])
    def wr(t): return [f"ds_read_b128 {vr(FR+16*(t%2)+4*tn,4)}, v{2+t//16} offset:{((t//2)%8)*8192+tn*2048+(t%2)*1024}" for tn in range(4)]
    for t in range(D): k(xl(t))
    k("s_barrier"); stamp(k,2); k(wr(0))
    for t in range(32):
        n=2*(min(32,t+D)-t-1)+(2 if G.STAMP and t<D else 0)
        if G.WSP and t==15: k("s_barrier")
        k(wr(t+1) if t<31 else [],f"s_waitcnt vmcnt({n}) lgkmcnt({4 if t<31 else 0})")
        if t==31: k("s_barrier")
        for tn in range(4):
            for tm in range(2): a=ACC+4*(tm*4+tn); k(f"v_mfma_f32_16x16x32_bf16 {vr(a,4)}, {vr(FR+16*(t%2)+4*tn,4)}, {vr(XR+8*(t%D)+4*tm,4)}, {vr(a,4)}")
        if t+D<32: k(xl(t+D))
    k("s_nop 7"); stamp(k,3); epi(k,ACC,FR,0); sig(k); stamp(k,4); k.label("end")
    return k
def k_ffn1(km=None):
    def lhead(k):
        k(srd(SA,P_WS,WS_CS,4*3584*4),srd(SB,P_A,0,3584*2),f"s_lshl_b32 s{S_T}, s{S_WAVE}, 6",f"v_add_u32 v20, s{S_T}, v0",
          f"s_mul_i32 s{S_T}, s{S_NI}, 224",f"v_add_u32 v21, s{S_T}, v20","v_lshlrev_b32 v22, 2, v21","v_lshlrev_b32 v21, 1, v21",
          f"buffer_load_ushort v40, v21, s[{SB}:{SB+3}], 0 offen")
        for p in range(4): k(f"s_mov_b32 s{S_T}, {p*3584*4}",f"buffer_load_dword v{24+p}, v22, s[{SA}:{SA+3}], s{S_T} offen sc1")
        k(srd(SB,P_WS,WS_ST,2048*128),"v_and_b32 v41, 127, v20","v_lshrrev_b32 v42, 5, v41","v_and_b32 v43, 31, v41","v_lshlrev_b32 v43, 3, v43","v_lshl_add_u32 v42, v42, 12, v43",f"s_lshl_b32 s{S_T}, s{S_MI}, 14")
        for p in range(16): k(f"buffer_load_dwordx2 {vr(44+2*p,2)}, v42, s[{SB}:{SB+3}], s{S_T} offen offset:{256*p} sc1")
        return 21
    def ltail(k,X):
        for p in range(1,4): k(f"v_add_f32 v24, v24, v{24+p}")
        for p in range(1,16): k(f"v_pk_add_f32 v[44:45], v[44:45], {vr(44+2*p,2)}")
        rstd_from(k,44,45,46); k("v_lshlrev_b32 v41, 2, v41",f"v_add_u32 v41, {X+2048}, v41","ds_write_b32 v41, v44","ds_write_b32 v41, v46 offset:512")
        k("v_lshlrev_b32 v40, 16, v40","v_lshrrev_b32 v21, 5, v20","v_bfe_u32 v22, v20, 2, 1","v_lshl_add_u32 v25, v21, 1, v22",
          "v_bfe_u32 v28, v20, 3, 2","v_bfe_u32 v29, v20, 2, 2","v_bfe_u32 v22, v20, 4, 1",
          "v_cmp_lt_u32 vcc, 3, v21","v_subrev_u32 v26, 1, v25","v_mul_u32_u24 v27, 7, v22","v_cndmask_b32 v25, v25, v26, vcc","v_cmp_eq_u32 vcc, 3, v21","v_add_u32 v27, 6, v27","s_nop 0","v_cndmask_b32 v25, v25, v27, vcc","v_cndmask_b32 v28, v28, v29, vcc",
          "v_cmp_eq_u32 vcc, 7, v21","v_mov_b32 v27, 15","s_nop 0","v_cndmask_b32 v25, v25, v27, vcc",
          "v_lshlrev_b32 v25, 6, v25","v_lshl_add_u32 v25, v28, 4, v25","v_and_b32 v26, 3, v20","v_lshl_add_u32 v25, v26, 2, v25",
          f"v_add_u32 v25, {X}, v25","ds_write_b32 v25, v24","ds_write_b32 v25, v40 offset:1024","s_waitcnt lgkmcnt(0)")
    ST=208
    def epi(k,ACC,FR,X):
        k(srd(SO,P_WS,WS_GF,2048*3584*2))
        CSR=FR; BR=FR+28; T=FR+56
        k(f"s_mul_i32 s3, s{S_WN}, 448",f"s_add_u32 s3, s3, {X}","v_lshrrev_b32 v3, 4, v0","v_lshlrev_b32 v3, 4, v3","v_add_u32 v3, s3, v3")
        for tn in range(7): k(f"ds_read_b128 {vr(CSR+4*tn,4)}, v3 offset:{64*tn}",f"ds_read_b128 {vr(BR+4*tn,4)}, v3 offset:{1024+64*tn}")
        k(f"s_lshl_b32 s3, s{S_WM}, 8",f"s_add_u32 s3, s3, {X+2048}","v_and_b32 v1, 15, v0","v_lshl_add_u32 v1, v1, 2, s3","s_waitcnt lgkmcnt(4)")
        for tm in range(4): k(f"ds_read_b32 v{ST+8*tm}, v1 offset:{64*tm}",f"ds_read_b32 v{ST+8*tm+2}, v1 offset:{512+64*tm}")
        k(f"s_mul_i32 s41, s{S_MI}, {3584*256}",f"s_lshl_b32 s3, s{S_WM}, 13","s_add_u32 s41, s41, s3",f"s_mul_i32 s42, s{S_NI}, 7",f"s_lshl_b32 s43, s{S_WN}, 2")
        for p in range(4):
            if p<3: k(f"s_add_u32 s3, s42, s43",f"s_add_u32 s3, s3, {p}")
            else: k("s_add_u32 s3, s42, 3")
            k(f"s_lshr_b32 s{54+p}, s3, 1",f"s_lshl_b32 s{54+p}, s{54+p}, 14","s_and_b32 s3, s3, 1","s_lshl_b32 s3, s3, 10",f"s_add_u32 s{54+p}, s{54+p}, s3",f"s_add_u32 s{54+p}, s{54+p}, s41")
        k(f"s_lshl_b32 s3, s{S_WN}, 9","s_add_u32 s57, s57, s3","v_add_u32 v7, 4096, v2",
          "v_and_b32 v6, 15, v0","v_lshlrev_b32 v6, 4, v6","v_bfe_u32 v1, v0, 4, 1","v_lshl_add_u32 v6, v1, 11, v6","v_lshrrev_b32 v1, 5, v0","v_lshl_add_u32 v6, v1, 8, v6")
        a_=-2*0.7978845608028654*math.log2(math.e); b_=a_*0.044715
        k(f"s_mov_b32 s52, {f2u(b_)}",f"s_mov_b32 s53, {f2u(b_)}",f"v_mov_b32 v4, {f2u(a_)}",f"v_mov_b32 v5, {f2u(a_)}","s_waitcnt lgkmcnt(0)")
        fsrd(k)
        k(f"s_lshl_b32 s43, s{S_MI}, 1",f"s_add_u32 s43, s43, s{S_WM}","s_lshl_b32 s43, s43, 5",f"s_lshl_b32 s3, s{S_NI}, 1","s_add_u32 s43, s43, s3",f"s_add_u32 s43, s43, s{S_WN}","s_lshl_b32 s43, s43, 7",
          f"s_add_u32 s92, s43, {F4}",f"s_add_u32 s43, s43, {F8}")
        for p in range(4):
            n=4 if p<3 else 2; I=[(tm,i) for tm in range(4) for i in range(n)]
            A=lambda tm,i:vr(ACC+28*tm+8*p+2*i,2); TT=lambda tm,i:vr(T+2*(n*tm+i),2)
            for tm,i in I: k(f"v_pk_fma_f32 {A(tm,i)}, {vr(CSR+8*p+2*i,2)}, {vr(ST+8*tm,2)}, {A(tm,i)} op_sel_hi:[1,0,1]")
            for tm,i in I: k(f"v_pk_fma_f32 {A(tm,i)}, {A(tm,i)}, {vr(ST+8*tm+2,2)}, {vr(BR+8*p+2*i,2)} op_sel_hi:[1,0,1]")
            for tm,i in I: k(f"v_pk_mul_f32 {TT(tm,i)}, {A(tm,i)}, {A(tm,i)}")
            for tm,i in I: k(f"v_pk_fma_f32 {TT(tm,i)}, {TT(tm,i)}, s[52:53], v[4:5]")
            for tm,i in I: k(f"v_pk_mul_f32 {TT(tm,i)}, {TT(tm,i)}, {A(tm,i)}")
            for i in range(8*n): k(f"v_exp_f32 v{T+i}, v{T+i}")
            for tm,i in I: k(f"v_pk_add_f32 {TT(tm,i)}, {TT(tm,i)}, 1.0 op_sel_hi:[1,0]")
            for i in range(8*n): k(f"v_rcp_f32 v{T+i}, v{T+i}")
            for tm,i in I: k(f"v_pk_mul_f32 {TT(tm,i)}, {TT(tm,i)}, {A(tm,i)}")
            if p==2 and G.EARLY and G.SPLIT: signal(k,43)
            for tm in range(4):
                if p<3:
                    d=ACC+28*tm+8*p; pack(k,d,T+8*tm,8)
                    k(f"buffer_store_dwordx4 {vr(d,4)}, v{2 if tm<2 else 7}, s[{SO}:{SO+3}], s{54+p} offen offset:{2048*(tm%2)}{G.STF}")
                else: pack(k,ACC+28*(tm&~1)+24+2*(tm%2),T+4*tm,4)
            if p==3:
                k("s_nop 1")
                for h in range(2):
                    sg=ACC+56*h+24
                    k(f"v_permlane16_swap_b32 v{sg}, v{sg+2}",f"v_permlane16_swap_b32 v{sg+1}, v{sg+3}",f"buffer_store_dwordx4 {vr(sg,4)}, v6, s[{SO}:{SO+3}], s57 offen{G.STF}","s_add_u32 s57, s57, 4096")
    def sig(k):
        if not (G.EARLY and G.SPLIT): signal(k,92)
    c=mkcfg(sig=sig,xflag=(F3,16,0),wflag=(F5,56,True),TM=4,TN=7,WM=2,WN=2,NS=3,K=1024,aarg=A_B1,woff=WS_W1,xoff=WS_HF,map="8x4",prologue=zero_acc(112),epilogue=epi,loader_head=lhead,loader_tail=ltail,lds_extra=2048,vmax=208)
    return gemm("ffn1",c,km)
def k_ffn2(km=None):
    A=140 if G.SPLIT else 100
    def pro(k):
        k(srd(SA,P_WS,WS_HF,0x400000),srd(SB,P_A,0,2048)); hunit_addr(k,41)
        k(f"s_lshl_b32 s42, s{S_NI}, 7","v_lshrrev_b32 v7, 4, v0","v_lshlrev_b32 v7, 4, v7")
        for j in range(4): k(f"buffer_load_dwordx4 {vr(A+4*j,4)}, v2, s[{SA}:{SA+3}], s41 offen offset:{1024*j} sc1")
        for j in range(2): k(f"buffer_load_dwordx4 {vr(A+16+4*j,4)}, v7, s[{SB}:{SB+3}], s42 offen offset:{64*j}")
    def epi(k,ACC,FR,X):
        if G.SPLIT:
            k(srd(SA,P_WS,WS_EX,0x800000),"s_lshl_b32 s44, s94, 13","s_add_u32 s45, s44, 4096",f"s_cmp_eq_u32 s{S_KH}, 0",f"s_cbranch_scc1 {k.lab('nsw')}")
            for i in range(32): k(f"v_swap_b32 v{ACC+i}, v{ACC+32+i}")
            k.label("nsw")
            if G.EXB:
                for j in range(4): pack(k,FR+16+4*j,ACC+32+8*j,8); k(f"buffer_store_dwordx4 {vr(FR+16+4*j,4)}, v2, s[{SA}:{SA+3}], s44 offen offset:{1024*j} sc1")
            else:
                for j in range(8): k(f"buffer_store_dwordx4 {vr(ACC+32+4*j,4)}, v2, s[{SA}:{SA+3}], s{44+j//4} offen offset:{1024*(j%4)} sc1")
            k(f"s_waitcnt vmcnt({4 if G.EXB else 8})")
        else: k("s_waitcnt vmcnt(0)")
        k(srd(SO,P_B,0,0x400000)); rowmajor_addr(k,7,41)
        unpack(k,A+30,A,24)
        for i in range(16): k(f"v_pk_add_f32 {vr(ACC+2*i,2)}, {vr(ACC+2*i,2)}, {vr(A+62+2*(i%8),2)}")
        for i in range(16): k(f"v_pk_add_f32 {vr(ACC+2*i,2)}, {vr(ACC+2*i,2)}, {vr(A+30+2*i,2)}")
        if G.SPLIT:
            fsrd(k); k("s_lshl_b32 s43, s94, 7",f"s_add_u32 s43, s43, {F7}"); signal(k,43)
            NL=4 if G.EXB else 8; DST=FR+32 if G.EXB else ACC+32
            if G.EXL:
                k(f"s_lshl_b32 s3, s{S_WAVE}, 13","v_add_u32 v3, s3, v2","s_barrier")
                for j in range(NL): k(f"ds_read_b128 {vr(DST+4*j,4)}, v3 offset:{1024*j}")
            else:
                k("s_xor_b32 s94, s94, 1","s_lshl_b32 s43, s94, 7",f"s_add_u32 s43, s43, {F7}","s_lshl_b32 s44, s94, 13","s_add_u32 s45, s44, 4096")
                G.SLP,o=1,G.SLP; poll(k,"e",43,1,1); G.SLP=o
                for j in range(NL): k(f"buffer_load_dwordx4 {vr(DST+4*j,4)}, v2, s[{SA}:{SA+3}], s{44+j//4} offen offset:{1024*(j%4)} sc1")
        for j in range(4):
            if G.SPLIT:
                left=(3-j)*NL//4
                k(f"s_waitcnt lgkmcnt({left})" if G.EXL else f"s_waitcnt vmcnt({left+j})")
                if G.EXB: unpack(k,ACC+32+8*j,DST+4*j,4)
                for i in range(4*j,4*j+4): k(f"v_pk_add_f32 {vr(ACC+2*i,2)}, {vr(ACC+2*i,2)}, {vr(ACC+32+2*i,2)}")
            pack(k,FR+4*j,ACC+8*j,8)
            k(f"buffer_store_dwordx4 {vr(FR+4*j,4)}, v7, s[{SO}:{SO+3}], s{41+j//2} offen offset:{64*(j%2)}{G.OUTP}")
    def post(k):
        k(srd(SA,P_WS,WS_EX,0x800000),f"s_lshl_b32 s94, s{S_MI}, 3",f"s_add_u32 s94, s94, s{S_NI}","s_lshl_b32 s94, s94, 2",f"s_add_u32 s94, s94, s{S_WAVE}","s_lshl_b32 s94, s94, 1",f"s_add_u32 s94, s94, s{S_KH}",
          "s_xor_b32 s94, s94, 1","s_lshl_b32 s43, s94, 7",f"s_add_u32 s43, s43, {F7}","s_lshl_b32 s44, s94, 13","s_add_u32 s45, s44, 4096",f"s_lshl_b32 s41, s{S_WAVE}, 13")
        G.SLP,o=2,G.SLP; poll(k,"e",43,1,1); G.SLP=o
        for h in range(1 if G.EXB else 2):
            k(f"s_add_u32 m0, s41, {4096*h}","s_nop 0",[f"buffer_load_dwordx4 v2, s[{SA}:{SA+3}], s{44+h} offen offset:{1024*u} sc1 lds" for u in range(4)])
        k("s_waitcnt vmcnt(0)","s_barrier")
    if G.SPLIT: c=mkcfg(post=post if G.EXL else None,xflag=(F4,32,1),split=True,TM=4,TN=4,WM=2,WN=2,NS=G.NS2,K=3584,aarg=A_B2,barg=A_OUT,woff=WS_W2,xoff=WS_GF,map="4x8",prologue=zero_acc(64),aux=pro,auxat=G.AX2,epilogue=epi,vmax=140)
    else: c=mkcfg(xflag=(F4,32,1),TM=2,TN=4,WM=4,WN=1,NS=6//G.R6,R=G.R6,K=3584,aarg=A_B2,barg=A_OUT,woff=WS_W2,xoff=WS_GF,map="4x8",prologue=zero_acc(32),aux=pro,auxat=G.AUX6//G.R6,epilogue=epi,barpos=1,rstep=1,UNR=G.UNR6,vmax=100)
    return gemm("ffn2",c,km)
def k_prep():
    k=K("prep_kernel",256,512,256+4*8192,nv=256 if G.STAMP else 64)
    stamp0(k)
    k("s_cmp_ge_u32 s2, 256",f"s_cbranch_scc1 {k.lab('end')}",f"s_load_dwordx2 s[4:5], s[0:1], {A_WS}",f"s_load_dwordx4 s[48:51], s[0:1], {A_X}",f"s_load_dwordx2 s[56:57], s[0:1], {A_WO}",f"s_load_dwordx2 s[52:53], s[0:1], {A_B1}",f"s_load_dwordx2 s[54:55], s[0:1], {A_B2}",
      "v_lshrrev_b32 v1, 6, v0","v_and_b32 v0, 63, v0","s_nop 0",f"v_readfirstlane_b32 s30, v1","s_nop 1","s_cmp_ge_u32 s30, 4",f"s_cbranch_scc1 {k.lab('w')}")
    k("v_and_b32 v2, 7, v0","v_lshrrev_b32 v3, 3, v0","v_lshlrev_b32 v4, 11, v2","v_lshl_add_u32 v4, v3, 4, v4","s_lshl_b32 s31, s2, 14","s_lshl_b32 s32, s30, 9","s_add_u32 s31, s31, s32",
      "s_waitcnt lgkmcnt(0)",srd(8,48,0,0x400000))
    for i in range(4): k(f"buffer_load_dwordx4 {vr(8+4*i,4)}, v4, s[8:11], s31 offen offset:{128*i}")
    k(srd(16,4,WS_FL,FLN),"s_lshl_b32 s35, s2, 2","s_add_u32 s35, s35, s30","s_lshl_b32 s35, s35, 10","v_lshlrev_b32 v6, 4, v0","v_mov_b32 v28, 0","v_mov_b32 v29, 0","v_mov_b32 v30, 0","v_mov_b32 v31, 0",
      f"buffer_store_dwordx4 v[28:31], v6, s[16:19], s35 offen{G.STF}")
    stamp(k,1,True)
    k(srd(12,4,WS_XN,0x400000),"s_lshr_b32 s33, s2, 4","s_lshl_b32 s33, s33, 18","s_bfe_u32 s34, s2, 0x30001","s_lshl_b32 s34, s34, 11","s_add_u32 s33, s33, s34",
      "s_and_b32 s34, s2, 1","s_lshl_b32 s34, s34, 7","s_add_u32 s33, s33, s34","s_lshl_b32 s34, s30, 16","s_add_u32 s33, s33, s34",
      "v_lshlrev_b32 v5, 8, v3","v_lshl_add_u32 v5, v2, 4, v5","s_waitcnt vmcnt(1)")
    stamp(k,2)
    unpack(k,32,8,16)
    k("v_pk_add_f32 v[24:25], v[32:33], v[34:35]","v_pk_mul_f32 v[26:27], v[32:33], v[32:33]","v_pk_fma_f32 v[26:27], v[34:35], v[34:35], v[26:27]")
    for i in range(2,16): k(f"v_pk_add_f32 v[24:25], v[24:25], {vr(32+2*i,2)}",f"v_pk_fma_f32 v[26:27], {vr(32+2*i,2)}, {vr(32+2*i,2)}, v[26:27]")
    k("v_add_f32 v24, v24, v25","v_add_f32 v25, v26, v27","s_nop 1","v_add_f32_dpp v24, v24, v24 row_ror:8 row_mask:0xf bank_mask:0xf","v_add_f32_dpp v25, v25, v25 row_ror:8 row_mask:0xf bank_mask:0xf")
    for op in ("v_permlane16_swap_b32","v_permlane32_swap_b32"):
        k("v_mov_b32 v26, v24","v_mov_b32 v27, v25","s_nop 1",f"{op} v24, v26",f"{op} v25, v27","s_nop 1","v_add_f32 v24, v24, v26","v_add_f32 v25, v25, v27")
    k("s_lshl_b32 s34, s30, 6","v_lshlrev_b32 v6, 3, v2","v_add_u32 v7, s34, v6","ds_write_b64 v7, v[24:25]","s_waitcnt lgkmcnt(0)","s_barrier")
    for w in range(4): k(f"ds_read_b64 {vr(8+2*w,2)}, v6 offset:{64*w}")
    k("s_waitcnt lgkmcnt(0)","v_pk_add_f32 v[8:9], v[8:9], v[10:11]","v_pk_add_f32 v[12:13], v[12:13], v[14:15]","v_pk_add_f32 v[24:25], v[8:9], v[12:13]")
    rstd_from(k,24,25,26); k("v_mov_b32 v25, v24","v_mov_b32 v27, v26")
    for i in range(16): k(f"v_pk_add_f32 {vr(32+2*i,2)}, {vr(32+2*i,2)}, v[24:25]")
    for i in range(16): k(f"v_pk_mul_f32 {vr(32+2*i,2)}, {vr(32+2*i,2)}, v[26:27]")
    pack(k,8,32,32)
    for i in range(4): k(f"buffer_store_dwordx4 {vr(8+4*i,4)}, v5, s[12:15], s33 offen{G.STF}","s_add_u32 s33, s33, 16384")
    stamp(k,3)
    if G.STAMP: k("s_waitcnt vmcnt(0)")
    stamp(k,4)
    k("s_endpgm")
    k.label("w")
    k("s_sub_u32 s30, s30, 4","s_mov_b32 s35, 6144"); relayout_addr(k,2,3,35,None,None)
    k("v_lshrrev_b32 v7, 4, v0","v_lshl_add_u32 v3, v7, 9, v3","s_lshl_b32 s36, s30, 13","s_add_u32 s36, s36, 256","v_add_u32 v3, s36, v3","v_lshlrev_b32 v4, 4, v0",
      "s_lshr_b32 s31, s2, 3","s_and_b32 s32, s2, 7","s_mul_i32 s32, s32, 12","s_mul_i32 s33, s30, 3","s_add_u32 s32, s32, s33",
      f"s_mul_i32 s33, s31, {32*6144}","s_lshl_b32 s34, s32, 6","s_add_u32 s33, s33, s34",f"s_add_u32 s34, s33, {16*6144}",
      "s_waitcnt lgkmcnt(0)",srd(8,50,0,1024*6144),srd(12,4,WS_WQ,1024*6144))
    for it in range(3):
        k(f"s_add_u32 m0, s36, {2048*it}","s_nop 0","buffer_load_dwordx4 v2, s[8:11], s33 offen lds",f"s_add_u32 m0, s36, {2048*it+1024}","s_add_u32 s33, s33, 64",
          "buffer_load_dwordx4 v2, s[8:11], s34 offen lds","s_add_u32 s34, s34, 64")
    k(srd(16,56,0,1024*2048),srd(20,4,WS_WO,1024*2048),"s_mov_b32 s35, 2048"); relayout_addr(k,40,41,35,None,None)
    k("s_and_b32 s42, s2, 7","s_lshl_b32 s42, s42, 2","s_add_u32 s42, s42, s30","s_lshl_b32 s33, s31, 16","s_lshl_b32 s34, s42, 6","s_add_u32 s33, s33, s34","s_add_u32 s34, s33, 32768",
      "s_add_u32 m0, s36, 6144","v_lshrrev_b32 v7, 5, v0","buffer_load_dwordx4 v40, s[16:19], s33 offen lds","s_add_u32 m0, s36, 7168","v_lshl_add_u32 v41, v7, 10, v41","buffer_load_dwordx4 v40, s[16:19], s34 offen lds",
      "v_bfe_u32 v7, v0, 4, 1","v_lshl_add_u32 v41, v7, 8, v41","v_add_u32 v41, s36, v41",
      "s_lshr_b32 s43, s42, 1","s_lshl_b32 s43, s43, 17","s_and_b32 s42, s42, 1","s_lshl_b32 s42, s42, 12","s_add_u32 s43, s43, s42","s_lshr_b32 s42, s31, 1","s_lshl_b32 s42, s42, 13","s_add_u32 s43, s43, s42",
      "s_and_b32 s42, s31, 1","s_lshl_b32 s42, s42, 10","s_add_u32 s43, s43, s42")
    k("s_barrier","s_lshr_b32 s37, s31, 1","s_mul_i32 s37, s37, 24576","s_and_b32 s31, s31, 1","s_lshl_b32 s31, s31, 10","s_add_u32 s37, s37, s31")
    for it in range(3):
        k("s_waitcnt vmcnt(6)")
        for t in range(2):
            k(f"ds_read_b64_tr_b16 {vr(8+8*it+4*t,2)}, v3 offset:{2048*it+8*t}",f"ds_read_b64_tr_b16 {vr(10+8*it+4*t,2)}, v3 offset:{2048*it+8*t+256}")
        k("s_lshr_b32 s39, s32, 5","s_bfe_u32 s40, s32, 0x40001",f"s_mul_i32 s40, s40, {16*24576}","s_and_b32 s41, s32, 1","s_mul_i32 s41, s41, 3","s_add_u32 s39, s39, s41","s_lshl_b32 s39, s39, 12",
          "s_add_u32 s39, s39, s40","s_add_u32 s39, s39, s37","s_add_u32 s32, s32, 1","s_waitcnt lgkmcnt(0)")
        for t in range(2): k(f"buffer_store_dwordx4 {vr(8+8*it+4*t,4)}, v4, s[12:15], s39 offen offset:{2048*t}{G.STF}")
    k("s_waitcnt vmcnt(6)")
    for t in range(2): k(f"ds_read_b64_tr_b16 {vr(32+4*t,2)}, v41 offset:{6144+8*t}",f"ds_read_b64_tr_b16 {vr(34+4*t,2)}, v41 offset:{6144+8*t+512}")
    k("s_waitcnt lgkmcnt(0)")
    for t in range(2): k(f"buffer_store_dwordx4 {vr(32+4*t,4)}, v4, s[20:23], s43 offen offset:{2048*t}{G.STF}")
    k("s_cmp_lg_u32 s2, 0",f"s_cbranch_scc1 {k.lab('end')}",srd(8,52,0,7168),srd(12,54,0,2048),"v_lshlrev_b32 v4, 7, v0",
      "buffer_load_dword v5, v4, s[8:11], 0 offen","buffer_load_dword v6, v4, s[12:15], 0 offen","s_waitcnt vmcnt(0)")
    k.label("end"); k("s_endpgm")
    return k
```
